```python
import torch

def _softmax(x, axis=-1):
    return torch.softmax(x, dim=axis)

def _gelu(x):
    return torch.nn.functional.gelu(x, approximate='tanh')

def _silu(x):
    return torch.nn.functional.silu(x)

def _sigmoid(x):
    return torch.sigmoid(x)

def _layernorm(x, axis=-1, eps=1e-05):
    m = x.mean(dim=axis, keepdim=True)
    v = x.var(dim=axis, keepdim=True, unbiased=False)
    return (x - m) / torch.sqrt(v + eps)

def _scatter_add(tgt, idx, src, axis=0):
    return tgt.clone().index_add_(axis, idx, src)

def _segment_sum(src, seg, n):
    out = torch.zeros((n,) + src.shape[1:], dtype=src.dtype)
    return out.index_add_(0, seg, src)

def _pad(x, pw):
    flat = tuple((v for pair in reversed(pw) for v in pair))
    return torch.nn.functional.pad(x, flat)
kernel_name = 'standalone__varlen_attn_packed__ragged'

def setup_inputs():

    _w = lambda a: (lambda t: t.to(torch.bfloat16) if t.is_floating_point() else t)(torch.as_tensor(a))
    cu = torch.tensor([0, 534, 1426, 1714, 2675, 3469, 4036, 4628, 4845], dtype=torch.int64)
    T, H, D = (int(cu[-1]), 16, 128)
    return {'q': _w((lambda *s: torch.randn(*s, dtype=torch.bfloat16) * 0.8)(T, H, D)), 'k': _w((lambda *s: torch.randn(*s, dtype=torch.bfloat16) * 0.8)(T, H, D)), 'v': _w((lambda *s: torch.randn(*s, dtype=torch.bfloat16) * 0.05)(T, H, D)), 'cu': _w(cu)}

def reference(q, k, v, cu):
    T, H, D = q.shape
    out = torch.zeros_like(q)
    scale = D ** (-0.5)
    outs = []
    for i in range(len(cu) - 1):
        s, e = (int(cu[i]), int(cu[i + 1]))
        qi, ki, vi = (q[s:e].clone(), k[s:e].clone(), v[s:e].clone())
        p = _softmax(torch.einsum('qhd,khd->hqk', qi, ki) * scale, axis=-1)
        outs.append(torch.einsum('hqk,khd->qhd', p, vi))
    return torch.concatenate(outs, axis=0)
```

```python
import re

class Asm:
    def __init__(self):
        self.lines = []
    def __call__(self, s):
        for l in s.strip("\n").split("\n"):
            self.lines.append(l.strip())
    def label(self, name):
        self.lines.append(name + ":")
    def ext(self, lst):
        for l in lst:
            self(l)
    def text(self):
        out = []
        for l in self.lines:
            if l.endswith(":") or l.startswith("."):
                out.append(l)
            else:
                out.append("    " + l)
        return "\n".join(out) + "\n"

_reg = re.compile(r"^(-?)(?:abs\()?([vas])(\d+)\)?$|^(-?)([vas])\[(\d+):(\d+)\]$")

def parse_operand(op):
    op = op.strip()
    op = op.lstrip("-")
    if op.startswith("|") and op.endswith("|"):
        op = op[1:-1]
    m = re.match(r"^abs\((.*)\)$", op)
    if m:
        op = m.group(1)
    m = re.match(r"^([vas])(\d+)$", op)
    if m:
        return [(m.group(1), int(m.group(2)))]
    m = re.match(r"^([vas])\[(\d+):(\d+)\]$", op)
    if m:
        return [(m.group(1), i) for i in range(int(m.group(2)), int(m.group(3)) + 1)]
    if op == "vcc":
        return [("s", 106), ("s", 107)]
    if op == "m0":
        return [("s", 124)]
    if op == "exec":
        return [("s", 126), ("s", 127)]
    return []

TRANS = ("v_exp_f32", "v_log_f32", "v_rcp_f32", "v_rsq_f32", "v_sqrt_f32", "v_sin_f32", "v_cos_f32")

class Ins:
    def __init__(self, line):
        self.line = line
        code = line.split(";")[0].strip()
        parts = code.split(None, 1)
        self.op = parts[0]
        rest = parts[1] if len(parts) > 1 else ""
        ops = []
        cur = ""
        depth = 0
        for ch in rest:
            if ch in "[(":
                depth += 1
            if ch in "])":
                depth -= 1
            if ch == "," and depth == 0:
                ops.append(cur)
                cur = ""
            else:
                cur += ch
        if cur.strip():
            ops.append(cur)
        ops = [o.strip() for o in ops]
        mods = ""
        if ops:
            sp = ops[-1].split(None, 1)
            if len(sp) > 1:
                ops[-1] = sp[0]
                mods = sp[1]
        self.ops = ops
        self.mods = mods
        op = self.op
        self.is_mfma = op.startswith("v_mfma")
        self.is_valu = op.startswith("v_") and not self.is_mfma
        self.is_trans = any(op.startswith(t) for t in TRANS)
        self.is_salu = op.startswith("s_")
        self.is_ds = op.startswith("ds_")
        self.is_vmem = op.startswith("buffer_") or op.startswith("global_")
        self.w = []
        self.r = []
        self.srcC = []
        self.srcAB = []
        P = parse_operand
        if self.is_mfma:
            self.w = P(ops[0])
            self.srcAB = P(ops[1]) + P(ops[2])
            self.srcC = P(ops[3])
            self.r = self.srcAB + self.srcC
            self.passes = 8 if "32x32" in op else 4
        elif self.is_valu:
            if op.startswith("v_cmp"):
                self.w = P(ops[0]); self.r = sum((P(o) for o in ops[1:]), [])
            elif op.startswith("v_permlane") and "swap" in op:
                self.w = P(ops[0]) + P(ops[1]); self.r = list(self.w)
            elif op.startswith("v_nop"):
                pass
            else:
                self.w = P(ops[0]); self.r = sum((P(o) for o in ops[1:]), [])
                if op.startswith("v_fmac") or op.startswith("v_writelane"):
                    self.r += self.w
                if op.startswith("v_add_co") or op.startswith("v_addc_co"):
                    self.w += P(ops[1])
        elif self.is_ds:
            if op.startswith("ds_read") or op.startswith("ds_bpermute") or op.startswith("ds_swizzle"):
                self.w = P(ops[0]); self.r = sum((P(o) for o in ops[1:]), [])
            else:
                self.r = sum((P(o) for o in ops), [])
        elif self.is_vmem:
            lds = "lds" in mods.split()
            self.lds = lds
            if "load" in op and not lds:
                self.w = P(ops[0]); self.r = sum((P(o) for o in ops[1:]), [])
            else:
                self.r = sum((P(o) for o in ops), [])
                if lds:
                    self.r += [("s", 124)]
            self.is_store = "store" in op
        elif self.is_salu:
            if op in ("s_waitcnt", "s_barrier", "s_nop", "s_branch", "s_endpgm", "s_setprio", "s_sleep") or op.startswith("s_cbranch"):
                pass
            elif op.startswith("s_cmp") or op.startswith("s_bitcmp"):
                self.r = sum((P(o) for o in ops), [])
            else:
                self.w = P(ops[0]); self.r = sum((P(o) for o in ops[1:]), [])
        self.states = 1
        if op == "s_nop":
            self.states = int(ops[0], 0) + 1

def need(a, b):
    n = 0
    aw = set(a.w); ar = set(a.r); bw = set(b.w); br = set(b.r)
    awv = {x for x in aw if x[0] != "s"}
    aws = {x for x in aw if x[0] == "s"}
    if a.is_valu:
        if b.is_mfma and awv & br: n = max(n, 2)
        if b.op.startswith("v_permlane") and awv & br: n = max(n, 2)
        if (b.op.startswith("v_readlane") or b.op.startswith("v_readfirstlane")) and awv & br: n = max(n, 1)
        if b.is_valu and "dpp" in b.line and awv & br: n = max(n, 2)
        if a.is_trans and b.is_valu and not b.is_trans and awv & br: n = max(n, 1)
        if a.is_trans and b.is_mfma and awv & br: n = max(n, 2)
        if aws and b.is_valu and aws & br: n = max(n, 2)
        if aws and b.is_vmem and aws & br: n = max(n, 5)
        if aws and b.is_salu and aws & br: n = max(n, 1)
        if ("s", 126) in aws and b.is_mfma: n = max(n, 4)
    if a.is_mfma:
        big = {8: 12, 4: 8}[a.passes]
        ov = {8: 10, 4: 6}[a.passes]
        war = {8: 7, 4: 3}[a.passes]
        if b.is_mfma:
            if aw & set(b.srcAB): n = max(n, big)
            if aw & set(b.srcC):
                if not (set(b.srcC) == aw and b.passes == a.passes): n = max(n, ov)
            elif aw & bw: n = max(n, ov)
        elif b.is_valu:
            if aw & (br | bw): n = max(n, big)
            if set(a.srcC) & bw: n = max(n, war)
        elif b.is_ds or b.is_vmem:
            if aw & (br | bw): n = max(n, big)
    if a.is_salu and ("s", 124) in aw and b.is_vmem and getattr(b, "lds", False): n = max(n, 1)
    if a.is_vmem and getattr(a, "is_store", False) and ("x4" in a.op or "x3" in a.op):
        data = set(parse_operand(a.ops[0]))
        if data & bw: n = max(n, 2)
    return n

def check_hazards(lines, maxlook=24):
    ins = []
    labels = {}
    for l in lines:
        c = l.split(";")[0].strip()
        if not c or c.startswith("."):
            continue
        if c.endswith(":"):
            labels[c[:-1]] = len(ins)
            continue
        ins.append(Ins(c))
    def succ(i):
        I = ins[i]
        if I.op == "s_endpgm": return []
        if I.op == "s_branch": return [labels[I.ops[0]]]
        if I.op.startswith("s_cbranch"): return [labels[I.ops[0]], i + 1]
        if I.op.startswith("s_setpc"): return [k + 1 for k, J in enumerate(ins) if J.op == "s_call_b64"]
        if I.op == "s_call_b64": return [labels[I.ops[1]]]
        return [i + 1] if i + 1 < len(ins) else []
    errs = []
    for i, a in enumerate(ins):
        if not (a.is_valu or a.is_mfma or a.is_vmem or (a.is_salu and ("s", 124) in a.w)):
            continue
        lim = 12 if a.is_mfma else 5
        stack = [(j, 0) for j in succ(i)]
        seen = {}
        while stack:
            j, d = stack.pop()
            if d >= lim or j >= len(ins): continue
            if seen.get(j, 99) <= d: continue
            seen[j] = d
            b = ins[j]
            n = need(a, b)
            if n > d:
                errs.append("HAZARD need %d have %d: [%d] %s  ->  [%d] %s" % (n, d, i, a.line, j, b.line))
            for k in succ(j):
                stack.append((k, d + b.states))
    return errs
```

```python
import sys, struct, math
from asmlib import Asm, check_hazards

STAMPS = "--stamps" in sys.argv
NAME = "standalone__varlen_attn_packed__ragged_kernel"
CU = [0, 534, 1426, 1714, 2675, 3469, 4036, 4628, 4845]
R = 9
D = 8
HALF = 8704
SZ = 2 * HALF
LDS = R * SZ

tasks = []
for i in range(8):
    L = CU[i + 1] - CU[i]
    n = (L + 31) // 32
    for q0 in range(0, L, 256):
        r = min(8, (L - q0 + 31) // 32)
        cost = n * (2 if r > 4 else 1.2)
        tasks.append((cost, CU[i], L, q0, n))
tasks.sort(key=lambda t: -t[0])
NT = len(tasks)
GRID = NT * 16

V_KA0, V_KA1, V_VA, V_KVO, V_VVO, V_L0, V_L1, V_QO, V_T0, V_T1, V_T2, V_T3, V_THR, V_NINF = range(1, 15)
S_BUF = [16, 32]
CI = 48
O = 64
A_Q = 0
A_KF = 64
A_VF = 96
SRD_Q, SRD_K, SRD_V, SRD_O, SRD_W = 4, 8, 12, 16, 20
S_KOFF, S_VOFF, S_WSLOT, S_WBASE, S_WEND, S_RSLOT, S_DELTA, S_DPOS, S_DNEG, S_CNT, S_C, S_W, S_QOFF, S_NV, S_N, S_L, S_T0, S_T1, S_T2, S_T3 = range(28, 48)
S_ST = 48

def v(i, n=1): return "v%d" % i if n == 1 else "v[%d:%d]" % (i, i + n - 1)
def a(i, n=1): return "a%d" % i if n == 1 else "a[%d:%d]" % (i, i + n - 1)
def s(i, n=1): return "s%d" % i if n == 1 else "s[%d:%d]" % (i, i + n - 1)

def qk_mfma(buf, st, cinit):
    c = cinit if st == 0 else v(buf, 16)
    return "v_mfma_f32_32x32x16_bf16 %s, %s, %s, %s" % (v(buf, 16), a(A_KF + 4 * st, 4), a(A_Q + 4 * st, 4), c)
def pv_mfma(buf, i):
    t, db = i >> 2, i & 3
    return "v_mfma_f32_32x32x16_bf16 %s, %s, %s, %s" % (v(O + 16 * db, 16), a(A_VF + 4 * i, 4), v(buf + 8 * t, 4), v(O + 16 * db, 16))
def k_read(st):
    return "ds_read_b128 %s, %s offset:%d" % (a(A_KF + 4 * st, 4), v(V_KA0 + (st & 1)), 64 * (st >> 1))
def v_read(i, j):
    t, db = i >> 2, i & 3
    return "ds_read_b64_tr_b16 %s, %s offset:%d" % (a(A_VF + 4 * i + 2 * j, 2), v(V_VA), (2 * t + j) * 256 + 64 * db)

def softmax_ops(buf):
    ops = []
    for e in range(16):
        ops.append((9 + e, 0, "v_mul_f32 %s, %s, %s" % (v(buf + e), s(S_C), v(buf + e))))
        ops.append((10 + e, 1, "v_exp_f32 %s, %s" % (v(buf + e), v(buf + e))))
        l = V_L0 + (e & 1)
        ops.append((11 + e, 2, "v_add_f32 %s, %s, %s" % (v(l), v(l), v(buf + e))))
        if e & 1:
            g, k = e >> 3, (e & 7) >> 1
            ops.append((11 + e, 3, "v_cvt_pk_bf16_f32 %s, %s, %s" % (v(buf + 8 * g + k), v(buf + e - 1), v(buf + e))))
    ops.sort(key=lambda x: (x[0], [1, 0, 2, 3][x[1]]))
    return [(o[0], o[2]) for o in ops]

def stream_groups():
    g = []
    g.append(["s_mov_b32 m0, %s" % s(S_WSLOT)])
    g.append(["buffer_load_dwordx4 %s, %s, %s offen lds" % (v(V_KVO), s(SRD_K, 4), s(S_KOFF))])
    g.append(["s_add_u32 m0, %s, %d" % (s(S_WSLOT), HALF)])
    g.append(["buffer_load_dwordx4 %s, %s, %s offen lds" % (v(V_VVO), s(SRD_V, 4), s(S_VOFF))])
    g.append(["s_mov_b32 %s, %s" % (s(S_VOFF), s(S_KOFF)), "s_add_u32 %s, %s, %d" % (s(S_KOFF), s(S_KOFF), 32 * 4096)])
    g.append(["s_add_u32 %s, %s, %d" % (s(S_WSLOT), s(S_WSLOT), SZ), "s_cmp_ge_u32 %s, %s" % (s(S_WSLOT), s(S_WEND)),
              "s_cselect_b32 %s, %s, %s" % (s(S_WSLOT), s(S_WBASE), s(S_WSLOT))])
    return g
def stream_flat():
    out = []
    for g in stream_groups():
        out += g
        if g[0].startswith("s_mov_b32 m0") or g[0].startswith("s_add_u32 m0"):
            out.append("s_nop 0")
    return out
def rdelta():
    return ["s_add_u32 %s, %s, 1" % (s(S_RSLOT), s(S_RSLOT)), "s_cmp_eq_u32 %s, %d" % (s(S_RSLOT), R),
            "s_cselect_b32 %s, %s, %s" % (s(S_DELTA), s(S_DNEG), s(S_DPOS)), "s_cselect_b32 %s, 0, %s" % (s(S_RSLOT), s(S_RSLOT))]
def adv(reg):
    return "v_add_u32 %s, %s, %s" % (v(reg), s(S_DELTA), v(reg))
VMW = "s_waitcnt vmcnt(%d)" % (2 * (D - 2))

def iteration(A, p):
    cur, nxt = S_BUF[p], S_BUF[1 - p]
    fill = [[] for _ in range(16)]
    pre = [[] for _ in range(16)]
    for sl, op in softmax_ops(cur):
        if sl >= 16: fill[sl - 16].append(op)
    for sl, op in softmax_ops(nxt):
        if sl < 16: fill[sl].append(op)
    for i in range(8):
        fill[i].insert(0, v_read(i, 0))
        fill[i].insert(2, v_read(i, 1))
        fill[8 + i].insert(1, k_read(i))
    sg = stream_groups()
    fill[8] += sg[0]; fill[9] += sg[1]; fill[10] += sg[2]; fill[11] += sg[3]; fill[12] += sg[4]; fill[13] += sg[5]
    rd = rdelta()
    fill[4] += rd[:2]; fill[5] += rd[2:]
    fill[6].append(adv(V_KA0)); fill[7].append(adv(V_KA1)); fill[8].append(adv(V_VA))
    fill[14].append("s_sub_u32 %s, %s, 1" % (s(S_CNT), s(S_CNT)))
    pre[0].append("s_waitcnt lgkmcnt(2)")
    pre[6].append("s_waitcnt lgkmcnt(12)")
    pre[8].append("s_waitcnt lgkmcnt(4)")
    pre[14].append("s_waitcnt lgkmcnt(6)")
    for i in range(16):
        A.ext(pre[i])
        A(qk_mfma(nxt, i, v(CI, 16)) if i < 8 else pv_mfma(cur, i - 8))
        A.ext(fill[i])

def mask_hook(A):
    prs = ["vcc", s(S_T0, 2), s(S_T2, 2)]
    seq = []
    for r in range(16):
        kc = 8 * (r >> 2) + (r & 3)
        seq.append(("v_cmp_lt_i32 %s, %d, %s" % (prs[r % 3], kc, v(V_THR)),
                    "v_cndmask_b32 %s, %s, %s, %s" % (v(CI + r), v(V_NINF), v(CI + r), prs[r % 3])))
    for r in range(16 + 2):
        if r < 16: A(seq[r][0])
        else: A("s_nop 0")
        if r >= 2: A(seq[r - 2][1])
    A("s_nop 1")

def stamp(A, idx):
    if STAMPS:
        A("s_memtime %s" % s(S_ST + 2 * idx, 2))

A = Asm()
A.label(NAME)
A("s_cmp_ge_u32 s2, %d" % GRID)
A("s_cbranch_scc1 L_end")
if STAMPS:
    A("s_memrealtime %s" % s(S_ST + 12, 2))
stamp(A, 0)
A("s_load_dwordx4 s[64:67], s[0:1], 0")
A("s_load_dwordx2 s[68:69], s[0:1], 16")
A("s_load_dwordx2 s[70:71], s[0:1], 32")
A("s_load_dwordx2 s[72:73], s[0:1], 48")
A("s_getpc_b64 s[74:75]")
A.label("L_pc")
A("s_lshr_b32 s76, s2, 4")
A("s_lshl_b32 s76, s76, 4")
A("s_add_u32 s74, s74, L_table-L_pc")
A("s_addc_u32 s75, s75, 0")
A("s_load_dwordx4 s[80:83], s[74:75], s76")
A("v_lshrrev_b32 %s, 6, v0" % v(V_T0))
A("v_and_b32 v0, 63, v0")
A("v_readfirstlane_b32 %s, %s" % (s(S_W), v(V_T0)))
A("v_and_b32 %s, 31, v0" % v(V_T0))
A("v_lshrrev_b32 %s, 5, v0" % v(V_T1))
A("v_lshrrev_b32 %s, 2, %s" % (v(V_T2), v(V_T0)))
A("v_mul_u32_u24 %s, 1088, %s" % (v(V_T2), v(V_T2)))
A("v_and_b32 %s, 3, v0" % v(V_T3))
A("v_lshl_add_u32 %s, %s, 8, %s" % (v(V_T2), v(V_T3), v(V_T2)))
A("v_xor_b32 %s, %s, %s" % (v(V_T3), v(V_T3), v(V_T1)))
A("v_lshl_add_u32 %s, %s, 4, %s" % (v(V_KA0), v(V_T3), v(V_T2)))
A("v_xor_b32 %s, 32, %s" % (v(V_KA1), v(V_KA0)))
A("v_bfe_u32 %s, v0, 2, 2" % v(V_T2))
A("v_lshl_add_u32 %s, %s, 2, %s" % (v(V_T2), v(V_T1), v(V_T2)))
A("v_mul_u32_u24 %s, 1088, %s" % (v(V_T2), v(V_T2)))
A("v_bfe_u32 %s, v0, 4, 1" % v(V_T3))
A("v_lshl_add_u32 %s, %s, 5, %s" % (v(V_T2), v(V_T3), v(V_T2)))
A("v_and_b32 %s, 3, v0" % v(V_T3))
A("v_lshl_add_u32 %s, %s, 3, %s" % (v(V_T2), v(V_T3), v(V_T2)))
A("v_add_u32 %s, %d, %s" % (v(V_VA), HALF, v(V_T2)))
A("s_lshl_b32 %s, %s, 5" % (s(S_T0), s(S_W)))
A("v_add_u32 %s, %s, %s" % (v(V_T2), s(S_T0), v(V_T0)))
A("v_lshlrev_b32 %s, 12, %s" % (v(V_T2), v(V_T2)))
A("v_lshl_add_u32 %s, %s, 4, %s" % (v(V_QO), v(V_T1), v(V_T2)))
A("v_lshlrev_b32 %s, 2, %s" % (v(V_THR), v(V_T1)))
A("v_lshrrev_b32 %s, 4, v0" % v(V_T2))
A("v_and_b32 %s, 15, v0" % v(V_T3))
A("v_xor_b32 %s, %s, %s" % (v(V_T0), v(V_T3), v(V_T2)))
A("s_lshl_b32 %s, %s, 2" % (s(S_T0), s(S_W)))
A("v_add_u32 %s, %s, %s" % (v(V_T1), s(S_T0), v(V_T2)))
A("v_lshlrev_b32 %s, 12, %s" % (v(V_T1), v(V_T1)))
A("v_lshl_add_u32 %s, %s, 4, %s" % (v(V_KVO), v(V_T0), v(V_T1)))
A("v_lshl_add_u32 %s, %s, 3, %s" % (v(V_T1), v(V_T2), s(S_W)))
A("v_lshlrev_b32 %s, 12, %s" % (v(V_T1), v(V_T1)))
A("v_lshl_add_u32 %s, %s, 4, %s" % (v(V_VVO), v(V_T3), v(V_T1)))
A("v_mov_b32 %s, 0xff800000" % v(V_NINF))
A("v_mov_b32 %s, 0" % v(V_L0))
A("v_mov_b32 %s, 0" % v(V_L1))
for i in range(64):
    A("v_mov_b32 %s, 0" % v(O + i))
c = (128 ** -0.5) * math.log2(math.e)
A("s_mov_b32 %s, 0x%08x" % (s(S_C), struct.unpack("<I", struct.pack("<f", c))[0]))
A("s_mul_i32 %s, %s, 1088" % (s(S_WBASE), s(S_W)))
A("s_add_u32 %s, %s, %d" % (s(S_WEND), s(S_WBASE), R * SZ))
A("s_mov_b32 %s, %s" % (s(S_WSLOT), s(S_WBASE)))
A("s_mov_b32 %s, 0" % s(S_RSLOT))
A("s_mov_b32 %s, %d" % (s(S_DPOS), SZ))
A("s_mov_b32 %s, %d" % (s(S_DNEG), -(R - 1) * SZ))
A("s_and_b32 %s, s2, 7" % s(S_T0))
A("s_lshl_b32 %s, %s, 1" % (s(S_T0), s(S_T0)))
A("s_bfe_u32 %s, s2, 0x10003" % s(S_T1))
A("s_add_u32 %s, %s, %s" % (s(S_T0), s(S_T0), s(S_T1)))
A("s_lshl_b32 %s, %s, 8" % (s(S_T3), s(S_T0)))
A("s_waitcnt lgkmcnt(0)")
A("s_add_u32 %s, s80, s81" % s(S_T0))
A("s_lshl_b32 %s, %s, 12" % (s(S_T0), s(S_T0)))
for srd, src in ((SRD_Q, 64), (SRD_K, 66), (SRD_V, 68), (SRD_O, 70)):
    A("s_mov_b32 %s, %s" % (s(srd), s(src)))
    A("s_mov_b32 %s, %s" % (s(srd + 1), s(src + 1)))
    A("s_mov_b32 %s, %s" % (s(srd + 2), s(S_T0)))
    A("s_mov_b32 %s, 0x20000" % s(srd + 3))
A("s_mov_b32 %s, s72" % s(SRD_W)); A("s_mov_b32 %s, s73" % s(SRD_W + 1))
A("s_mov_b32 %s, 0x1000000" % s(SRD_W + 2)); A("s_mov_b32 %s, 0x20000" % s(SRD_W + 3))
A("s_lshl_b32 %s, s80, 12" % s(S_KOFF))
A("s_add_u32 %s, %s, %s" % (s(S_KOFF), s(S_KOFF), s(S_T3)))
A("s_mov_b32 %s, %s" % (s(S_VOFF), s(S_T0)))
A("s_lshl_b32 %s, s82, 12" % s(S_QOFF))
A("s_add_u32 %s, %s, %s" % (s(S_QOFF), s(S_QOFF), s(S_KOFF)))
A("s_mov_b32 %s, s83" % s(S_N))
A("s_mov_b32 %s, s81" % s(S_L))
A("s_lshl_b32 %s, %s, 5" % (s(S_T1), s(S_N)))
A("s_sub_u32 %s, %s, %s" % (s(S_NV), s(S_L), s(S_T1)))
A("s_add_u32 %s, %s, 32" % (s(S_NV), s(S_NV)))
A("v_sub_u32 %s, %s, %s" % (v(V_THR), s(S_NV), v(V_THR)))
A.ext(stream_flat())
for st in range(8):
    A("buffer_load_dwordx4 %s, %s, %s, %s offen offset:%d" % (a(A_Q + 4 * st, 4), v(V_QO), s(SRD_Q, 4), s(S_QOFF), 32 * st))
for i in range(1, D):
    A.ext(stream_flat())
A("s_lshl_b32 %s, %s, 5" % (s(S_T1), s(S_W)))
A("s_add_u32 %s, %s, s82" % (s(S_T1), s(S_T1)))
A(VMW)
A("s_barrier")
stamp(A, 1)
A("s_cmp_ge_u32 %s, %s" % (s(S_T1), s(S_L)))
A("s_cbranch_scc1 L_idle")
for st in range(8): A(k_read(st))
A.ext(stream_flat())
A.ext(rdelta())
A(adv(V_KA0)); A(adv(V_KA1)); A(adv(V_VA))
A("s_waitcnt lgkmcnt(0)")
for st in range(8):
    A(qk_mfma(S_BUF[0], st, "0"))
for st in range(8): A(k_read(st))
A("s_nop 7")
b = S_BUF[0]
A("v_max3_f32 %s, %s, %s, %s" % (v(V_T0), v(b), v(b + 1), v(b + 2)))
A("v_max3_f32 %s, %s, %s, %s" % (v(V_T1), v(b + 3), v(b + 4), v(b + 5)))
for i in range(6, 14, 4):
    A("v_max3_f32 %s, %s, %s, %s" % (v(V_T0), v(V_T0), v(b + i), v(b + i + 1)))
    A("v_max3_f32 %s, %s, %s, %s" % (v(V_T1), v(V_T1), v(b + i + 2), v(b + i + 3)))
A("v_max3_f32 %s, %s, %s, %s" % (v(V_T0), v(V_T0), v(b + 14), v(b + 15)))
A("v_max_f32 %s, %s, %s" % (v(V_T0), v(V_T0), v(V_T1)))
A("v_mov_b32 %s, %s" % (v(V_T1), v(V_T0)))
A("s_nop 1")
A("v_permlane32_swap_b32 %s, %s" % (v(V_T0), v(V_T1)))
A("v_max_f32 %s, %s, %s" % (v(V_T0), v(V_T0), v(V_T1)))
for i in range(16):
    A("v_sub_f32 %s, 0, %s" % (v(CI + i), v(V_T0)))
    A("v_sub_f32 %s, %s, %s" % (v(b + i), v(b + i), v(V_T0)))
for sl, op in softmax_ops(b):
    if sl < 16: A(op)
A("s_sub_u32 %s, %s, 1" % (s(S_CNT), s(S_N)))
stamp(A, 2)
for p in range(2):
    A.label("L_it%d" % p)
    A(VMW)
    A("s_barrier")
    A("s_cmp_eq_u32 %s, 1" % s(S_CNT))
    A("s_cbranch_scc0 L_nomask%d" % p)
    mask_hook(A)
    A.label("L_nomask%d" % p)
    iteration(A, p)
    A("s_cmp_eq_u32 %s, 0" % s(S_CNT))
    if p == 0:
        A("s_cbranch_scc1 L_end1")
    else:
        A("s_cbranch_scc0 L_it0")
for p in (0, 1):
    A.label("L_end%d" % p)
    stamp(A, 3)
    cur = S_BUF[p]
    A(VMW)
    A("s_barrier")
    for i in range(8):
        A(v_read(i, 0)); A(v_read(i, 1))
    for sl, op in softmax_ops(cur):
        if sl >= 16: A(op)
    A("s_waitcnt lgkmcnt(0)")
    A("s_nop 0")
    for i in range(8):
        A(pv_mfma(cur, i))
    if p == 0:
        A("s_branch L_epi")
A.label("L_epi")
A("v_add_f32 %s, %s, %s" % (v(V_L0), v(V_L0), v(V_L1)))
A("v_mov_b32 %s, %s" % (v(V_L1), v(V_L0)))
A("s_nop 1")
A("v_permlane32_swap_b32 %s, %s" % (v(V_L0), v(V_L1)))
A("v_add_f32 %s, %s, %s" % (v(V_L0), v(V_L0), v(V_L1)))
A("v_rcp_f32 %s, %s" % (v(V_L0), v(V_L0)))
A("s_nop 7")
for db in range(4):
    for jj in range(2):
        base = O + 16 * db + 8 * jj
        for i in range(8):
            A("v_mul_f32 %s, %s, %s" % (v(base + i), v(V_L0), v(base + i)))
        for k in range(4):
            A("v_cvt_pk_bf16_f32 %s, %s, %s" % (v(base + k), v(base + 2 * k), v(base + 2 * k + 1)))
        A("s_nop 1")
        A("v_permlane32_swap_b32 %s, %s" % (v(base), v(base + 2)))
        A("v_permlane32_swap_b32 %s, %s" % (v(base + 1), v(base + 3)))
        A("buffer_store_dwordx4 %s, %s, %s, %s offen offset:%d" % (v(base, 4), v(V_QO), s(SRD_O, 4), s(S_QOFF), 32 * (2 * db + jj)))
if STAMPS:
    A("s_waitcnt vmcnt(0)")
    stamp(A, 4)
    A("s_memrealtime %s" % s(S_ST + 14, 2))
    A("s_getreg_b32 %s, hwreg(HW_REG_XCC_ID)" % s(S_ST + 10))
    A("s_getreg_b32 %s, hwreg(HW_REG_HW_ID)" % s(S_ST + 11))
    A("s_waitcnt lgkmcnt(0)")
    A("s_cmp_eq_u32 %s, 0" % s(S_W))
    A("s_cbranch_scc0 L_end")
    for i in range(16):
        A("v_mov_b32 %s, %s" % (v(16 + i), s(S_ST + i)))
    A("s_lshl_b32 %s, s2, 6" % s(S_T0))
    A("v_mov_b32 v32, 0")
    A("s_mov_b64 exec, 1")
    for i in range(4):
        A("buffer_store_dwordx4 %s, v32, %s, %s offen offset:%d" % (v(16 + 4 * i, 4), s(SRD_W, 4), s(S_T0), 16 * i))
A("s_endpgm")
A.label("L_idle")
A("s_mov_b32 %s, %s" % (s(S_CNT), s(S_N)))
A.label("L_idle_loop")
A.ext(stream_flat())
A(VMW)
A("s_barrier")
A("s_sub_u32 %s, %s, 1" % (s(S_CNT), s(S_CNT)))
A("s_cmp_eq_u32 %s, 0" % s(S_CNT))
A("s_cbranch_scc0 L_idle_loop")
A.label("L_end")
A("s_endpgm")

errs = check_hazards(A.lines)
for e in errs: print(e, file=sys.stderr)
if errs: sys.exit(1)

hdr = open("standalone__varlen_attn_packed__ragged.s.ref").read().split("\n")
hdr = [l for l in hdr[:10] if l.startswith(";") and "@launch" not in l]
out = "\n".join(hdr) + "\n; @launch grid=(%d,1,1) block=(512,1,1) lds=%d\n" % (GRID, LDS)
out += '.amdgcn_target "amdgcn-amd-amdhsa--gfx950"\n.text\n.globl %s\n.p2align 8\n.type %s,@function\n' % (NAME, NAME)
out += A.text()
out += ".p2align 4\n.type L_table,@object\nL_table:\n"
for t in tasks:
    out += ".long %d, %d, %d, %d\n" % (t[1], t[2], t[3], t[4])
out += """.section .rodata,"a"
.p2align 6
.amdhsa_kernel %s
  .amdhsa_next_free_vgpr 256
  .amdhsa_next_free_sgpr 96
  .amdhsa_accum_offset 128
  .amdhsa_group_segment_fixed_size 0
  .amdhsa_kernarg_size 56
  .amdhsa_user_sgpr_count 2
  .amdhsa_user_sgpr_kernarg_segment_ptr 1
  .amdhsa_system_sgpr_workgroup_id_x 1
.end_amdhsa_kernel
""" % NAME
sys.stdout.write(out)
```

```python
CU = [0, 534, 1426, 1714, 2675, 3469, 4036, 4628, 4845]
segs = {}
for i in range(8):
    L = CU[i + 1] - CU[i]
    n = (L + 31) // 32
    segs[n] = (CU[i], L, (L + 127) // 128)

PLAN_A = [
    ([31], [28]), ([31], [28]), ([31], [28]), ([31], [28]), ([31], [28]), ([31], [28]), ([31], [28]),
    ([31], [19, 9]),
    ([17, 17], [25]), ([17, 17], [25]), ([18, 17], [25]),
    ([18, 18], [19]), ([18, 18], [19]),
    ([25, 7], [25]), ([25, 7], [19, 9]), ([19, 9], [25]),
]
import sys
GENTLE = "--gentle" in sys.argv
def build(plan=PLAN_A):
    table = [None] * 64
    for hb in range(2):
        cnt = {n: 0 for n in segs}
        for c, (old, young) in enumerate(plan):
            for k, lst in enumerate((old, young)):
                ent = []
                for ti, n in enumerate(lst):
                    fl = 0
                    if isinstance(n, tuple):
                        n, fl = n
                    if GENTLE and (k == 1 or ti > 0): fl |= 4
                    tok0, L, nt = segs[n]
                    ent.append((tok0, L, cnt[n], hb, fl))
                    cnt[n] += 1
                table[2 * c + hb + 32 * k] = ent
        for n in segs:
            assert cnt[n] == segs[n][2], (n, cnt[n])
    return table
if __name__ == "__main__":
    for j, e in enumerate(build()): print(j, e)
PLAN_B = [
    ([18, 18], [19]), ([18, 18], [19]), ([17, 19], [19]),
    ([25, 7], [28]), ([25, 7], [28]),
    ([17, 17], [25]), ([17, 17], [25]), ([25, 9], [25]),
    ([9, 19], [(31, 1)]), ([31], [(31, 1)]), ([31], [(31, 1)]), ([18, 9], [(31, 1)]),
    ([31], [(28, 1)]), ([31], [(28, 1)]), ([28], [(28, 1)]), ([28], [(25, 1)]),
]
```

```python
import sys, struct, math
from asmlib import Asm, check_hazards
import sched

def opt(x): return ("--" + x) in sys.argv
def optv(x, d):
    for a_ in sys.argv:
        if a_.startswith("--" + x + "="): return a_.split("=")[1]
    return d
STAMPS = opt("stamps")
FINE = opt("fine")
NAME = "standalone__varlen_attn_packed__ragged_kernel"
HALF = 8704
SZ = 2 * HALF
SPARE = 8 * HALF
LDS = 9 * HALF
BLK = 32 * 4096
GRID = 512
table = sched.build(getattr(sched, optv("plan", "PLAN_B")))
WIN = int(optv("win", "8"))

V_NINF = 0
V_KA0, V_KA1, V_VA, V_KVO, V_KVO2, V_VVO, V_VVO2, V_L0, V_L1, V_THR, V_H4, V_T0, V_T1, V_T2, V_T3 = range(1, 16)
S_BUF = [16, 32]
CI = 48
O = 64
Q = 128
V_OW, V_OR, V_SO, V_EW, V_ER, V_QA0, V_QA1, V_VVC = range(160, 168)
V_TP = 168
ACC = 176
A_KF = 0
A_VF = 32
A_ST = 64
SRD_F, SRD_K, SRD_V, SRD_O, SRD_W = 4, 8, 12, 16, 20
(S_KOFF, S_VOFF, S_WBASE, S_CNT, S_C, S_WBK, S_QOFF, S_NV, S_N, S_L, S_T0, S_T1, S_T2, S_T3,
 S_KBASE, S_STG, S_PH, S_HOFF, S_FB, S_TI) = range(28, 48)
S_ST = 48
P_Q, P_K, P_V, P_O = 64, 66, 68, 70
S_TASK = 80
S_BAD = 84
S_T4, S_W, S_MSK, S_NKB, S_NNR, S_NQB = 86, 87, 88, 89, 90, 91
S_HT = 93

def v(i, n=1): return "v%d" % i if n == 1 else "v[%d:%d]" % (i, i + n - 1)
def a(i, n=1): return "a%d" % i if n == 1 else "a[%d:%d]" % (i, i + n - 1)
def s(i, n=1): return "s%d" % i if n == 1 else "s[%d:%d]" % (i, i + n - 1)

def qk_mfma(buf, st, cinit, kf=A_KF):
    c = cinit if st == 0 else v(buf, 16)
    return "v_mfma_f32_32x32x16_bf16 %s, %s, %s, %s" % (v(buf, 16), a(kf + 4 * st, 4), v(Q + 4 * st, 4), c)
def pv_mfma(buf, i):
    t, db = i >> 2, i & 3
    return "v_mfma_f32_32x32x16_bf16 %s, %s, %s, %s" % (v(O + 16 * db, 16), a(A_VF + 4 * i, 4), v(buf + 8 * t, 4), v(O + 16 * db, 16))
def k_read(st, base, areg=V_KA0, dst=None):
    return "ds_read_b128 %s, %s offset:%d" % (dst or a(A_KF + 4 * st, 4), v(areg + (st & 1)), base + 64 * (st >> 1))
def v_read(i, j, base, areg=V_VA):
    t, db = i >> 2, i & 3
    return "ds_read_b64_tr_b16 %s, %s offset:%d" % (a(A_VF + 4 * i + 2 * j, 2), v(areg), base + (2 * t + j) * 256 + 64 * db)

SM0 = 10
def softmax_ops(buf):
    ops = []
    for e in range(16):
        ops.append((SM0 + e, 0, "v_exp_f32 %s, %s" % (v(buf + e), v(buf + e))))
        l = V_L0 + (e & 1)
        ops.append((SM0 + 1 + e, 1, "v_add_f32 %s, %s, %s" % (v(l), v(l), v(buf + e))))
        if e & 1:
            g, k = e >> 3, (e & 7) >> 1
            ops.append((SM0 + 1 + e, 2, "v_cvt_pk_bf16_f32 %s, %s, %s" % (v(buf + 8 * g + k), v(buf + e - 1), v(buf + e))))
    ops.sort(key=lambda x: (x[0], x[1]))
    return [(o[0], o[2]) for o in ops]

def dma(vo, srd, so, mod=""):
    return "buffer_load_dwordx4 %s, %s, %s offen %slds" % (v(vo), s(srd, 4), s(so), mod)
def m0(off, base=None):
    return "s_add_u32 m0, %s, %d" % (s(S_WBASE if base is None else base), off)
def sadd(d, x, imm): return "s_add_u32 %s, %s, %d" % (s(d), s(x), imm)
def smov(d, x): return "s_mov_b32 %s, %s" % (s(d), s(x))
def smov2(d, x): return "s_mov_b64 %s, %s" % (s(d, 2), s(x, 2))
def stream_groups(slot):
    b = slot * SZ
    return [[m0(b, S_WBK)], [dma(V_KVO, SRD_K, S_KOFF)], [m0(b + 4352, S_WBK)], [dma(V_KVO2, SRD_K, S_KOFF)],
            [m0(b + HALF)], [dma(V_VVO, SRD_V, S_VOFF)], [m0(b + HALF + 4352)], [dma(V_VVO2, SRD_V, S_VOFF)],
            [sadd(S_KOFF, S_KOFF, BLK)], [sadd(S_VOFF, S_VOFF, BLK)]]
def stream_flat(slot):
    out = []
    for g in stream_groups(slot):
        out += g
        if " m0," in g[0]: out.append("s_nop 0")
    return out
def kblock_flat(ldsoff):
    return [m0(ldsoff), "s_nop 0", dma(V_KVO, SRD_K, S_KOFF), m0(ldsoff + 4352), "s_nop 0", dma(V_KVO2, SRD_K, S_KOFF), sadd(S_KOFF, S_KOFF, BLK)]

def iteration(A, u):
    nxt, cur = S_BUF[u & 1], S_BUF[1 - (u & 1)]
    fill = [[] for _ in range(16)]
    pre = [[] for _ in range(16)]
    for sl, op in softmax_ops(cur):
        if sl >= 16: fill[sl - 16].append(op)
    for sl, op in softmax_ops(nxt):
        if sl < 16: fill[sl].append(op)
    for i in range(8):
        fill[i].insert(0, v_read(i, 0, u * SZ))
        fill[i].insert(2, v_read(i, 1, u * SZ))
    for i in range(8):
        sl = [8, 8, 9, 9, 10, 11, 12, 13][i]
        fill[sl].insert(0 if (i & 1) == 0 else min(2, len(fill[sl])), k_read(i, u * SZ))
    sg = stream_groups((u + 3) % 4)
    pos = [int(x) for x in optv("dmapos", "8,9,9,10,10,11,11,12,13,14").split(",")]
    for g, p in zip(sg, pos):
        fill[p] += g
    fill[14].append("s_sub_u32 %s, %s, 1" % (s(S_CNT), s(S_CNT)))
    fill[15].insert(0, "s_cmp_le_u32 %s, %s" % (s(S_CNT), s(S_HT)))
    pre[8].append("s_waitcnt lgkmcnt(4)")
    pre[14].append("s_waitcnt lgkmcnt(8)")
    for i in range(16):
        A.ext(pre[i])
        A(qk_mfma(nxt, i, v(CI, 16)) if i < 8 else pv_mfma(cur, i - 8))
        A.ext(fill[i])

def mask_hook(A):
    prs = ["vcc", s(S_T0, 2), s(S_T2, 2)]
    seq = []
    for r in range(16):
        kc = 8 * (r >> 2) + (r & 3)
        seq.append(("v_cmp_lt_i32 %s, %d, %s" % (prs[r % 3], kc, v(V_THR)),
                    "v_cndmask_b32 %s, %s, %s, %s" % (v(CI + r), v(V_NINF), v(CI + r), prs[r % 3])))
    for r in range(16 + 2):
        if r < 16: A(seq[r][0])
        else: A("s_nop 0")
        if r >= 2: A(seq[r - 2][1])
    A("s_nop 1")

def rowmax(b, first):
    o = []
    if first:
        o.append("v_max3_f32 %s, %s, %s, %s" % (v(V_T0), v(b), v(b + 1), v(b + 2)))
        o.append("v_max3_f32 %s, %s, %s, %s" % (v(V_T1), v(b + 3), v(b + 4), v(b + 5)))
        o.append("v_max3_f32 %s, %s, %s, %s" % (v(V_T2), v(b + 6), v(b + 7), v(b + 8)))
        o.append("v_max3_f32 %s, %s, %s, %s" % (v(V_T0), v(V_T0), v(b + 9), v(b + 10)))
        o.append("v_max3_f32 %s, %s, %s, %s" % (v(V_T1), v(V_T1), v(b + 11), v(b + 12)))
        o.append("v_max3_f32 %s, %s, %s, %s" % (v(V_T2), v(V_T2), v(b + 13), v(b + 14)))
        o.append("v_max_f32 %s, %s, %s" % (v(V_T0), v(V_T0), v(b + 15)))
        o.append("v_max3_f32 %s, %s, %s, %s" % (v(V_T0), v(V_T0), v(V_T1), v(V_T2)))
    else:
        for i in range(0, 16, 2):
            o.append("v_max3_f32 %s, %s, %s, %s" % (v(V_T0), v(V_T0), v(b + i), v(b + i + 1)))
    return o
def crossmax():
    return ["v_mov_b32 %s, %s" % (v(V_T1), v(V_T0)), "s_nop 1",
            "v_permlane32_swap_b32 %s, %s" % (v(V_T0), v(V_T1)),
            "v_max_f32 %s, %s, %s" % (v(V_T0), v(V_T0), v(V_T1))]

nst = [0]
def stamp(A, idx, first_only=False):
    if STAMPS:
        if first_only:
            nst[0] += 1
            A("s_cmp_eq_u32 %s, 0" % s(S_TI))
            A("s_cbranch_scc0 L_st%d" % nst[0])
        A("s_memtime %s" % s(S_ST + 2 * idx, 2))
        if first_only:
            A.label("L_st%d" % nst[0])
def fs(A, idx, task=0):
    if FINE:
        nst[0] += 1
        A("s_cmp_eq_u32 %s, %d" % (s(S_TI), task))
        A("s_cbranch_scc0 L_st%d" % nst[0])
        A("s_memtime s[94:95]")
        A("s_waitcnt lgkmcnt(0)")
        A("v_accvgpr_write_b32 a%d, s94" % (A_ST + idx))
        A.label("L_st%d" % nst[0])

TL = opt("tl")
def tl_pre(A):
    if TL: A("s_memtime s[94:95]")
def tl_post(A):
    if TL:
        A("s_mov_b32 m0, s92")
        A("s_nop 0")
        A("v_writelane_b32 v174, s94, m0")
        A("s_add_u32 s92, s92, 1")
def tl(A):
    if TL:
        tl_pre(A); A("s_waitcnt lgkmcnt(0)"); tl_post(A)
def decode(word):
    return ["s_and_b32 %s, %s, 0x1fff" % (s(S_T0), s(word)),
            "s_bfe_u32 %s, %s, 0xa000d" % (s(S_T1), s(word)),
            "s_add_u32 %s, %s, %s" % (s(S_T1), s(S_T0), s(S_T1)),
            "s_lshl_b32 %s, %s, 12" % (s(S_NNR), s(S_T1)),
            "s_bfe_u32 %s, %s, 0x1001a" % (s(S_T1), s(word)),
            "s_lshl_b32 %s, %s, 8" % (s(S_T1), s(S_T1)),
            "s_add_u32 %s, %s, %s" % (s(S_T1), s(S_T1), s(S_HOFF)),
            "s_lshl_b32 %s, %s, 12" % (s(S_NKB), s(S_T0)),
            "s_add_u32 %s, %s, %s" % (s(S_NKB), s(S_NKB), s(S_T1)),
            "s_bfe_u32 %s, %s, 0x30017" % (s(S_T1), s(word)),
            "s_lshl_b32 %s, %s, 19" % (s(S_NQB), s(S_T1)),
            "s_add_u32 %s, %s, %s" % (s(S_NQB), s(S_NQB), s(S_NKB))]
def priv_area(e_reg):
    return ["s_lshr_b32 %s, %s, 1" % (s(S_T0), s(S_W)),
            "s_add_u32 %s, %s, %s" % (s(S_T0), s(S_T0), s(e_reg)),
            "s_and_b32 %s, %s, 3" % (s(S_T0), s(S_T0)),
            "s_lshl_b32 %s, %s, 1" % (s(S_T0), s(S_T0)),
            "s_cmp_eq_u32 %s, 3" % s(S_W),
            "s_addc_u32 %s, %s, 0" % (s(S_T0), s(S_T0)),
            "s_cmp_eq_u32 %s, 0" % s(S_W),
            "s_cselect_b32 %s, 8, %s" % (s(S_T0), s(S_T0)),
            "s_mul_i32 %s, %s, %d" % (s(S_STG), s(S_T0), HALF),
            "v_add_u32 %s, %s, %s" % (v(V_EW), s(S_STG), v(V_OW)),
            "v_add_u32 %s, %s, %s" % (v(V_ER), s(S_STG), v(V_OR)),
            "v_add_u32 %s, %s, %s" % (v(V_QA0), s(S_STG), v(V_KA0)),
            "v_add_u32 %s, %s, %s" % (v(V_QA1), s(S_STG), v(V_KA1))]
def hook(cnt, u):
    if cnt == 4:
        return decode(S_TASK + 1) + [smov2(SRD_K, P_Q), smov(SRD_K + 2, S_NNR), smov(S_KOFF, S_NQB),
                                     sadd(S_WBK, S_WBASE, SPARE - ((u + 3) % 4) * SZ)]
    if cnt == 3:
        return [smov(S_WBK, S_WBASE)]
    if cnt == 2:
        return [smov2(SRD_V, P_Q), smov(SRD_V + 2, S_NNR), sadd(S_VOFF, S_NQB, 3 * BLK),
                "v_mov_b32 %s, %s" % (v(V_VVO), v(V_KVO)), "v_mov_b32 %s, %s" % (v(V_VVO2), v(V_KVO2))]
    if cnt == 1:
        return [smov2(SRD_K, P_K), sadd(S_KOFF, S_NKB, BLK), smov2(SRD_V, P_K), smov(S_VOFF, S_NKB)]
    if cnt == 0:
        return [smov2(SRD_V, P_V), smov(S_VOFF, S_NKB),
                "v_mov_b32 %s, %s" % (v(V_VVO), v(V_VVC)), "v_add_u32 %s, %d, %s" % (v(V_VVO2), 4 * 4096, v(V_VVC))]

A = Asm()
A.label(NAME)
A("s_cmp_ge_u32 s2, %d" % GRID)
A("s_cbranch_scc1 L_end")
if STAMPS:
    A("s_memrealtime %s" % s(S_ST + 12, 2))
stamp(A, 0)
A("s_load_dwordx4 s[64:67], s[0:1], 0")
A("s_load_dwordx2 s[68:69], s[0:1], 16")
A("s_load_dwordx2 s[70:71], s[0:1], 32")
if STAMPS: A("s_load_dwordx2 s[72:73], s[0:1], 48")
A("s_getpc_b64 s[74:75]")
A.label("L_pc")
A("s_lshr_b32 s76, s2, 3")
A("s_lshl_b32 s76, s76, 4")
A("s_add_u32 s74, s74, L_table-L_pc")
A("s_addc_u32 s75, s75, 0")
A("s_load_dwordx4 %s, s[74:75], s76" % s(S_TASK, 4))
A("v_lshrrev_b32 %s, 6, v0" % v(V_T0))
A("v_and_b32 v0, 63, v0")
A("v_readfirstlane_b32 %s, %s" % (s(S_W), v(V_T0)))
if opt("warm"):
    A("s_getpc_b64 s[78:79]")
    A("v_lshlrev_b32 v175, 7, v0")
    A("s_lshl_b32 %s, %s, 13" % (s(S_T0), s(S_W)))
    A("s_cmp_ge_u32 %s, 2" % s(S_W))
    A("s_cbranch_scc1 L_nowarm")
    A("v_add_u32 v175, %s, v175" % s(S_T0))
    A("global_load_dword v175, v175, s[78:79]")
    A.label("L_nowarm")
A("v_lshrrev_b32 %s, 4, v0" % v(V_T2))
A("v_and_b32 %s, 15, v0" % v(V_T3))
A("v_xor_b32 %s, %s, %s" % (v(V_T0), v(V_T3), v(V_T2)))
A("s_lshl_b32 %s, %s, 2" % (s(S_T0), s(S_W)))
A("v_add_u32 %s, %s, %s" % (v(V_T1), s(S_T0), v(V_T2)))
A("v_lshlrev_b32 %s, 12, %s" % (v(V_T1), v(V_T1)))
A("v_lshl_add_u32 %s, %s, 4, %s" % (v(V_KVO), v(V_T0), v(V_T1)))
A("v_add_u32 %s, %d, %s" % (v(V_KVO2), 16 * 4096, v(V_KVO)))
A("v_lshl_add_u32 %s, %s, 3, %s" % (v(V_T1), v(V_T2), s(S_W)))
A("v_lshlrev_b32 %s, 12, %s" % (v(V_T1), v(V_T1)))
A("v_lshl_add_u32 %s, %s, 4, %s" % (v(V_VVO), v(V_T3), v(V_T1)))
A("v_add_u32 %s, %d, %s" % (v(V_VVO2), 4 * 4096, v(V_VVO)))
A("v_mov_b32 %s, %s" % (v(V_VVC), v(V_VVO)))
A("v_mul_u32_u24 %s, 272, %s" % (v(V_T0), v(V_T2)))
A("v_lshl_add_u32 %s, %s, 4, %s" % (v(V_OR), v(V_T3), v(V_T0)))
A("v_lshlrev_b32 %s, 12, %s" % (v(V_T0), v(V_T2)))
A("v_lshl_add_u32 %s, %s, 4, %s" % (v(V_SO), v(V_T3), v(V_T0)))
A("v_and_b32 %s, 31, v0" % v(V_T0))
A("v_lshrrev_b32 %s, 5, v0" % v(V_T1))
A("v_lshrrev_b32 %s, 2, %s" % (v(V_T2), v(V_T0)))
A("v_mul_u32_u24 %s, 1088, %s" % (v(V_T2), v(V_T2)))
A("v_and_b32 %s, 3, v0" % v(V_T3))
A("v_lshl_add_u32 %s, %s, 8, %s" % (v(V_T2), v(V_T3), v(V_T2)))
A("v_xor_b32 %s, %s, %s" % (v(V_T3), v(V_T3), v(V_T1)))
A("v_lshl_add_u32 %s, %s, 4, %s" % (v(V_KA0), v(V_T3), v(V_T2)))
A("v_xor_b32 %s, 32, %s" % (v(V_KA1), v(V_KA0)))
A("v_bfe_u32 %s, v0, 2, 2" % v(V_T2))
A("v_lshl_add_u32 %s, %s, 2, %s" % (v(V_T2), v(V_T1), v(V_T2)))
A("v_mul_u32_u24 %s, 1088, %s" % (v(V_T2), v(V_T2)))
A("v_bfe_u32 %s, v0, 4, 1" % v(V_T3))
A("v_lshl_add_u32 %s, %s, 5, %s" % (v(V_T2), v(V_T3), v(V_T2)))
A("v_and_b32 %s, 3, v0" % v(V_T3))
A("v_lshl_add_u32 %s, %s, 3, %s" % (v(V_T2), v(V_T3), v(V_T2)))
A("v_add_u32 %s, %d, %s" % (v(V_VA), HALF, v(V_T2)))
A("v_mul_u32_u24 %s, 272, %s" % (v(V_T2), v(V_T0)))
A("v_lshl_add_u32 %s, %s, 3, %s" % (v(V_OW), v(V_T1), v(V_T2)))
A("v_lshlrev_b32 %s, 2, %s" % (v(V_H4), v(V_T1)))
A("v_mov_b32 %s, 0xff800000" % v(V_NINF))
c = (128 ** -0.5) * math.log2(math.e)
cbits = struct.unpack("<I", struct.pack("<f", c))[0]
A("s_mov_b32 %s, 0x%08x" % (s(S_C), cbits))
A("s_mov_b32 %s, 0xffff0000" % s(S_MSK))
A("s_mul_i32 %s, %s, 1088" % (s(S_WBASE), s(S_W)))
A(smov(S_WBK, S_WBASE))
A("s_and_b32 %s, s2, 7" % s(S_HOFF))
A("s_lshl_b32 %s, %s, 9" % (s(S_HOFF), s(S_HOFF)))
A("s_mov_b32 %s, 0" % s(S_TI))
A("s_mov_b32 %s, 0" % s(S_BAD))
if TL:
    A("s_mov_b32 s92, 0"); A("v_mov_b32 v174, 0")
A("s_mov_b32 %s, 2" % s(S_PH))
A.ext(priv_area(S_PH))
A("s_mov_b32 %s, 0" % s(S_PH))
for srd in (SRD_K, SRD_F, SRD_V, SRD_O):
    A("s_mov_b32 %s, 0x20000" % s(srd + 3))
A("s_mul_i32 %s, %s, %d" % (s(S_T4), s(S_W), 28 * 4096))
A("s_waitcnt lgkmcnt(0)")
fs(A, 0)
A.ext(decode(S_TASK))
for srd, src in ((SRD_F, P_Q), (SRD_K, P_K), (SRD_V, P_V), (SRD_O, P_O)):
    A(smov2(srd, src))
for srd in (SRD_F, SRD_K, SRD_V):
    A(smov(srd + 2, S_NNR))
if STAMPS:
    A("s_mov_b32 %s, s72" % s(SRD_W)); A("s_mov_b32 %s, s73" % s(SRD_W + 1))
    A("s_mov_b32 %s, 0x1000000" % s(SRD_W + 2)); A("s_mov_b32 %s, 0x20000" % s(SRD_W + 3))
A("s_add_u32 %s, %s, %s" % (s(S_T4), s(S_T4), s(S_NQB)))
A(smov(S_KOFF, S_NKB))
A(smov(S_VOFF, S_NKB))
def prologue_issue(win):
    seq = []
    for n in range(8):
        seq.append(m0(n * 1088, S_STG))
        seq.append(sadd(S_T4, S_T4, 16384) if n else "s_nop 0")
        seq.append(dma(V_KVO, SRD_F, S_T4))
    seq += kblock_flat(HALF) + kblock_flat(0) + stream_flat(1)
    out = []
    cnt = 0
    for l in seq:
        if l.startswith("buffer_load"):
            if win and cnt >= win:
                out.append("s_waitcnt vmcnt(%d)" % (win - 1))
            cnt += 1
        out.append(l)
    return out
A("s_cmp_ge_u32 s2, 256")
A("s_cbranch_scc1 L_gentle")
A.ext(prologue_issue(0))
A.label("L_issued")
fs(A, 2)
for i in range(64):
    A("v_mov_b32 %s, 0" % v(O + i))
A("s_waitcnt vmcnt(8)")
fs(A, 5)
for st in range(8):
    A(k_read(st, 0, V_QA0, v(Q + 4 * st, 4)))
A("s_branch L_task0")

A.label("L_task")
for i in range(32):
    A("v_accvgpr_read_b32 %s, %s" % (v(Q + i), a(A_KF + i)))
A.label("L_task0")
A(smov(S_KBASE, S_NKB))
A(smov(SRD_O + 2, S_NNR))
A("s_lshl_b32 %s, %s, 17" % (s(S_QOFF), s(S_W)))
A("s_add_u32 %s, %s, %s" % (s(S_QOFF), s(S_QOFF), s(S_NQB)))
A("s_bfe_u32 %s, %s, 0xa000d" % (s(S_L), s(S_TASK)))
A(sadd(S_N, S_L, 31))
A("s_lshr_b32 %s, %s, 5" % (s(S_N), s(S_N)))
A("s_sub_u32 %s, %s, 1" % (s(S_CNT), s(S_N)))
A("s_lshl_b32 %s, %s, 5" % (s(S_T1), s(S_CNT)))
A("s_sub_u32 %s, %s, %s" % (s(S_NV), s(S_L), s(S_T1)))
A("v_sub_u32 %s, %s, %s" % (v(V_THR), s(S_NV), v(V_H4)))
A("s_mov_b32 %s, 0" % s(S_FB))
A("s_cmp_eq_u32 %s, 0" % s(S_TASK + 1))
A("s_cselect_b32 %s, 1, 4" % s(S_HT))
A("s_cselect_b32 %s, %s, %s" % (s(S_NKB), s(S_NNR), s(S_NKB)))
A("v_mov_b32 %s, 0" % v(V_L0))
A("v_mov_b32 %s, 0" % v(V_L1))
A("s_add_u32 %s, %s, %s" % (s(S_T2), s(S_PH), s(S_N)))
A("s_waitcnt lgkmcnt(0)")
A.ext(priv_area(S_T2))
A("s_cmp_ge_u32 %s, %s" % (s(S_QOFF), s(SRD_O + 2)))
A("s_cbranch_scc1 L_idle")
def prescale(r0, r1):
    out = []
    n = r1 - r0
    for i in range(n + 2):
        if i < n:
            t = V_TP + 2 * (i % 3)
            out.append("v_lshlrev_b32 %s, 16, %s" % (v(t), v(r0 + i)))
            out.append("v_and_b32 %s, %s, %s" % (v(t + 1), s(S_MSK), v(r0 + i)))
        if 1 <= i < n + 1:
            t = V_TP + 2 * ((i - 1) % 3)
            out.append("v_mul_f32 %s, %s, %s" % (v(t), s(S_C), v(t)))
            out.append("v_mul_f32 %s, %s, %s" % (v(t + 1), s(S_C), v(t + 1)))
        if i >= 2:
            t = V_TP + 2 * ((i - 2) % 3)
            out.append("v_cvt_pk_bf16_f32 %s, %s, %s" % (v(r0 + i - 2), v(t), v(t + 1)))
    return out
A.ext(prescale(Q, Q + 32))
fs(A, 3); fs(A, 14, 1)
A("s_waitcnt vmcnt(12)")
A("s_cmp_eq_u32 %s, 0" % s(S_BAD))
A("s_cbranch_scc0 L_w12")
A("s_waitcnt vmcnt(4)")
A.label("L_w12")
fs(A, 7)
A("s_barrier")
tl(A)
stamp(A, 1, True)
def setprio_loop(A):
    nst[0] += 1
    A("s_setprio 1")
    A("s_bitcmp1_b32 %s, 27" % s(S_TASK))
    A("s_cbranch_scc0 L_pr%d" % nst[0])
    A("s_setprio 2")
    A.label("L_pr%d" % nst[0])
def setprio_tr(A):
    nst[0] += 1
    A("s_bitcmp1_b32 %s, 28" % s(S_TASK))
    A("s_cbranch_scc1 L_pr%d" % nst[0])
    A("s_setprio 0")
    A.label("L_pr%d" % nst[0])
if opt("prioP"): setprio_loop(A)
for ph in (1, 2, 3):
    A("s_cmp_eq_u32 %s, %d" % (s(S_PH), ph))
    A("s_cbranch_scc1 L_p%d" % ph)
def pphase(A, ph):
    b = S_BUF[ph & 1]
    for st in range(8): A(k_read(st, ph * SZ + HALF))
    A.ext(stream_flat((ph + 2) % 4))
    A("s_waitcnt lgkmcnt(0)")
    sg = stream_groups((ph + 3) % 4)
    for st in range(8):
        A(qk_mfma(b, st, "0"))
        A.ext(sg[st])
    A.ext(sg[8] + sg[9])
    for st in range(8): A(k_read(st, ph * SZ))
    A("s_nop 1")
    fs(A, 6)
    A.ext(rowmax(b, True))
    A.ext(crossmax())
    A("v_sub_f32 %s, 0, %s" % (v(CI), v(V_T0)))
    for i in range(16):
        A("v_sub_f32 %s, %s, %s" % (v(b + i), v(b + i), v(V_T0)))
        if i: A("v_mov_b32 %s, %s" % (v(CI + i), v(CI)))
    for sl, op in softmax_ops(b):
        if sl < 16: A(op)
    if not opt("prioP"): setprio_loop(A)
    fs(A, 8); fs(A, 15, 1)
pphase(A, 0)
for u in (1, 2, 3, 0):
    A.label("L_it%d" % u)
    tl_pre(A)
    A("s_waitcnt vmcnt(8) lgkmcnt(0)")
    tl_post(A)
    A("s_barrier")
    iteration(A, u)
    if u != 0:
        A("s_cbranch_scc1 L_sp%d" % ((u + 1) % 4))
    else:
        A("s_cbranch_scc0 L_it1")

def norm_block(db):
    out = []
    base = O + 16 * db
    for j in range(4 + 1):
        if j < 4:
            r = base + 4 * j
            out += ["v_mul_f32 %s, %s, %s" % (v(r + i), v(V_L0), v(r + i)) for i in range(4)]
        if j >= 1:
            r = base + 4 * (j - 1)
            out.append("v_cvt_pk_bf16_f32 %s, %s, %s" % (v(r), v(r), v(r + 1)))
            out.append("v_cvt_pk_bf16_f32 %s, %s, %s" % (v(r + 1), v(r + 2), v(r + 3)))
        if j >= 2:
            r = base + 4 * (j - 2)
            out.append("ds_write_b64 %s, %s offset:%d" % (v(V_EW), v(r, 2), 16 * (4 * db + j - 2)))
            out.append("v_pk_maximum3_f16 %s, %s, %s, %s" % (v(V_T0), v(V_T0), v(r), v(r + 1)))
    r = base + 12
    out.append("ds_write_b64 %s, %s offset:%d" % (v(V_EW), v(r, 2), 16 * (4 * db + 3)))
    out.append("v_pk_maximum3_f16 %s, %s, %s, %s" % (v(V_T0), v(V_T0), v(r), v(r + 1)))
    return out
def lfinal():
    return ["v_add_f32 %s, %s, %s" % (v(V_L0), v(V_L0), v(V_L1)),
            "v_mov_b32 %s, 0" % v(V_T0),
            "v_mov_b32 %s, %s" % (v(V_L1), v(V_L0)),
            "s_nop 1",
            "v_permlane32_swap_b32 %s, %s" % (v(V_L0), v(V_L1)),
            "v_add_f32 %s, %s, %s" % (v(V_L0), v(V_L0), v(V_L1)),
            "v_cmp_ngt_f32 vcc, 0x71800000, %s" % v(V_L0),
            "v_rcp_f32 %s, %s" % (v(V_L0), v(V_L0)),
            "s_nop 0",
            "s_mov_b64 %s, vcc" % s(S_BAD, 2)]
def qnext_reads():
    return [k_read(st, 0, V_QA0) for st in range(8)]
for u in (1, 2, 3, 0):
    A.label("L_sp%d" % u)
    A("s_cmp_lg_u32 %s, 0" % s(S_CNT))
    A("s_cbranch_scc1 L_hk%d" % u)
    stamp(A, 2, True)
    cur = S_BUF[1 - (u & 1)]
    A.ext(hook(0, u))
    A("s_mov_b32 %s, %d" % (s(S_PH), (u + 2) % 4))
    if not opt("prioE"): setprio_tr(A)
    tl_pre(A)
    A("s_waitcnt vmcnt(4) lgkmcnt(0)")
    tl_post(A)
    fs(A, 9)
    A("s_barrier")
    fs(A, 10)
    order = [0, 4, 1, 5, 2, 6, 3, 7]
    rd = []
    for i in order:
        rd += [v_read(i, 0, u * SZ), v_read(i, 1, u * SZ)]
    sm = [op for sl, op in softmax_ops(cur) if sl >= 16]
    while rd or sm:
        if rd: A(rd.pop(0))
        if sm: A(sm.pop(0))
        if sm: A(sm.pop(0))
    A("s_waitcnt lgkmcnt(8)")
    qn = qnext_reads()
    sg = stream_groups((u + 3) % 4)
    A(pv_mfma(cur, 0)); A.ext(qn[:4]); A.ext(sg[0]); A(pv_mfma(cur, 4)); A.ext(qn[4:]); A.ext(sg[1] + sg[2])
    lf = lfinal()
    A.ext(lf[:5])
    A(pv_mfma(cur, 1))
    A.ext(sg[3] + sg[4])
    A.ext(lf[5:])
    A(pv_mfma(cur, 5))
    A.ext(sg[5] + sg[6])
    A("s_waitcnt lgkmcnt(0)")
    A.ext(sg[7] + sg[8] + sg[9])
    nb = norm_block(0)
    A.ext(nb[:8]); A(pv_mfma(cur, 2)); A.ext(nb[8:16]); A(pv_mfma(cur, 6)); A.ext(nb[16:24]); A(pv_mfma(cur, 3)); A.ext(nb[24:]); A(pv_mfma(cur, 7))
    if u != 0:
        A("s_branch L_epi")
A.label("L_epi")
if opt("prioE"): setprio_tr(A)
fs(A, 11)
for db in range(1, 4):
    A.ext(norm_block(db))
fs(A, 12)
A("v_and_b32 %s, 0x7c00, %s" % (v(V_T1), v(V_T0)))
A("v_and_b32 %s, 0x7c000000, %s" % (v(V_T2), v(V_T0)))
A("v_cmp_eq_u32 vcc, 0x7c00, %s" % v(V_T1))
A("s_waitcnt lgkmcnt(0)")
A("s_or_b64 %s, %s, vcc" % (s(S_BAD, 2), s(S_BAD, 2)))
A("v_cmp_eq_u32 vcc, 0x7c000000, %s" % v(V_T2))
for k in range(8):
    A("ds_read_b128 %s, %s offset:%d" % (v(16 + 4 * k, 4), v(V_ER), 4 * 272 * k))
A("s_or_b64 %s, %s, vcc" % (s(S_BAD, 2), s(S_BAD, 2)))
A("s_cbranch_scc1 L_bad")
A.label("L_store")
fs(A, 13)
A("s_mov_b32 %s, %s" % (s(S_T0), s(S_QOFF)))
A("s_cmp_eq_u32 %s, 0" % s(S_TASK + 1))
A("s_cbranch_scc1 L_laststore")
for k in range(8):
    for i in range(8): A("v_mov_b32 %s, 0" % v(O + 8 * k + i))
    A("s_waitcnt lgkmcnt(%d)" % (7 - k))
    A("buffer_store_dwordx4 %s, %s, %s, %s offen%s" % (v(16 + 4 * k, 4), v(V_SO), s(SRD_O, 4), s(S_T0), " " + optv("stmod", "").replace("+", " ")))
    if k < 7: A(sadd(S_T0, S_T0, 16384))
stamp(A, 3, True)
A("s_mov_b32 %s, 1" % s(S_BAD))
A.label("L_next")
A(smov(S_TASK, S_TASK + 1))
A(smov(S_TASK + 1, S_TASK + 2))
A(smov(S_TASK + 2, S_TASK + 3))
A("s_mov_b32 %s, 0" % s(S_TASK + 3))
A(sadd(S_TI, S_TI, 1))
A("s_branch L_task")
A.label("L_laststore")
for k in range(8):
    A("s_waitcnt lgkmcnt(%d)" % (7 - k))
    A("buffer_store_dwordx4 %s, %s, %s, %s offen%s" % (v(16 + 4 * k, 4), v(V_SO), s(SRD_O, 4), s(S_T0), " " + optv("stmod", "").replace("+", " ")))
    if k < 7: A(sadd(S_T0, S_T0, 16384))
stamp(A, 3, True)
A.label("L_fin")
if STAMPS:
    A("s_waitcnt vmcnt(0)")
    stamp(A, 4)
    A("s_memrealtime %s" % s(S_ST + 14, 2))
    A("s_getreg_b32 %s, hwreg(HW_REG_XCC_ID)" % s(S_ST + 10))
    A("s_getreg_b32 %s, hwreg(HW_REG_HW_ID)" % s(S_ST + 11))
    A("s_waitcnt lgkmcnt(0)")
    A("s_cmp_eq_u32 %s, 0" % s(S_W))
    A("s_cbranch_scc0 L_end")
    for i in range(16):
        A("v_mov_b32 %s, %s" % (v(16 + i), s(S_ST + i)))
    for i in range(16):
        A("v_accvgpr_read_b32 v%d, a%d" % (32 + i, A_ST + i))
    if TL:
        A("s_lshl_b32 %s, s2, 8" % s(S_T0))
        A("s_add_u32 %s, %s, 0x100000" % (s(S_T0), s(S_T0)))
        A("v_mbcnt_lo_u32_b32 v48, -1, 0")
        A("v_mbcnt_hi_u32_b32 v48, -1, v48")
        A("v_lshlrev_b32 v48, 2, v48")
        A("buffer_store_dword v174, v48, %s, %s offen" % (s(SRD_W, 4), s(S_T0)))
    A("s_lshl_b32 %s, s2, 7" % s(S_T0))
    A("v_mov_b32 v48, 0")
    A("s_mov_b64 exec, 1")
    for i in range(8):
        A("buffer_store_dwordx4 %s, v48, %s, %s offen offset:%d" % (v(16 + 4 * i, 4), s(SRD_W, 4), s(S_T0), 16 * i))
A("s_endpgm")
A.label("L_gentle")
A.ext(prologue_issue(WIN))
A("s_branch L_issued")
for ph in (1, 2, 3):
    A.label("L_p%d" % ph)
    pphase(A, ph)
    A("s_branch L_it%d" % ((ph + 1) % 4))
def hooks(A, u, tag, ret, domask):
    A.label("L_hk%s%d" % (tag, u))
    for cnt in (4, 3, 2):
        A("s_cmp_eq_u32 %s, %d" % (s(S_CNT), cnt))
        A("s_cbranch_scc1 L_hk%s%d_%d" % (tag, u, cnt))
    A.ext(hook(1, u))
    if domask: mask_hook(A)
    A("s_branch %s" % ret)
    for cnt in (4, 3, 2):
        A.label("L_hk%s%d_%d" % (tag, u, cnt))
        A.ext(hook(cnt, u))
        A("s_branch %s" % ret)
for u in range(4):
    hooks(A, u, "", "L_it%d" % u, True)
A.label("L_idle")
A("s_waitcnt vmcnt(4)")
A("s_barrier")
for ph in (0, 1, 2, 3):
    if ph < 3:
        A("s_cmp_eq_u32 %s, %d" % (s(S_PH), ph))
        A("s_cbranch_scc0 L_ip%d" % (ph + 1))
    A.ext(stream_flat((ph + 2) % 4))
    A.ext(stream_flat((ph + 3) % 4))
    A("s_branch L_ii%d" % ((ph + 1) % 4))
    if ph < 3: A.label("L_ip%d" % (ph + 1))
for u in (0, 1, 2, 3):
    A.label("L_ii%d" % u)
    A("s_waitcnt vmcnt(8)")
    A("s_barrier")
    A.ext(stream_flat((u + 3) % 4))
    A("s_sub_u32 %s, %s, 1" % (s(S_CNT), s(S_CNT)))
    A("s_cmp_le_u32 %s, %s" % (s(S_CNT), s(S_HT)))
    A("s_cbranch_scc1 L_isp%d" % ((u + 1) % 4))
A("s_branch L_ii0")
for u in range(4):
    A.label("L_isp%d" % u)
    A("s_cmp_lg_u32 %s, 0" % s(S_CNT))
    A("s_cbranch_scc1 L_hki%d" % u)
    A.ext(hook(0, u))
    A("s_mov_b32 %s, %d" % (s(S_PH), (u + 2) % 4))
    A("s_waitcnt vmcnt(4)")
    A("s_barrier")
    A("s_cmp_eq_u32 %s, 0" % s(S_TASK + 1))
    A("s_cbranch_scc1 L_end")
    A.ext(qnext_reads())
    A.ext(stream_flat((u + 3) % 4))
    A("s_mov_b32 %s, 0" % s(S_BAD))
    A("s_waitcnt lgkmcnt(0)")
    A("s_branch L_next")
    hooks(A, u, "i", "L_ii%d" % u, False)

A.label("L_bad")
A("s_waitcnt lgkmcnt(0)")
A("s_cmp_eq_u32 %s, 0" % s(S_FB))
A("s_cbranch_scc0 L_store")
A("s_mov_b32 %s, 1" % s(S_FB))
FV, FKO, FVO = 34, 35, 36
S_FOFF, S_FCNT = S_L, S_CNT
A("s_sub_u32 %s, %s, %d" % (s(S_T0), s(S_STG), HALF))
A("v_add_u32 %s, %s, %s" % (v(FV), s(S_T0), v(V_VA)))
A("s_lshl_b32 %s, %s, 14" % (s(S_T0), s(S_W)))
A("v_subrev_u32 %s, %s, %s" % (v(FKO), s(S_T0), v(V_KVO)))
A("s_lshl_b32 %s, %s, 12" % (s(S_T0), s(S_W)))
A("v_subrev_u32 %s, %s, %s" % (v(FVO), s(S_T0), v(V_VVC)))
A(smov(SRD_F + 2, SRD_O + 2))
def fb_load(A, vo, ptr, step):
    A(smov2(SRD_F, ptr))
    A(smov(S_T4, S_FOFF))
    for n in range(8):
        A(m0(n * 1088, S_STG))
        if n: A(sadd(S_T4, S_T4, step))
        else: A("s_nop 0")
        A(dma(vo, SRD_F, S_T4))
    A("s_waitcnt vmcnt(0)")
def fb_qk(A, tag):
    A("s_cmp_eq_u32 %s, 1" % s(S_FCNT))
    A("s_cbranch_scc0 L_fbnm%s" % tag)
    mask_hook(A)
    A.label("L_fbnm%s" % tag)
    fb_load(A, FKO, P_K, 16384)
    for st in range(8): A(k_read(st, 0, V_QA0, a(A_VF + 4 * st, 4)))
    A("s_waitcnt lgkmcnt(0)")
    for st in range(8): A(qk_mfma(S_BUF[0], st, v(CI, 16), A_VF))
    A("s_nop 15")
for i in range(16): A("v_mov_b32 %s, 0" % v(CI + i))
A("v_mov_b32 %s, %s" % (v(V_T0), v(V_NINF)))
A(smov(S_FOFF, S_KBASE))
A(smov(S_FCNT, S_N))
A.label("L_fb1")
fb_qk(A, "1")
A.ext(rowmax(S_BUF[0], False))
A(sadd(S_FOFF, S_FOFF, BLK))
A("s_sub_u32 %s, %s, 1" % (s(S_FCNT), s(S_FCNT)))
A("s_cmp_eq_u32 %s, 0" % s(S_FCNT))
A("s_cbranch_scc0 L_fb1")
A.ext(crossmax())
for i in range(16): A("v_sub_f32 %s, 0, %s" % (v(CI + i), v(V_T0)))
for i in range(64): A("v_mov_b32 %s, 0" % v(O + i))
A("v_mov_b32 %s, 0" % v(V_L0))
A("v_mov_b32 %s, 0" % v(V_L1))
A(smov(S_FOFF, S_KBASE))
A(smov(S_FCNT, S_N))
A.label("L_fb2")
fb_qk(A, "2")
for sl, op in softmax_ops(S_BUF[0]):
    A(op)
    if "exp" in op: A("s_nop 0")
fb_load(A, FVO, P_V, 4096)
for i in range(8):
    A(v_read(i, 0, 0, FV)); A(v_read(i, 1, 0, FV))
A("s_waitcnt lgkmcnt(0)")
for i in range(8): A(pv_mfma(S_BUF[0], i))
A("s_nop 15")
A(sadd(S_FOFF, S_FOFF, BLK))
A("s_sub_u32 %s, %s, 1" % (s(S_FCNT), s(S_FCNT)))
A("s_cmp_eq_u32 %s, 0" % s(S_FCNT))
A("s_cbranch_scc0 L_fb2")
A.ext(lfinal())
A.ext(norm_block(0))
A("s_branch L_epi")
A.label("L_end")
A("s_endpgm")

errs = check_hazards(A.lines)
for e in errs: print(e, file=sys.stderr)
if errs and not opt("force"): sys.exit(1)

hdr = open("standalone__varlen_attn_packed__ragged.s.ref").read().split("\n")
hdr = [l for l in hdr[:10] if l.startswith(";") and "@launch" not in l]
out = "\n".join(hdr) + "\n; @launch grid=(%d,1,1) block=(256,1,1) lds=%d\n" % (GRID, LDS)
out += '.amdgcn_target "amdgcn-amd-amdhsa--gfx950"\n.text\n.globl %s\n.p2align 8\n.type %s,@function\n' % (NAME, NAME)
out += A.text()
out += ".p2align 6\n.type L_table,@object\nL_table:\n"
for ent in table:
    w = [t[0] | (t[1] << 13) | (t[2] << 23) | (t[3] << 26) | (t[4] << 27) for t in ent] + [0] * (4 - len(ent))
    out += ".long " + ", ".join("0x%08x" % x for x in w) + "\n"
out += """.section .rodata,"a"
.p2align 6
.amdhsa_kernel %s
  .amdhsa_next_free_vgpr 256
  .amdhsa_next_free_sgpr 96
  .amdhsa_accum_offset %d
  .amdhsa_group_segment_fixed_size 0
  .amdhsa_kernarg_size 56
  .amdhsa_user_sgpr_count 2
  .amdhsa_user_sgpr_kernarg_segment_ptr 1
  .amdhsa_system_sgpr_workgroup_id_x 1
.end_amdhsa_kernel
""" % (NAME, ACC)
sys.stdout.write(out)
```

```python
CU = [0, 534, 1426, 1714, 2675, 3469, 4036, 4628, 4845]
segs = {}
for i in range(8):
    L = CU[i + 1] - CU[i]
    n = (L + 31) // 32
    segs[n] = (CU[i], L, (L + 127) // 128)

PLAN_A = [
    ([31], [28]), ([31], [28]), ([31], [28]), ([31], [28]), ([31], [28]), ([31], [28]), ([31], [28]),
    ([31], [19, 9]),
    ([17, 17], [25]), ([17, 17], [25]), ([18, 17], [25]),
    ([18, 18], [19]), ([18, 18], [19]),
    ([25, 7], [25]), ([25, 7], [19, 9]), ([19, 9], [25]),
]
import sys
GENTLE = "--gentle" in sys.argv
def build(plan=PLAN_A):
    table = [None] * 64
    for hb in range(2):
        cnt = {n: 0 for n in segs}
        used_part = set()
        for c, (old, young) in enumerate(plan):
            for k, lst in enumerate((old, young)):
                ent = []
                for ti, n in enumerate(lst):
                    fl = 0
                    if isinstance(n, tuple):
                        n, fl = n
                    if GENTLE and (k == 1 or ti > 0): fl |= 4
                    part = n < 0
                    n = abs(n)
                    tok0, L, nt = segs[n]
                    if part:
                        assert n not in used_part
                        used_part.add(n)
                        ent.append((tok0, L, nt - 1, hb, fl))
                    else:
                        ent.append((tok0, L, cnt[n], hb, fl))
                        cnt[n] += 1
                table[2 * c + hb + 32 * k] = ent
        for n in segs:
            assert cnt[n] + (n in used_part) == segs[n][2], (n, cnt[n])
    return table
if __name__ == "__main__":
    for j, e in enumerate(build()): print(j, e)
PLAN_B = [
    ([18, 18], [19]), ([18, 18], [19]), ([17, 19], [19]),
    ([25, 7], [28]), ([25, 7], [28]),
    ([17, 17], [25]), ([17, 17], [25]), ([25, 9], [25]),
    ([9, 19], [(31, 1)]), ([31], [(31, 1)]), ([31], [(31, 1)]), ([18, 9], [(31, 1)]),
    ([31], [(28, 1)]), ([31], [(28, 1)]), ([28], [(28, 1)]), ([28], [(25, 1)]),
]

PLAN_C = [
    ([-17, -25], [-18, -19]),
    ([(17, 3), (17, 1)], [19]), ([(17, 3), (17, 1)], [19]), ([(18, 3), (18, 1)], [19]),
    ([9, 18], [(31, 1)]), ([9, 18], [(31, 1)]), ([-9, 19], [(-31, 1)]),
    ([7, 25], [25]), ([-7, 25], [25]),
    ([31], [25]), ([31], [25]),
    ([31], [(28, 1)]), ([31], [(28, 1)]), ([31], [(28, 1)]),
    ([28], [(28, 1)]), ([28], [(28, 1)]),
]
PLAN_D = [
    ([-25, -17], [-19, -18]),
    ([(18, 3), (17, 1)], [19]), ([(18, 3), (17, 1)], [19]), ([(18, 3), (17, 1)], [19]),
    ([18, 9], [(31, 1)]), ([19, -9], [(31, 1)]), ([17, 9], [(31, 1)]),
    ([25, 7], [25]), ([25, -7], [25]),
    ([31], [25]), ([31], [25]),
    ([31], [(28, 1)]), ([31], [(28, 1)]), ([-31], [(28, 1)]),
    ([28], [(28, 1)]), ([28], [(28, 1)]),
]
PLAN_T = [
    ([31], [19, 9]), ([31], [19, 9]), ([31], [19, -9]), ([31], [19, 7]), ([31], [-19, -7]),
    ([31], [25]), ([31], [25]), ([-31], [25]),
    ([28], [18, 17]), ([28], [18, 17]), ([28], [18, 17]), ([28], [18, 17]), ([28], [-18, -17]),
    ([28], [25]), ([28], [25]), ([25], [-25]),
]
PLAN_E = [
    ([-25, -17], [-19, -18]),
    ([(18, 3), (17, 1)], [19]), ([(18, 3), (17, 1)], [19]), ([(18, 3), (17, 1)], [18]),
    ([19, 9], [28]), ([19, -9], [28]), ([17, 9], [(28, 1)]),
    ([25, 7], [25]), ([25, -7], [25]),
    ([31], [(25, 1)]), ([31], [(25, 1)]),
    ([31], [(28, 1)]), ([31], [(28, 1)]), ([31], [(28, 1)]), ([31], [(28, 1)]),
    ([31], [(-31, 1)]),
]
```

```python
import sys, struct, math
from asmlib import Asm, check_hazards
import sched

def opt(x): return ("--" + x) in sys.argv
def optv(x, d):
    for a_ in sys.argv:
        if a_.startswith("--" + x + "="): return a_.split("=")[1]
    return d
STAMPS = opt("stamps")
FINE = opt("fine")
NAME = "standalone__varlen_attn_packed__ragged_kernel"
HALF = 8704
SZ = 2 * HALF
SPARE = 8 * HALF
LDS = 9 * HALF
BLK = 32 * 4096
GRID = 512
table = sched.build(getattr(sched, optv("plan", "PLAN_B")))
WIN = int(optv("win", "8"))

V_NINF = 0
V_KA0, V_KA1, V_VA, V_KVO, V_KVO2, V_VVO, V_VVO2, V_L0, V_L1, V_THR, V_H4, V_T0, V_T1, V_T2, V_T3 = range(1, 16)
S_BUF = [16, 32]
CI = 48
O = 64
Q = 128
V_OW, V_OR, V_SO, V_EW, V_ER, V_QA0, V_QA1, V_VVC = range(160, 168)
V_TP = 168
ACC = 176
A_KF = 0
A_VF = 32
A_PS = 64
V_Z = 168
SRD_F, SRD_K, SRD_V, SRD_O, SRD_W = 4, 8, 12, 16, 20
(S_KOFF, S_VOFF, S_WBASE, S_CNT, S_C, S_WBK, S_QOFF, S_NV, S_N, S_L, S_T0, S_T1, S_T2, S_T3,
 S_KBASE, S_STG, S_PH, S_HOFF, S_FB, S_TI) = range(28, 48)
S_ST = 48
P_Q, P_K, P_V, P_O = 64, 66, 68, 70
S_TASK = 80
S_BAD = 84
S_T4, S_W, S_MSK, S_NKB, S_NNR, S_NQB = 86, 87, 88, 89, 90, 91
S_HT = 93

def v(i, n=1): return "v%d" % i if n == 1 else "v[%d:%d]" % (i, i + n - 1)
def a(i, n=1): return "a%d" % i if n == 1 else "a[%d:%d]" % (i, i + n - 1)
def s(i, n=1): return "s%d" % i if n == 1 else "s[%d:%d]" % (i, i + n - 1)

def qk_mfma(buf, st, cinit, kf=A_KF):
    c = cinit if st == 0 else v(buf, 16)
    return "v_mfma_f32_32x32x16_bf16 %s, %s, %s, %s" % (v(buf, 16), a(kf + 4 * st, 4), v(Q + 4 * st, 4), c)
def pv_mfma(buf, i):
    t, db = i >> 2, i & 3
    return "v_mfma_f32_32x32x16_bf16 %s, %s, %s, %s" % (v(O + 16 * db, 16), a(A_VF + 4 * i, 4), v(buf + 8 * t, 4), v(O + 16 * db, 16))
def k_read(st, base, areg=V_KA0, dst=None):
    return "ds_read_b128 %s, %s offset:%d" % (dst or a(A_KF + 4 * st, 4), v(areg + (st & 1)), base + 64 * (st >> 1))
def v_read(i, j, base, areg=V_VA):
    t, db = i >> 2, i & 3
    return "ds_read_b64_tr_b16 %s, %s offset:%d" % (a(A_VF + 4 * i + 2 * j, 2), v(areg), base + (2 * t + j) * 256 + 64 * db)

SM0 = 10
def softmax_ops(buf):
    ops = []
    for e in range(16):
        ops.append((SM0 + e, 0, "v_exp_f32 %s, %s" % (v(buf + e), v(buf + e))))
        l = V_L0 + (e & 1)
        ops.append((SM0 + 1 + e, 1, "v_add_f32 %s, %s, %s" % (v(l), v(l), v(buf + e))))
        if e & 1:
            g, k = e >> 3, (e & 7) >> 1
            ops.append((SM0 + 1 + e, 2, "v_cvt_pk_bf16_f32 %s, %s, %s" % (v(buf + 8 * g + k), v(buf + e - 1), v(buf + e))))
    ops.sort(key=lambda x: (x[0], x[1]))
    return [(o[0], o[2]) for o in ops]

def dma(vo, srd, so, mod=""):
    return "buffer_load_dwordx4 %s, %s, %s offen %slds" % (v(vo), s(srd, 4), s(so), mod)
def m0(off, base=None):
    return "s_add_u32 m0, %s, %d" % (s(S_WBASE if base is None else base), off)
def sadd(d, x, imm): return "s_add_u32 %s, %s, %d" % (s(d), s(x), imm)
def smov(d, x): return "s_mov_b32 %s, %s" % (s(d), s(x))
def smov2(d, x): return "s_mov_b64 %s, %s" % (s(d, 2), s(x, 2))
def stream_groups(slot):
    b = slot * SZ
    return [[m0(b, S_WBK)], [dma(V_KVO, SRD_K, S_KOFF)], [m0(b + 4352, S_WBK)], [dma(V_KVO2, SRD_K, S_KOFF)],
            [m0(b + HALF)], [dma(V_VVO, SRD_V, S_VOFF)], [m0(b + HALF + 4352)], [dma(V_VVO2, SRD_V, S_VOFF)],
            [sadd(S_KOFF, S_KOFF, BLK)], [sadd(S_VOFF, S_VOFF, BLK)]]
def stream_flat(slot):
    out = []
    for g in stream_groups(slot):
        out += g
        if " m0," in g[0]: out.append("s_nop 0")
    return out
def kblock_flat(ldsoff):
    return [m0(ldsoff), "s_nop 0", dma(V_KVO, SRD_K, S_KOFF), m0(ldsoff + 4352), "s_nop 0", dma(V_KVO2, SRD_K, S_KOFF), sadd(S_KOFF, S_KOFF, BLK)]

def iteration(A, u):
    nxt, cur = S_BUF[u & 1], S_BUF[1 - (u & 1)]
    fill = [[] for _ in range(16)]
    pre = [[] for _ in range(16)]
    for sl, op in softmax_ops(cur):
        if sl >= 16: fill[sl - 16].append(op)
    for sl, op in softmax_ops(nxt):
        if sl < 16: fill[sl].append(op)
    for i in range(8):
        fill[i].insert(0, v_read(i, 0, u * SZ))
        fill[i].insert(2, v_read(i, 1, u * SZ))
    for i in range(8):
        sl = [8, 8, 9, 9, 10, 11, 12, 13][i]
        fill[sl].insert(0 if (i & 1) == 0 else min(2, len(fill[sl])), k_read(i, u * SZ))
    sg = stream_groups((u + 3) % 4)
    pos = [int(x) for x in optv("dmapos", "8,9,9,10,10,11,11,12,13,14").split(",")]
    for g, p in zip(sg, pos):
        fill[p] += g
    fill[14].append("s_sub_u32 %s, %s, 1" % (s(S_CNT), s(S_CNT)))
    fill[15].insert(0, "s_cmp_le_u32 %s, %s" % (s(S_CNT), s(S_HT)))
    pre[8].append("s_waitcnt lgkmcnt(4)")
    pre[14].append("s_waitcnt lgkmcnt(8)")
    for i in range(16):
        A.ext(pre[i])
        A(qk_mfma(nxt, i, v(CI, 16)) if i < 8 else pv_mfma(cur, i - 8))
        A.ext(fill[i])

def mask_hook(A):
    prs = ["vcc", s(S_T0, 2), s(S_T2, 2)]
    seq = []
    for r in range(16):
        kc = 8 * (r >> 2) + (r & 3)
        seq.append(("v_cmp_lt_i32 %s, %d, %s" % (prs[r % 3], kc, v(V_THR)),
                    "v_cndmask_b32 %s, %s, %s, %s" % (v(CI + r), v(V_NINF), v(CI + r), prs[r % 3])))
    for r in range(16 + 2):
        if r < 16: A(seq[r][0])
        else: A("s_nop 0")
        if r >= 2: A(seq[r - 2][1])
    A("s_nop 1")

def rowmax(b, first):
    o = []
    if first:
        o.append("v_max3_f32 %s, %s, %s, %s" % (v(V_T0), v(b), v(b + 1), v(b + 2)))
        o.append("v_max3_f32 %s, %s, %s, %s" % (v(V_T1), v(b + 3), v(b + 4), v(b + 5)))
        o.append("v_max3_f32 %s, %s, %s, %s" % (v(V_T2), v(b + 6), v(b + 7), v(b + 8)))
        o.append("v_max3_f32 %s, %s, %s, %s" % (v(V_T0), v(V_T0), v(b + 9), v(b + 10)))
        o.append("v_max3_f32 %s, %s, %s, %s" % (v(V_T1), v(V_T1), v(b + 11), v(b + 12)))
        o.append("v_max3_f32 %s, %s, %s, %s" % (v(V_T2), v(V_T2), v(b + 13), v(b + 14)))
        o.append("v_max_f32 %s, %s, %s" % (v(V_T0), v(V_T0), v(b + 15)))
        o.append("v_max3_f32 %s, %s, %s, %s" % (v(V_T0), v(V_T0), v(V_T1), v(V_T2)))
    else:
        for i in range(0, 16, 2):
            o.append("v_max3_f32 %s, %s, %s, %s" % (v(V_T0), v(V_T0), v(b + i), v(b + i + 1)))
    return o
def crossmax():
    return ["v_mov_b32 %s, %s" % (v(V_T1), v(V_T0)), "s_nop 1",
            "v_permlane32_swap_b32 %s, %s" % (v(V_T0), v(V_T1)),
            "v_max_f32 %s, %s, %s" % (v(V_T0), v(V_T0), v(V_T1))]

nst = [0]
def stamp(A, idx, first_only=False):
    if STAMPS:
        if first_only:
            nst[0] += 1
            A("s_cmp_eq_u32 %s, 0" % s(S_TI))
            A("s_cbranch_scc0 L_st%d" % nst[0])
        A("s_memtime %s" % s(S_ST + 2 * idx, 2))
        if first_only:
            A.label("L_st%d" % nst[0])
def fs(A, idx, task=0):
    if FINE:
        nst[0] += 1
        A("s_cmp_eq_u32 %s, %d" % (s(S_TI), task))
        A("s_cbranch_scc0 L_st%d" % nst[0])
        A("s_memtime s[94:95]")
        A("s_waitcnt lgkmcnt(0)")
        A("v_accvgpr_write_b32 a%d, s94" % (A_ST + idx))
        A.label("L_st%d" % nst[0])

TL = opt("tl")
def tl_pre(A):
    if TL: A("s_memrealtime s[94:95]" if opt("tlrt") else "s_memtime s[94:95]")
def tl_post(A):
    if TL:
        A("s_mov_b32 m0, s92")
        A("s_nop 0")
        A("v_writelane_b32 v174, s94, m0")
        A("s_add_u32 s92, s92, 1")
def tl(A):
    if TL:
        tl_pre(A); A("s_waitcnt lgkmcnt(0)"); tl_post(A)
def decode(word):
    return ["s_and_b32 %s, %s, 0x1fff" % (s(S_T0), s(word)),
            "s_bfe_u32 %s, %s, 0xa000d" % (s(S_T1), s(word)),
            "s_add_u32 %s, %s, %s" % (s(S_T1), s(S_T0), s(S_T1)),
            "s_lshl_b32 %s, %s, 12" % (s(S_NNR), s(S_T1)),
            "s_bfe_u32 %s, %s, 0x1001a" % (s(S_T1), s(word)),
            "s_lshl_b32 %s, %s, 8" % (s(S_T1), s(S_T1)),
            "s_add_u32 %s, %s, %s" % (s(S_T1), s(S_T1), s(S_HOFF)),
            "s_lshl_b32 %s, %s, 12" % (s(S_NKB), s(S_T0)),
            "s_add_u32 %s, %s, %s" % (s(S_NKB), s(S_NKB), s(S_T1)),
            "s_bfe_u32 %s, %s, 0x30017" % (s(S_T1), s(word)),
            "s_lshl_b32 %s, %s, 19" % (s(S_NQB), s(S_T1)),
            "s_add_u32 %s, %s, %s" % (s(S_NQB), s(S_NQB), s(S_NKB))]
def priv_area(e_reg):
    return ["s_lshr_b32 %s, %s, 1" % (s(S_T0), s(S_W)),
            "s_add_u32 %s, %s, %s" % (s(S_T0), s(S_T0), s(e_reg)),
            "s_and_b32 %s, %s, 3" % (s(S_T0), s(S_T0)),
            "s_lshl_b32 %s, %s, 1" % (s(S_T0), s(S_T0)),
            "s_cmp_eq_u32 %s, 3" % s(S_W),
            "s_addc_u32 %s, %s, 0" % (s(S_T0), s(S_T0)),
            "s_cmp_eq_u32 %s, 0" % s(S_W),
            "s_cselect_b32 %s, 8, %s" % (s(S_T0), s(S_T0)),
            "s_mul_i32 %s, %s, %d" % (s(S_STG), s(S_T0), HALF),
            "v_add_u32 %s, %s, %s" % (v(V_EW), s(S_STG), v(V_OW)),
            "v_add_u32 %s, %s, %s" % (v(V_ER), s(S_STG), v(V_OR)),
            "v_add_u32 %s, %s, %s" % (v(V_QA0), s(S_STG), v(V_KA0)),
            "v_add_u32 %s, %s, %s" % (v(V_QA1), s(S_STG), v(V_KA1))]
def hook(cnt, u):
    if cnt == 4:
        return decode(S_TASK + 1) + [smov2(SRD_K, P_Q), smov(SRD_K + 2, S_NNR), smov(S_KOFF, S_NQB),
                                     "s_add_u32 %s, %s, %s" % (s(S_WBK), s(S_WBASE), s(S_T4))]
    if cnt == 3:
        return [smov(S_WBK, S_WBASE)]
    if cnt == 2:
        return [smov2(SRD_V, P_Q), smov(SRD_V + 2, S_NNR), sadd(S_VOFF, S_NQB, 3 * BLK),
                "v_mov_b32 %s, %s" % (v(V_VVO), v(V_KVO)), "v_mov_b32 %s, %s" % (v(V_VVO2), v(V_KVO2))]
    if cnt == 1:
        return [smov2(SRD_K, P_K), sadd(S_KOFF, S_NKB, BLK), smov2(SRD_V, P_K), smov(S_VOFF, S_NKB)]
    if cnt == 0:
        return [smov2(SRD_V, P_V), smov(S_VOFF, S_NKB),
                "v_mov_b32 %s, %s" % (v(V_VVO), v(V_VVC)), "v_add_u32 %s, %d, %s" % (v(V_VVO2), 4 * 4096, v(V_VVC))]

A = Asm()
A.label(NAME)
A("s_cmp_ge_u32 s2, %d" % GRID)
A("s_cbranch_scc1 L_end")
if STAMPS:
    A("s_memrealtime %s" % s(S_ST + 12, 2))
stamp(A, 0)
if opt("dbgspan"):
    A("s_memrealtime s[48:49]")
    A("s_memtime s[52:53]")
    A("s_load_dwordx2 s[72:73], s[0:1], 40")
A("s_load_dwordx4 s[64:67], s[0:1], 0")
A("s_load_dwordx2 s[68:69], s[0:1], 16")
A("s_load_dwordx2 s[70:71], s[0:1], 32")
if STAMPS: A("s_load_dwordx2 s[72:73], s[0:1], 48")
A("s_getpc_b64 s[74:75]")
A.label("L_pc")
A("s_lshr_b32 s76, s2, 3")
A("s_lshl_b32 s76, s76, 4")
A("s_add_u32 s74, s74, L_table-L_pc")
A("s_addc_u32 s75, s75, 0")
A("s_load_dwordx4 %s, s[74:75], s76" % s(S_TASK, 4))
A("v_lshrrev_b32 %s, 6, v0" % v(V_T0))
A("v_and_b32 v0, 63, v0")
A("v_readfirstlane_b32 %s, %s" % (s(S_W), v(V_T0)))
if opt("warm"):
    A("s_getpc_b64 s[78:79]")
    A("v_lshlrev_b32 v175, 7, v0")
    A("s_lshl_b32 %s, %s, 13" % (s(S_T0), s(S_W)))
    A("s_cmp_ge_u32 %s, 2" % s(S_W))
    A("s_cbranch_scc1 L_nowarm")
    A("v_add_u32 v175, %s, v175" % s(S_T0))
    A("global_load_dword v175, v175, s[78:79]")
    A.label("L_nowarm")
A("v_lshrrev_b32 %s, 4, v0" % v(V_T2))
A("v_and_b32 %s, 15, v0" % v(V_T3))
A("v_xor_b32 %s, %s, %s" % (v(V_T0), v(V_T3), v(V_T2)))
A("s_lshl_b32 %s, %s, 2" % (s(S_T0), s(S_W)))
A("v_add_u32 %s, %s, %s" % (v(V_T1), s(S_T0), v(V_T2)))
A("v_lshlrev_b32 %s, 12, %s" % (v(V_T1), v(V_T1)))
A("v_lshl_add_u32 %s, %s, 4, %s" % (v(V_KVO), v(V_T0), v(V_T1)))
A("v_add_u32 %s, %d, %s" % (v(V_KVO2), 16 * 4096, v(V_KVO)))
A("v_lshl_add_u32 %s, %s, 3, %s" % (v(V_T1), v(V_T2), s(S_W)))
A("v_lshlrev_b32 %s, 12, %s" % (v(V_T1), v(V_T1)))
A("v_lshl_add_u32 %s, %s, 4, %s" % (v(V_VVO), v(V_T3), v(V_T1)))
A("v_add_u32 %s, %d, %s" % (v(V_VVO2), 4 * 4096, v(V_VVO)))
A("v_mov_b32 %s, %s" % (v(V_VVC), v(V_VVO)))
A("v_mul_u32_u24 %s, 272, %s" % (v(V_T0), v(V_T2)))
A("v_lshl_add_u32 %s, %s, 4, %s" % (v(V_OR), v(V_T3), v(V_T0)))
A("v_lshlrev_b32 %s, 12, %s" % (v(V_T0), v(V_T2)))
A("v_lshl_add_u32 %s, %s, 4, %s" % (v(V_SO), v(V_T3), v(V_T0)))
A("v_and_b32 %s, 31, v0" % v(V_T0))
A("v_lshrrev_b32 %s, 5, v0" % v(V_T1))
A("v_lshrrev_b32 %s, 2, %s" % (v(V_T2), v(V_T0)))
A("v_mul_u32_u24 %s, 1088, %s" % (v(V_T2), v(V_T2)))
A("v_and_b32 %s, 3, v0" % v(V_T3))
A("v_lshl_add_u32 %s, %s, 8, %s" % (v(V_T2), v(V_T3), v(V_T2)))
A("v_xor_b32 %s, %s, %s" % (v(V_T3), v(V_T3), v(V_T1)))
A("v_lshl_add_u32 %s, %s, 4, %s" % (v(V_KA0), v(V_T3), v(V_T2)))
A("v_xor_b32 %s, 32, %s" % (v(V_KA1), v(V_KA0)))
A("v_bfe_u32 %s, v0, 2, 2" % v(V_T2))
A("v_lshl_add_u32 %s, %s, 2, %s" % (v(V_T2), v(V_T1), v(V_T2)))
A("v_mul_u32_u24 %s, 1088, %s" % (v(V_T2), v(V_T2)))
A("v_bfe_u32 %s, v0, 4, 1" % v(V_T3))
A("v_lshl_add_u32 %s, %s, 5, %s" % (v(V_T2), v(V_T3), v(V_T2)))
A("v_and_b32 %s, 3, v0" % v(V_T3))
A("v_lshl_add_u32 %s, %s, 3, %s" % (v(V_T2), v(V_T3), v(V_T2)))
A("v_add_u32 %s, %d, %s" % (v(V_VA), HALF, v(V_T2)))
A("v_mul_u32_u24 %s, 272, %s" % (v(V_T2), v(V_T0)))
A("v_lshl_add_u32 %s, %s, 3, %s" % (v(V_OW), v(V_T1), v(V_T2)))
A("v_lshlrev_b32 %s, 2, %s" % (v(V_H4), v(V_T1)))
A("v_mov_b32 %s, 0xff800000" % v(V_NINF))
c = (128 ** -0.5) * math.log2(math.e)
cbits = struct.unpack("<I", struct.pack("<f", c))[0]
A("s_mov_b32 %s, 0x%08x" % (s(S_C), cbits))
A("s_mov_b32 %s, 0xffff0000" % s(S_MSK))
A("s_mul_i32 %s, %s, 1088" % (s(S_WBASE), s(S_W)))
A(smov(S_WBK, S_WBASE))
A("s_and_b32 %s, s2, 7" % s(S_HOFF))
A("s_lshl_b32 %s, %s, 9" % (s(S_HOFF), s(S_HOFF)))
A("s_mov_b32 %s, 0" % s(S_TI))
A("s_mov_b32 %s, 0" % s(S_BAD))
if TL:
    A("s_mov_b32 s92, 0"); A("v_mov_b32 v174, 0")
A("s_mov_b32 %s, 2" % s(S_PH))
A.ext(priv_area(S_PH))
A("s_mov_b32 %s, 0" % s(S_PH))
for srd in (SRD_K, SRD_F, SRD_V, SRD_O):
    A("s_mov_b32 %s, 0x20000" % s(srd + 3))
A("s_mul_i32 %s, %s, %d" % (s(S_T4), s(S_W), 28 * 4096))
A("s_waitcnt lgkmcnt(0)")
A.ext(decode(S_TASK))
for srd, src in ((SRD_F, P_Q), (SRD_K, P_K), (SRD_V, P_V), (SRD_O, P_O)):
    A(smov2(srd, src))
for srd in (SRD_F, SRD_K, SRD_V):
    A(smov(srd + 2, S_NNR))
if STAMPS:
    A("s_mov_b32 %s, s72" % s(SRD_W)); A("s_mov_b32 %s, s73" % s(SRD_W + 1))
    A("s_mov_b32 %s, 0x1000000" % s(SRD_W + 2)); A("s_mov_b32 %s, 0x20000" % s(SRD_W + 3))
A("s_add_u32 %s, %s, %s" % (s(S_T4), s(S_T4), s(S_NQB)))
A(smov(S_KOFF, S_NKB))
A(smov(S_VOFF, S_NKB))
def prologue_issue(win):
    seq = []
    for n in range(8):
        seq.append(m0(n * 1088, S_STG))
        seq.append(sadd(S_T4, S_T4, 16384) if n else "s_nop 0")
        seq.append(dma(V_KVO, SRD_F, S_T4))
    seq += kblock_flat(HALF) + kblock_flat(0) + stream_flat(1)
    out = []
    cnt = 0
    for l in seq:
        if l.startswith("buffer_load"):
            if win and cnt >= win:
                out.append("s_waitcnt vmcnt(%d)" % (win - 1))
            cnt += 1
        out.append(l)
    return out
A("s_cmp_ge_u32 s2, 256")
A("s_cbranch_scc1 L_gentle")
A.ext(prologue_issue(0))
A.label("L_issued")
LN = 16
A("v_mbcnt_lo_u32_b32 %s, -1, 0" % v(LN))
A("v_mbcnt_hi_u32_b32 %s, -1, %s" % (v(LN), v(LN)))
A("v_bfe_u32 %s, %s, 2, 1" % (v(V_T0), v(LN)))
A("v_lshrrev_b32 %s, 5, %s" % (v(V_T1), v(LN)))
A("v_xor_b32 %s, %s, %s" % (v(V_T0), v(V_T0), v(V_T1)))
A("v_bfe_u32 %s, %s, 3, 2" % (v(V_T1), v(LN)))
A("v_bfe_u32 %s, %s, 1, 1" % (v(V_T2), v(LN)))
A("v_lshl_add_u32 %s, %s, 1, %s" % (v(V_T1), v(V_T1), v(V_T2)))
A("v_lshl_add_u32 %s, %s, 4, %s" % (v(V_T1), v(V_T0), v(V_T1)))
A("v_and_b32 %s, 1, %s" % (v(V_T2), v(LN)))
A("v_lshlrev_b32 %s, 4, %s" % (v(V_T2), v(V_T2)))
A("v_mov_b32 %s, 0x3e03" % v(LN + 1))
A("v_mov_b32 %s, 0xb9d8" % v(LN + 2))
A("v_lshlrev_b32 %s, %s, %s" % (v(LN + 1), v(V_T2), v(LN + 1)))
A("v_lshlrev_b32 %s, %s, %s" % (v(LN + 2), v(V_T2), v(LN + 2)))
for r in range(8):
    A("v_cmp_eq_u32 vcc, %d, %s" % (r, v(V_T1)))
    A("s_nop 1")
    A("v_cndmask_b32 %s, 0, %s, vcc" % (v(LN + 3), v(LN + 1)))
    A("v_cndmask_b32 %s, 0, %s, vcc" % (v(LN + 4), v(LN + 2)))
    A("v_accvgpr_write_b32 %s, %s" % (a(A_PS + r), v(LN + 3)))
    A("v_accvgpr_write_b32 %s, %s" % (a(A_PS + 8 + r), v(LN + 4)))
for i in range(4):
    A("v_mov_b32 %s, 0" % v(V_Z + i))
A("s_waitcnt vmcnt(8)")
for st in range(8):
    A(k_read(st, 0, V_QA0, v(Q + 4 * st, 4)))

def ps_mfmas():
    out = []
    for g in range(4):
        d = v(O + 16 * g, 16)
        for k, (m, fr) in enumerate(((0, 0), (4, 1), (8, 0), (12, 1))):
            out.append("v_mfma_f32_32x32x16_bf16 %s, %s, %s, %s" % (d, a(A_PS + m, 4), v(Q + 8 * g + 4 * fr, 4), "0" if k == 0 else d))
    return out
def ps_cvts(g):
    return ["v_cvt_pk_bf16_f32 %s, %s, %s" % (v(Q + 8 * g + i), v(O + 16 * g + 2 * i), v(O + 16 * g + 2 * i + 1)) for i in range(8)]
def ozero(g):
    return "v_mfma_f32_32x32x16_bf16 %s, %s, %s, 0" % (v(O + 16 * g, 16), v(V_Z, 4), v(V_Z, 4))
def prescale_plain(A):
    pm = ps_mfmas()
    A.ext(pm[:8]); A("s_nop 7")
    for g in range(4):
        cv = ps_cvts(g)
        mm = pm[8 + 4 * g: 12 + 4 * g]
        if g == 3: A("s_nop 3")
        for i in range(8):
            A(cv[i])
            if i % 2 == 1 and mm: A(mm.pop(0))
    for g in range(4): A(ozero(g))
A.label("L_task")
A(smov(S_KBASE, S_NKB))
A(smov(SRD_O + 2, S_NNR))
A("s_lshl_b32 %s, %s, 17" % (s(S_QOFF), s(S_W)))
A("s_add_u32 %s, %s, %s" % (s(S_QOFF), s(S_QOFF), s(S_NQB)))
A("s_bfe_u32 %s, %s, 0xa000d" % (s(S_L), s(S_TASK)))
A(sadd(S_N, S_L, 31))
A("s_lshr_b32 %s, %s, 5" % (s(S_N), s(S_N)))
A("s_sub_u32 %s, %s, 1" % (s(S_CNT), s(S_N)))
A("s_lshl_b32 %s, %s, 5" % (s(S_T1), s(S_CNT)))
A("s_sub_u32 %s, %s, %s" % (s(S_NV), s(S_L), s(S_T1)))
A("v_sub_u32 %s, %s, %s" % (v(V_THR), s(S_NV), v(V_H4)))
A("s_mov_b32 %s, 0" % s(S_FB))
A("s_cmp_eq_u32 %s, 0" % s(S_TASK + 1))
A("s_cselect_b32 %s, 1, 4" % s(S_HT))
A("s_cselect_b32 %s, %s, %s" % (s(S_NKB), s(S_NNR), s(S_NKB)))
A("v_mov_b32 %s, 0" % v(V_L0))
A("v_mov_b32 %s, 0" % v(V_L1))
A("s_add_u32 %s, %s, %s" % (s(S_T2), s(S_PH), s(S_N)))
A("s_waitcnt lgkmcnt(0)")
A.ext(priv_area(S_T2))
A("s_cmp_ge_u32 %s, %s" % (s(S_QOFF), s(SRD_O + 2)))
A("s_cbranch_scc1 L_idle")
A("s_waitcnt vmcnt(12)")
A("s_cmp_eq_u32 %s, 0" % s(S_BAD))
A("s_cbranch_scc0 L_w12")
prescale_plain(A)
A("s_waitcnt vmcnt(4)")
A.label("L_w12")
A("s_barrier")
tl(A)
stamp(A, 1, True)
def setprio_loop(A):
    nst[0] += 1
    A("s_setprio 1")
    A("s_bitcmp1_b32 %s, 27" % s(S_TASK))
    A("s_cbranch_scc0 L_pr%d" % nst[0])
    A("s_setprio 2")
    A.label("L_pr%d" % nst[0])
def setprio_tr(A):
    nst[0] += 1
    A("s_bitcmp1_b32 %s, 28" % s(S_TASK))
    A("s_cbranch_scc1 L_pr%d" % nst[0])
    A("s_setprio 0")
    A.label("L_pr%d" % nst[0])
if opt("prioP"): setprio_loop(A)
for ph in (1, 2, 3):
    A("s_cmp_eq_u32 %s, %d" % (s(S_PH), ph))
    A("s_cbranch_scc1 L_p%d" % ph)
def pphase(A, ph):
    b = S_BUF[ph & 1]
    for st in range(8): A(k_read(st, ph * SZ + HALF))
    A.ext(stream_flat((ph + 2) % 4))
    A("s_waitcnt lgkmcnt(0)")
    sg = stream_groups((ph + 3) % 4)
    for st in range(8):
        A(qk_mfma(b, st, "0"))
        A.ext(sg[st])
    A.ext(sg[8] + sg[9])
    for st in range(8): A(k_read(st, ph * SZ))
    A("s_nop 1")
    A.ext(rowmax(b, True))
    A.ext(crossmax())
    A("v_sub_f32 %s, 0, %s" % (v(CI), v(V_T0)))
    for i in range(16):
        A("v_sub_f32 %s, %s, %s" % (v(b + i), v(b + i), v(V_T0)))
        if i: A("v_mov_b32 %s, %s" % (v(CI + i), v(CI)))
    for sl, op in softmax_ops(b):
        if sl < 16: A(op)
    if not opt("prioP"): setprio_loop(A)
pphase(A, 0)
for u in (1, 2, 3, 0):
    A.label("L_it%d" % u)
    tl_pre(A)
    A("s_waitcnt vmcnt(8) lgkmcnt(0)")
    tl_post(A)
    A("s_barrier")
    iteration(A, u)
    if u != 0:
        A("s_cbranch_scc1 L_sp%d" % ((u + 1) % 4))
    else:
        A("s_cbranch_scc0 L_it1")

def stub(A, u, tag, e_label, ret):
    A.label("L_%ssp%d" % (tag, u))
    A("s_cmp_eq_u32 %s, 0" % s(S_CNT))
    A("s_cbranch_scc1 %s" % e_label)
    A("s_mov_b32 %s, %d" % (s(S_T4), SPARE - ((u + 3) % 4) * SZ))
    A("s_call_b64 s[96:97], L_hooks")
    A("s_branch %s" % ret)
for u in (1, 2, 3, 0):
    stub(A, u, "", "L_e%d" % u, "L_it%d" % u)
A.label("L_hooks")
for cnt in (4, 3, 2):
    A("s_cmp_eq_u32 %s, %d" % (s(S_CNT), cnt))
    A("s_cbranch_scc1 L_hk%d" % cnt)
A.ext(hook(1, 0))
mask_hook(A)
A("s_setpc_b64 s[96:97]")
for cnt in (4, 3, 2):
    A.label("L_hk%d" % cnt)
    A.ext(hook(cnt, 0))
    A("s_setpc_b64 s[96:97]")

def norm_block(db):
    out = []
    base = O + 16 * db
    for j in range(4 + 1):
        if j < 4:
            r = base + 4 * j
            out += ["v_mul_f32 %s, %s, %s" % (v(r + i), v(V_L0), v(r + i)) for i in range(4)]
        if j >= 1:
            r = base + 4 * (j - 1)
            out.append("v_cvt_pk_bf16_f32 %s, %s, %s" % (v(r), v(r), v(r + 1)))
            out.append("v_cvt_pk_bf16_f32 %s, %s, %s" % (v(r + 1), v(r + 2), v(r + 3)))
        if j >= 2:
            r = base + 4 * (j - 2)
            out.append("ds_write_b64 %s, %s offset:%d" % (v(V_EW), v(r, 2), 16 * (4 * db + j - 2)))
    r = base + 12
    out.append("ds_write_b64 %s, %s offset:%d" % (v(V_EW), v(r, 2), 16 * (4 * db + 3)))
    return out
def lfinal():
    return ["v_add_f32 %s, %s, %s" % (v(V_L0), v(V_L0), v(V_L1)),
            "v_mov_b32 %s, %s" % (v(V_L1), v(V_L0)),
            "s_nop 1",
            "v_permlane32_swap_b32 %s, %s" % (v(V_L0), v(V_L1)),
            "v_add_f32 %s, %s, %s" % (v(V_L0), v(V_L0), v(V_L1)),
            "v_cmp_nge_f32 vcc, 0x44800000, %s" % v(V_L0),
            "v_mov_b32 %s, %s" % (v(V_L1), v(V_L0)),
            "v_rcp_f32 %s, %s" % (v(V_L0), v(V_L0)),
            "s_nop 0",
            "s_mov_b64 %s, vcc" % s(S_BAD, 2)]
def qnext_reads():
    return [k_read(st, 0, V_QA0, v(Q + 4 * st, 4)) for st in range(8)]
for u in (1, 2, 3, 0):
    A.label("L_e%d" % u)
    stamp(A, 2, True)
    cur = S_BUF[1 - (u & 1)]
    A.ext(hook(0, u))
    A("s_mov_b32 %s, %d" % (s(S_PH), (u + 2) % 4))
    if not opt("prioE"): setprio_tr(A)
    tl_pre(A)
    A("s_waitcnt vmcnt(4) lgkmcnt(0)")
    tl_post(A)
    A("s_barrier")
    order = [0, 4, 1, 5, 2, 6, 3, 7]
    rd = []
    for i in order:
        rd += [v_read(i, 0, u * SZ), v_read(i, 1, u * SZ)]
    sm = [op for sl, op in softmax_ops(cur) if sl >= 16]
    while rd or sm:
        if rd: A(rd.pop(0))
        if sm: A(sm.pop(0))
        if sm: A(sm.pop(0))
    A("s_waitcnt lgkmcnt(8)")
    qn = qnext_reads()
    sg = stream_groups((u + 3) % 4)
    A(pv_mfma(cur, 0)); A.ext(qn[:4]); A.ext(sg[0]); A(pv_mfma(cur, 4)); A.ext(qn[4:]); A.ext(sg[1] + sg[2])
    lf = lfinal()
    A.ext(lf[:4])
    A(pv_mfma(cur, 1))
    A.ext(sg[3] + sg[4])
    A.ext(lf[4:])
    A(pv_mfma(cur, 5))
    A.ext(sg[5] + sg[6])
    A("s_waitcnt lgkmcnt(0)")
    A.ext(sg[7] + sg[8] + sg[9])
    nb = norm_block(0)
    A.ext(nb[:7]); A(pv_mfma(cur, 2)); A.ext(nb[7:14]); A(pv_mfma(cur, 6)); A.ext(nb[14:21]); A(pv_mfma(cur, 3)); A.ext(nb[21:]); A(pv_mfma(cur, 7))
    if u != 0:
        A("s_branch L_epi")
A.label("L_epi")
if opt("prioE"): setprio_tr(A)
for db in range(1, 4):
    A.ext(norm_block(db))
A("s_waitcnt lgkmcnt(0)")
for k in range(8):
    A("ds_read_b128 %s, %s offset:%d" % (v(16 + 4 * k, 4), v(V_ER), 4 * 272 * k))
A("s_cmp_lg_u64 %s, 0" % s(S_BAD, 2))
A("s_cbranch_scc1 L_chk")
A.label("L_store")
A("s_mov_b32 %s, %s" % (s(S_T0), s(S_QOFF)))
A("s_cmp_eq_u32 %s, 0" % s(S_TASK + 1))
A("s_cbranch_scc1 L_laststore")
pm = ps_mfmas()
def store(k):
    o = ["s_waitcnt lgkmcnt(%d)" % (7 - k),
         "buffer_store_dwordx4 %s, %s, %s, %s offen%s" % (v(16 + 4 * k, 4), v(V_SO), s(SRD_O, 4), s(S_T0), " " + optv("stmod", "").replace("+", " "))]
    if k < 7: o.append(sadd(S_T0, S_T0, 16384))
    return o
A.ext(pm[:4])
for k in range(4):
    A.ext(store(k)); A(pm[4 + k])
for g in range(4):
    cv = ps_cvts(g)
    mm = pm[8 + 4 * g: 12 + 4 * g]
    A.ext(store(4 + g))
    if g == 3: A("s_nop 1")
    for i in range(8):
        A(cv[i])
        if i % 2 == 1 and mm: A(mm.pop(0))
for g in range(4): A(ozero(g))
stamp(A, 3, True)
A("s_mov_b32 %s, 1" % s(S_BAD))
A.label("L_next")
A(smov(S_TASK, S_TASK + 1))
A(smov(S_TASK + 1, S_TASK + 2))
A(smov(S_TASK + 2, S_TASK + 3))
A("s_mov_b32 %s, 0" % s(S_TASK + 3))
A(sadd(S_TI, S_TI, 1))
A("s_branch L_task")
A.label("L_laststore")
for k in range(8):
    A("s_waitcnt lgkmcnt(%d)" % (7 - k))
    A("buffer_store_dwordx4 %s, %s, %s, %s offen%s" % (v(16 + 4 * k, 4), v(V_SO), s(SRD_O, 4), s(S_T0), " " + optv("stmod", "").replace("+", " ")))
    if k < 7: A(sadd(S_T0, S_T0, 16384))
stamp(A, 3, True)
A.label("L_fin")
if opt("dbgspan"):
    A("s_waitcnt vmcnt(0)")
    A("s_memrealtime s[50:51]")
    A("s_memtime s[54:55]")
    A("s_waitcnt lgkmcnt(0)")
    A("s_not_b32 s48, s48")
    A("s_sub_u32 s54, s54, s52")
    A("v_mov_b32 v16, s48")
    A("v_mov_b32 v17, s50")
    A("v_mov_b32 v18, s54")
    A("v_mov_b32 v48, 0")
    A("s_mov_b64 exec, 1")
    A("global_atomic_umax v48, v16, s[72:73]")
    A("global_atomic_umax v48, v17, s[72:73] offset:4")
    A("global_atomic_umax v48, v18, s[72:73] offset:8")
if STAMPS:
    A("s_waitcnt vmcnt(0)")
    stamp(A, 4)
    A("s_memrealtime %s" % s(S_ST + 14, 2))
    A("s_getreg_b32 %s, hwreg(HW_REG_XCC_ID)" % s(S_ST + 10))
    A("s_getreg_b32 %s, hwreg(HW_REG_HW_ID)" % s(S_ST + 11))
    A("s_waitcnt lgkmcnt(0)")
    A("s_cmp_eq_u32 %s, 0" % s(S_W))
    A("s_cbranch_scc0 L_end")
    for i in range(16):
        A("v_mov_b32 %s, %s" % (v(16 + i), s(S_ST + i)))
    for i in range(16):
        A("v_mov_b32 v%d, 0" % (32 + i))
    if TL:
        A("s_lshl_b32 %s, s2, 8" % s(S_T0))
        A("s_add_u32 %s, %s, 0x100000" % (s(S_T0), s(S_T0)))
        A("v_mbcnt_lo_u32_b32 v48, -1, 0")
        A("v_mbcnt_hi_u32_b32 v48, -1, v48")
        A("v_lshlrev_b32 v48, 2, v48")
        A("buffer_store_dword v174, v48, %s, %s offen" % (s(SRD_W, 4), s(S_T0)))
    A("s_lshl_b32 %s, s2, 7" % s(S_T0))
    A("v_mov_b32 v48, 0")
    A("s_mov_b64 exec, 1")
    for i in range(8):
        A("buffer_store_dwordx4 %s, v48, %s, %s offen offset:%d" % (v(16 + 4 * i, 4), s(SRD_W, 4), s(S_T0), 16 * i))
A("s_endpgm")
A.label("L_gentle")
A.ext(prologue_issue(WIN))
A("s_branch L_issued")
for ph in (1, 2, 3):
    A.label("L_p%d" % ph)
    pphase(A, ph)
    A("s_branch L_it%d" % ((ph + 1) % 4))
A.label("L_idle")
A("s_waitcnt vmcnt(4)")
A("s_barrier")
for ph in (0, 1, 2, 3):
    if ph < 3:
        A("s_cmp_eq_u32 %s, %d" % (s(S_PH), ph))
        A("s_cbranch_scc0 L_ip%d" % (ph + 1))
    A.ext(stream_flat((ph + 2) % 4))
    A.ext(stream_flat((ph + 3) % 4))
    A("s_branch L_ii%d" % ((ph + 1) % 4))
    if ph < 3: A.label("L_ip%d" % (ph + 1))
for u in (0, 1, 2, 3):
    A.label("L_ii%d" % u)
    A("s_waitcnt vmcnt(8)")
    A("s_barrier")
    A.ext(stream_flat((u + 3) % 4))
    A("s_sub_u32 %s, %s, 1" % (s(S_CNT), s(S_CNT)))
    A("s_cmp_le_u32 %s, %s" % (s(S_CNT), s(S_HT)))
    A("s_cbranch_scc1 L_isp%d" % ((u + 1) % 4))
A("s_branch L_ii0")
for u in range(4):
    stub(A, u, "i", "L_ie%d" % u, "L_ii%d" % u)
    A.label("L_ie%d" % u)
    A.ext(hook(0, u))
    A("s_mov_b32 %s, %d" % (s(S_PH), (u + 2) % 4))
    A("s_waitcnt vmcnt(4)")
    A("s_barrier")
    A("s_cmp_eq_u32 %s, 0" % s(S_TASK + 1))
    A("s_cbranch_scc1 L_end")
    A.ext(qnext_reads())
    A.ext(stream_flat((u + 3) % 4))
    A("s_mov_b32 %s, 0" % s(S_BAD))
    A("s_waitcnt lgkmcnt(0)")
    A("s_branch L_next")

A.label("L_chk")
A("s_waitcnt lgkmcnt(0)")
A("s_cmp_eq_u32 %s, 0" % s(S_FB))
A("s_cbranch_scc0 L_store")
A("v_mov_b32 %s, 0" % v(V_T0))
for k in range(16):
    A("v_pk_maximum3_f16 %s, %s, %s, %s" % (v(V_T0), v(V_T0), v(16 + 2 * k), v(17 + 2 * k)))
A("v_cmp_ngt_f32 vcc, 0x71800000, %s" % v(V_L1))
A("v_and_b32 %s, 0x7c00, %s" % (v(V_T1), v(V_T0)))
A("v_and_b32 %s, 0x7c000000, %s" % (v(V_T2), v(V_T0)))
A("s_mov_b64 %s, vcc" % s(S_BAD, 2))
A("v_cmp_eq_u32 vcc, 0x7c00, %s" % v(V_T1))
A("s_nop 1")
A("s_or_b64 %s, %s, vcc" % (s(S_BAD, 2), s(S_BAD, 2)))
A("v_cmp_eq_u32 vcc, 0x7c000000, %s" % v(V_T2))
A("s_nop 1")
A("s_or_b64 %s, %s, vcc" % (s(S_BAD, 2), s(S_BAD, 2)))
A("s_cbranch_scc0 L_store")
A("s_mov_b32 %s, 1" % s(S_FB))
FV, FKO, FVO = 34, 35, 36
S_FOFF, S_FCNT = S_L, S_CNT
A("s_sub_u32 %s, %s, %d" % (s(S_T0), s(S_STG), HALF))
A("v_add_u32 %s, %s, %s" % (v(FV), s(S_T0), v(V_VA)))
A("s_lshl_b32 %s, %s, 14" % (s(S_T0), s(S_W)))
A("v_subrev_u32 %s, %s, %s" % (v(FKO), s(S_T0), v(V_KVO)))
A("s_lshl_b32 %s, %s, 12" % (s(S_T0), s(S_W)))
A("v_subrev_u32 %s, %s, %s" % (v(FVO), s(S_T0), v(V_VVC)))
A(smov(SRD_F + 2, SRD_O + 2))
def fb_load(A, vo, ptr, step):
    A(smov2(SRD_F, ptr))
    A(smov(S_T4, S_FOFF))
    for n in range(8):
        A(m0(n * 1088, S_STG))
        if n: A(sadd(S_T4, S_T4, step))
        else: A("s_nop 0")
        A(dma(vo, SRD_F, S_T4))
    A("s_waitcnt vmcnt(0)")
def fb_qk(A, tag):
    A("s_cmp_eq_u32 %s, 1" % s(S_FCNT))
    A("s_cbranch_scc0 L_fbnm%s" % tag)
    mask_hook(A)
    A.label("L_fbnm%s" % tag)
    fb_load(A, FKO, P_K, 16384)
    for st in range(8): A(k_read(st, 0, V_QA0, a(A_VF + 4 * st, 4)))
    A("s_waitcnt lgkmcnt(0)")
    for st in range(8): A(qk_mfma(S_BUF[0], st, v(CI, 16), A_VF))
    A("s_nop 15")
A(smov(S_FOFF, S_QOFF))
fb_load(A, FKO, P_Q, 16384)
A.ext(qnext_reads())
A("s_waitcnt lgkmcnt(0)")
prescale_plain(A)
for i in range(16): A("v_mov_b32 %s, 0" % v(CI + i))
A("v_mov_b32 %s, %s" % (v(V_T0), v(V_NINF)))
A(smov(S_FOFF, S_KBASE))
A(smov(S_FCNT, S_N))
A.label("L_fb1")
fb_qk(A, "1")
A.ext(rowmax(S_BUF[0], False))
A(sadd(S_FOFF, S_FOFF, BLK))
A("s_sub_u32 %s, %s, 1" % (s(S_FCNT), s(S_FCNT)))
A("s_cmp_eq_u32 %s, 0" % s(S_FCNT))
A("s_cbranch_scc0 L_fb1")
A.ext(crossmax())
for i in range(16): A("v_sub_f32 %s, 0, %s" % (v(CI + i), v(V_T0)))
A("v_mov_b32 %s, 0" % v(V_L0))
A("v_mov_b32 %s, 0" % v(V_L1))
A(smov(S_FOFF, S_KBASE))
A(smov(S_FCNT, S_N))
A.label("L_fb2")
fb_qk(A, "2")
for sl, op in softmax_ops(S_BUF[0]):
    A(op)
    if "exp" in op: A("s_nop 0")
fb_load(A, FVO, P_V, 4096)
for i in range(8):
    A(v_read(i, 0, 0, FV)); A(v_read(i, 1, 0, FV))
A("s_waitcnt lgkmcnt(0)")
for i in range(8): A(pv_mfma(S_BUF[0], i))
A("s_nop 15")
A(sadd(S_FOFF, S_FOFF, BLK))
A("s_sub_u32 %s, %s, 1" % (s(S_FCNT), s(S_FCNT)))
A("s_cmp_eq_u32 %s, 0" % s(S_FCNT))
A("s_cbranch_scc0 L_fb2")
A(smov(SRD_F + 2, S_NNR))
A("s_lshl_b32 %s, %s, 17" % (s(S_FOFF), s(S_W)))
A("s_add_u32 %s, %s, %s" % (s(S_FOFF), s(S_FOFF), s(S_NQB)))
fb_load(A, FKO, P_Q, 16384)
A.ext(qnext_reads())
A("s_waitcnt lgkmcnt(0)")
A.ext(lfinal())
A.ext(norm_block(0))
A("s_branch L_epi")
A.label("L_end")
A("s_endpgm")

errs = check_hazards(A.lines)
for e in errs: print(e, file=sys.stderr)
if errs and not opt("force"): sys.exit(1)

hdr = open("standalone__varlen_attn_packed__ragged.s.ref").read().split("\n")
hdr = [l for l in hdr[:10] if l.startswith(";") and "@launch" not in l]
out = "\n".join(hdr) + "\n; @launch grid=(%d,1,1) block=(256,1,1) lds=%d\n" % (GRID, LDS)
out += '.amdgcn_target "amdgcn-amd-amdhsa--gfx950"\n.text\n.globl %s\n.p2align 8\n.type %s,@function\n' % (NAME, NAME)
out += A.text()
out += ".p2align 6\n.type L_table,@object\nL_table:\n"
for ent in table:
    w = [t[0] | (t[1] << 13) | (t[2] << 23) | (t[3] << 26) | (t[4] << 27) for t in ent] + [0] * (4 - len(ent))
    out += ".long " + ", ".join("0x%08x" % x for x in w) + "\n"
out += """.section .rodata,"a"
.p2align 6
.amdhsa_kernel %s
  .amdhsa_next_free_vgpr 256
  .amdhsa_next_free_sgpr 98
  .amdhsa_accum_offset %d
  .amdhsa_group_segment_fixed_size 0
  .amdhsa_kernarg_size 56
  .amdhsa_user_sgpr_count 2
  .amdhsa_user_sgpr_kernarg_segment_ptr 1
  .amdhsa_system_sgpr_workgroup_id_x 1
.end_amdhsa_kernel
""" % (NAME, ACC)
sys.stdout.write(out)
```

```python
import sys
CU = [0, 534, 1426, 1714, 2675, 3469, 4036, 4628, 4845]
SEG = {}
for i in range(8):
    L = CU[i + 1] - CU[i]
    SEG[(L + 31) // 32] = (CU[i], L)
PA1 = [[(18, 2), (25, 3)], [(18, 2), (25, 3)], [(28, 3), (7, 4)], [(9, 2), (25, 4)], [(28, 3), (9, 3)], [(18, 2), (19, 4)], [(17, 2), (25, 3)],
       [(31, 4)], [(31, 4)], [(31, 4)], [(31, 4)], [(19, 2), (18, 4)], [(19, 2), (17, 4)], [(28, 4)], [(28, 4)], [(19, 2), (17, 3)]]
def build(plan, check=True):
    table = [None] * 32
    for hb in range(2):
        occ = {}
        for b, bin_ in enumerate(plan):
            for i, (n, N) in enumerate(bin_): occ.setdefault(n, []).append((-N, b, i))
        start = {}
        for n, l in occ.items():
            u = 0
            for mN, b, i in sorted(l):
                start[(b, i)] = u if check else u % max(1, (SEG[n][1] // 64 - 3))
                u += -mN
            if check: assert u * 64 >= SEG[n][1] and (u + mN) * 64 < SEG[n][1], (n, u)
        if check: assert len(occ) == 8
        for b, bin_ in enumerate(plan):
            table[2 * b + hb] = [(SEG[n][0], SEG[n][1], start[(b, i)], N, hb ^ (i & 1)) for i, (n, N) in enumerate(bin_)]
    return table
PA2 = [[(19, 4), (18, 2)], [(25, 3), (18, 2)], [(25, 3), (18, 2)], [(25, 4), (7, 2)], [(25, 4), (7, 2)], [(28, 3), (9, 3)], [(28, 3), (9, 3)], [(19, 3), (17, 3)], [(19, 3), (17, 3)],
       [(31, 4)], [(31, 4)], [(31, 4)], [(31, 4)], [(18, 3), (17, 3)], [(28, 4)], [(28, 4)]]
PS4 = [[(31, 4)]] * 8 + [[(31, 3)]] * 4 + [[(31, 2)]] * 4
PA3 = [[(19, 4, 0), (19, 2)], [(25, 3, 0), (19, 2)], [(25, 3, 0), (19, 2)], [(25, 4, 0), (7, 2)], [(31, 4, 0)], [(31, 4, 0)], [(31, 4, 0)], [(31, 4, 0)], [(18, 3, 1), (17, 3)], [(18, 3, 1), (17, 3)], [(18, 3, 1), (17, 3)], [(25, 3, 1), (9, 3)], [(28, 3, 1), (9, 2)], [(28, 4, 1)], [(28, 4, 1)], [(28, 3, 1), (7, 2)]]
PA4 = [[(19, 3, 0), (28, 2)], [(25, 4, 0), (7, 2)], [(25, 4, 0), (7, 2)], [(19, 3, 0), (17, 3)], [(31, 4, 0)], [(31, 4, 0)], [(31, 4, 0)], [(31, 4, 0)], [(18, 4, 1), (17, 2)], [(18, 3, 1), (25, 2)], [(17, 4, 1), (18, 2)], [(19, 4, 1), (9, 3)], [(28, 4, 1)], [(28, 4, 1)], [(28, 4, 1)], [(25, 3, 1), (9, 2)]]
PA5 = [[(25, 3, 0), (19, 2)], [(25, 3, 0), (19, 2)], [(31, 4, 0)], [(31, 4, 0)], [(31, 4, 0)], [(31, 4, 0)], [(28, 3, 0), (9, 3)], [(25, 3, 0), (7, 4)], [(19, 3, 1), (25, 2)], [(19, 3, 1), (25, 2)], [(18, 3, 1), (17, 3)], [(18, 3, 1), (17, 3)], [(18, 3, 1), (17, 3)], [(28, 3, 1), (9, 2)], [(28, 4, 1)], [(28, 4, 1)]]
PA6 = [[(25, 3, 0), (19, 2)], [(25, 3, 0), (19, 2)], [(31, 4, 0)], [(31, 4, 0)], [(31, 4, 0)], [(31, 4, 0)], [(19, 3, 0), (18, 3)], [(28, 3, 0), (9, 3)], [(19, 3, 0), (17, 3)], [(25, 3, 0), (7, 4)], [(18, 3, 1), (17, 3)], [(18, 3, 1), (17, 3)], [(28, 3, 1), (9, 2)], [(28, 4, 1)], [(28, 4, 1)], [(25, 4, 1)]]
```

```python
import sys, struct, math
from asmlib import Asm, check_hazards
import schedA

def opt(x): return ("--" + x) in sys.argv
def optv(x, d):
    for a_ in reversed(sys.argv):
        if a_.startswith("--" + x + "="): return a_.split("=")[1]
    return d
DEF = {("dw", 3): "7,21", ("vend", 3): "2", ("tp", 3): "6,6,4,4,2", ("sm", 3): "17", ("sm", 2): "20", ("dw", 2): "7,25", ("salux", 2): "1"}
def optn(x, N, d): return optv("%s%d" % (x, N), optv(x, DEF.get((x, N), d)))
STAMPS = opt("stamps"); TL = opt("tl")
NAME = "standalone__varlen_attn_packed__ragged_kernel"
HALF = 8704; PS = 1056; SZ = 2 * HALF
PRIV = 4 * SZ
LDS = 8 * SZ
BLK = 32 * 4096
GRID = 256
plan0 = getattr(schedA, optv("plan", "PA6"))
late = [len(b[0]) > 2 and b[0][2] for b in plan0]
plan = [[x[:2] for x in b] for b in plan0]
table = schedA.build(plan, not opt("nocheck"))
STMOD = " " + optv("stmod", "sc0+sc1").replace("+", " ")
needP, needE, needN, needF, needE3 = set(), set(), set(), set(), set()
for bin_ in plan:
    assert len(bin_) <= 2
    for x, y in zip(bin_, bin_[1:]): assert x[0] >= 3 + 4 * y[1], bin_
for bin_ in plan:
    ph = 0
    for ti, (n, N) in enumerate(bin_):
        if ti: needP.add((ph, N))
        else: needF.add(N)
        needN.add((N, ti + 1 < len(bin_)))
        ph = (ph + n) & 3
        needE.add((ph, N))
        needE3.add((ph, N, bin_[ti + 1][1] if ti + 1 < len(bin_) else 0))

V_KA0, V_KA1, V_VA, V_KVO, V_KVO2, V_VVO, V_VVO2, V_G4, V_QA0, V_QA1, V_EW, V_ER, V_SO, V_T4, V_T5 = range(1, 16)
V_TL = 0
S_BUF = [16, 48]
CI = 80
V_T = 112
V_U = 116
V_I = 120
V_Z = 124
O = 128
A_Q, A_QR, A_KF, A_VF, A_PS, A_LS, A_ONE, A_ONM = 0, 64, 128, 160, 192, 208, 224, 228
SRD_F, SRD_K, SRD_V, SRD_O, SRD_W = 4, 8, 12, 16, 20
(S_KOFF, S_VOFF, S_WBASE, S_CNT, S_HT, S_PRIV, S_QOFF, S_NV, S_N, S_L, S_T0, S_T1, S_T2, S_T3,
 S_KBASE, S_NR, S_PH, S_HOFF, S_FB, S_TI) = range(28, 48)
S_ST = 48
P_Q, P_K, P_V, P_O = 64, 66, 68, 70
S_TASK = 80
S_BAD = 84
S_T4, S_W, S_NQ, S_NKB, S_NNR, S_NQB, S_NNQ, S_C, S_QM, S_QME, S_BLK = 86, 87, 88, 89, 90, 91, 93, 98, 99, 100, 101
S_T4E = 96

def v(i, n=1): return "v%d" % i if n == 1 else "v[%d:%d]" % (i, i + n - 1)
def a(i, n=1): return "a%d" % i if n == 1 else "a[%d:%d]" % (i, i + n - 1)
def s(i, n=1): return "s%d" % i if n == 1 else "s[%d:%d]" % (i, i + n - 1)
M16 = "v_mfma_f32_16x16x32_bf16"; M32 = "v_mfma_f32_32x32x16_bf16"

def qk_mfma(buf, i, raw=False, kf=A_KF):
    q2, kb, st = i >> 3, (i >> 2) & 1, i & 3
    d = v(buf + 8 * q2 + 4 * kb, 4)
    c = d if st else ("0" if raw else v(CI + 8 * q2 + (4 * kb if kf != A_KF else 0), 4))
    return "%s %s, %s, %s, %s" % (M16, d, a(kf + 4 * (4 * kb + st), 4), a((A_QR if raw else A_Q) + 16 * q2 + 4 * st, 4), c)
def oreg(q2, db): return O + 32 * q2 + 4 * db
def pv_mfma(buf, q2, db):
    d = v(oreg(q2, db), 4)
    return "%s %s, %s, %s, %s" % (M16, d, a(A_VF + 4 * db, 4), v(buf + 8 * q2, 4), d)
def sum_mfma(buf, q2, one=None):
    d = a(A_LS + 4 * q2, 4)
    return "%s %s, %s, %s, %s" % (M16, d, a(A_ONE if one is None else one, 4), v(buf + 8 * q2, 4), d)
def onm_ops(t=0):
    o = ["s_bfe_u32 %s, %s, 0xa000d" % (s(S_T2), s(S_TASK + t)), sadd(S_T2, S_T2, 31), "s_and_b32 %s, %s, 31" % (s(S_T2), s(S_T2)), sadd(S_T2, S_T2, 1),
         "v_sub_u32 %s, %s, %s" % (v(V_I), s(S_T2), v(V_G4)),
         "v_mov_b32 %s, 0x3f80" % v(V_I + 1), "v_mov_b32 %s, 0x3f803f80" % v(V_I + 2)]
    for r in range(4):
        k = 16 * (r >> 1) + 2 * (r & 1)
        o += ["v_cmp_lt_i32 vcc, %d, %s" % (k, v(V_I)), "v_cmp_lt_i32 %s, %d, %s" % (s(S_T0, 2), k + 1, v(V_I)), "s_nop 0",
              "v_cndmask_b32 %s, 0, %s, vcc" % (v(V_I + 3), v(V_I + 1)),
              "v_cndmask_b32 %s, %s, %s, %s" % (v(V_I + 3), v(V_I + 3), v(V_I + 2), s(S_T0, 2)),
              "v_accvgpr_write_b32 %s, %s" % (a(A_ONM + 4 * t + r), v(V_I + 3))]
    return o
def k_read(f, base, areg=V_KA0, dst=None):
    kb, st = f >> 2, f & 3
    return "ds_read_b128 %s, %s offset:%d" % (dst or a(A_KF + 4 * f, 4), v(areg + (st >> 1)), base + 4 * PS * kb + 64 * (st & 1))
def v_read(db, j, base, areg=V_VA):
    return "ds_read_b64_tr_b16 %s, %s offset:%d" % (a(A_VF + 4 * db + 2 * j, 2), v(areg), base + 512 * j + 32 * db)
def q_reads(n=4):
    return [k_read(f, 0, V_QA0, a(A_QR + 4 * f, 4)) for f in range(4 * n)]

def sm_start(N): return int(optn("sm", N, "15"))
def softmax_ops(buf, N):
    ops = []
    st = sm_start(N)
    for e in range(8 * N):
        p = st + 17 * (e >> 3) + 2 * (e & 7)
        ops.append((p, 0, "v_exp_f32 %s, %s" % (v(buf + e), v(buf + e))))
        if e & 1:
            pc = p + 1
            pc = p + int(optn("cd", N, "1"))
            if optn("cvt2", N, "0") == "1" and (e & 3) == 1: pc += 4
            ops.append((pc, 1 + (e & 2), "v_cvt_pk_bf16_f32 %s, %s, %s" % (v(buf + (e & ~7) + ((e & 7) >> 1)), v(buf + e - 1), v(buf + e))))
    for p, _, op in ops:
        q = (int(op.split()[1].strip("v,")) - buf) >> 3
        assert 8 * q + 8 <= p < 25 * N + 9 * q - 1, (N, p, op)
    ops.sort()
    return [(o[0], o[2]) for o in ops]
def flat_sm(ops):
    out = []
    pend = []
    for op in ops:
        if op.startswith("v_cvt"):
            pend.append(op)
        else:
            out.append(op)
            out += pend; pend = []
    if pend: out += ["s_nop 0"] + pend
    return out

def dma(vo, srd, so): return "buffer_load_dwordx4 %s, %s, %s offen lds" % (v(vo), s(srd, 4), s(so))
def m0(off, base=None): return "s_add_u32 m0, %s, %d" % (s(S_WBASE if base is None else base), off)
def sadd(d, x, imm): return "s_add_u32 %s, %s, %d" % (s(d), s(x), imm)
def smov(d, x): return "s_mov_b32 %s, %s" % (s(d), s(x))
def smov2(d, x): return "s_mov_b64 %s, %s" % (s(d, 2), s(x, 2))
def stream_groups(slot):
    b = slot * SZ
    return [[m0(b)], [dma(V_KVO, SRD_K, S_KOFF)], [m0(b + 4 * PS)], [dma(V_KVO2, SRD_K, S_KOFF)],
            [m0(b + HALF)], [dma(V_VVO, SRD_V, S_VOFF)], [m0(b + HALF + 4 * PS)], [dma(V_VVO2, SRD_V, S_VOFF)],
            ["s_add_u32 %s, %s, %s" % (s(S_KOFF), s(S_KOFF), s(S_BLK))], ["s_add_u32 %s, %s, %s" % (s(S_VOFF), s(S_VOFF), s(S_BLK))]]
def stream_flat(slot):
    out = []
    for g in stream_groups(slot):
        out += g
        if " m0," in g[0]: out.append("s_nop 0")
    return out
def kblock_flat(ldsoff):
    return [m0(ldsoff), "s_nop 0", dma(V_KVO, SRD_K, S_KOFF), m0(ldsoff + 4 * PS), "s_nop 0", dma(V_KVO2, SRD_K, S_KOFF), sadd(S_KOFF, S_KOFF, BLK)]
def qgroup(g):
    out = []
    for n in range(4 * g, 4 * g + 4):
        out += [m0(n * PS, S_PRIV), "s_nop 0", dma(V_KVO, SRD_F, S_T4), sadd(S_T4, S_T4, 16384)]
    return out

COST = {"ds_read_b128": 12, "ds_read_b64_tr_b16": 8, "buffer_load_dwordx4": 12, "v_exp_f32": 8}
def cost(op): return COST.get(op.split()[0], 4)

def aux_ops():
    return ["s_mov_b32 m0, %s" % s(S_QM), dma(V_KVO, SRD_F, S_T4),
            sadd(S_QM, S_QM, PS), "s_min_u32 %s, %s, %s" % (s(S_QM), s(S_QM), s(S_QME)),
            sadd(S_T4, S_T4, 16384), "s_min_u32 %s, %s, %s" % (s(S_T4), s(S_T4), s(S_T4E))]
def iteration(A, u, N, aux=False):
    nxt, cur = S_BUF[u & 1], S_BUF[1 - (u & 1)]
    G = 17 * N
    ms = [qk_mfma(nxt, i) for i in range(8 * N)]
    for q2 in range(N):
        ms += [pv_mfma(cur, q2, db) for db in range(8)] + [sum_mfma(cur, q2)]
    va = [[] for _ in range(G)]; nv = [[] for _ in range(G)]
    for p, op in softmax_ops(cur, N):
        if p >= G: va[p - G].append(op)
    for p, op in softmax_ops(nxt, N):
        if p < G: va[p].append(op)
    RAD = int(optn('rad', N, '1'))
    load = lambda g: sum(map(cost, va[g] + nv[g]))
    def place(items, lo, hi, strict=False):
        last = lo - (1 if strict else 0)
        pos = []
        for i, it in enumerate(items):
            t = lo + (i + 0.5) * (hi - lo + 1) / len(items)
            mn = last + (1 if strict else 0)
            mx = hi - ((len(items) - 1 - i) if strict else 0)
            cand = [g for g in range(int(t) - RAD, int(t) + RAD + 1) if mn <= g <= mx] or [min(max(int(t), mn), mx)]
            if it.startswith("s_") and optn("salux", N, "0") == "1":
                g = min(cand, key=lambda g: (len(nv[g]) > 0, not any("exp" in x for x in va[g]), abs(g + 0.5 - t)))
            else:
                g = min(cand, key=lambda g: (load(g), abs(g + 0.5 - t)))
            nv[g].append(it); last = g; pos.append(g)
        return pos
    H = 8 * N
    vpos = place([v_read(i >> 1, i & 1, u * SZ) for i in range(16)], int(optn('vbeg', N, '0')), H + int(optn('vend', N, '-1' if N == 2 else '-3')))
    kpos = place([k_read(f, u * SZ) for f in range(8)], max(H + int(optn('kbeg', N, '0')), vpos[-1]), G - int(optn('kend', N, '7')))
    sg = stream_groups((u + 3) % 4)
    dlo, dhi = [int(x) for x in optn("dw", N, {2: "1,15", 3: "24,43", 4: "33,56"}[N]).split(",")]
    ax = aux_ops() if aux else []
    dpos = place(ax[:2] + [g[0] for g in sg[:8]], dlo, dhi, True)
    if aux: place(ax[2:], dpos[1] + 1, G - 8, True)
    tailp = [int(x) for x in optn("tp", N, "6,5,4,3,2").split(",")]
    nv[G - tailp[0]] += sg[8]; nv[G - tailp[1]] += sg[9]
    nv[G - tailp[2]].append("s_sub_u32 %s, %s, 1" % (s(S_CNT), s(S_CNT)))
    nv[G - tailp[3]].append("s_cmp_le_u32 %s, %s" % (s(S_CNT), s(S_HT)))
    if TL: nv[G - tailp[4]].append("s_memrealtime s[94:95]" if opt("tlrt") else "s_memtime s[94:95]")
    nv[G - tailp[4]].append("s_waitcnt vmcnt(%d) lgkmcnt(0)" % (10 if aux else 8))
    assert dhi < G - tailp[0] and kpos[-1] < G - tailp[4]
    covered = -1
    for g in range(G):
        if H <= g < H + 8 and g - H > covered:
            db = g - H
            while db + 1 < 8 and vpos[2 * db + 3] <= g - int(optn("wd", N, "4")): db += 1
            covered = db
            assert vpos[2 * db + 1] < g
            younger = sum(1 for p in vpos[2 * db + 2:] if p < g) + sum(1 for p in kpos if p < g)
            A("s_waitcnt lgkmcnt(%d)" % younger)
        A(ms[g]); A.ext(nv[g]); A.ext(va[g])

def mask_ops(N=4):
    o = ["v_sub_u32 %s, %s, %s" % (v(V_U), s(S_NV), v(V_G4)), "v_mov_b32 %s, 0xff800000" % v(V_U + 1)]
    prs = ["vcc", s(S_T0, 2)]
    for r in range(8 + 1):
        if r < 8: o.append("v_cmp_lt_i32 %s, %d, %s" % (prs[r % 2], 16 * (r >> 2) + (r & 3), v(V_U)))
        if r == 0: o.append("s_nop 0")
        if r >= 1:
            for q2 in range(N):
                x = CI + 8 * q2 + r - 1
                o.append("v_cndmask_b32 %s, %s, %s, %s" % (v(x), v(V_U + 1), v(x), prs[(r - 1) % 2]))
    o.append("s_nop 1")
    return o
def rowmax(b, N, first):
    o = []
    if first:
        for q2 in range(N): o.append("v_max3_f32 %s, %s, %s, %s" % (v(V_T + q2), v(b + 8 * q2), v(b + 8 * q2 + 1), v(b + 8 * q2 + 2)))
        for i in (3, 5):
            for q2 in range(N): o.append("v_max3_f32 %s, %s, %s, %s" % (v(V_T + q2), v(V_T + q2), v(b + 8 * q2 + i), v(b + 8 * q2 + i + 1)))
        for q2 in range(N): o.append("v_max_f32 %s, %s, %s" % (v(V_T + q2), v(V_T + q2), v(b + 8 * q2 + 7)))
    else:
        for i in range(0, 8, 2):
            for q2 in range(N): o.append("v_max3_f32 %s, %s, %s, %s" % (v(V_T + q2), v(V_T + q2), v(b + 8 * q2 + i), v(b + 8 * q2 + i + 1)))
    return o
def crossmax(N):
    o = []
    for w in (32, 16):
        o += ["v_mov_b32 %s, %s" % (v(V_U + q), v(V_T + q)) for q in range(N)] + (["s_nop 0"] if N == 2 else [])
        o += ["v_permlane%d_swap_b32 %s, %s" % (w, v(V_T + q), v(V_U + q)) for q in range(N)]
        o += ["v_max_f32 %s, %s, %s" % (v(V_T + q), v(V_T + q), v(V_U + q)) for q in range(N)]
    return o
def ps_mfmas(g):
    d = v(O + 16 * g, 16)
    return ["%s %s, %s, %s, %s" % (M32, d, a(A_PS + m, 4), a(A_QR + 8 * g + 4 * fr, 4), "0" if k == 0 else d) for k, (m, fr) in enumerate(((0, 0), (4, 1), (8, 0), (12, 1)))]
def ps_cvts(g):
    b = O + 16 * g
    o = ["v_cvt_pk_bf16_f32 %s, %s, %s" % (v(b + i), v(b + 2 * i), v(b + 2 * i + 1)) for i in range(8)]
    o += ["v_accvgpr_write_b32 %s, %s" % (a(A_Q + 8 * g + i), v(b + i)) for i in range(8)]
    return o
def ozero(g): return "%s %s, %s, %s, 0" % (M32, v(O + 16 * g, 16), v(V_Z, 4), v(V_Z, 4))
def lzero(): return "%s %s, %s, %s, 0" % (M32, a(A_LS, 16), v(V_Z, 4), v(V_Z, 4))

nst = [0]
def stamp(A, idx, first_only=False):
    if STAMPS:
        if first_only:
            nst[0] += 1
            A("s_cmp_eq_u32 %s, 0" % s(S_TI)); A("s_cbranch_scc0 L_st%d" % nst[0])
        A("s_memtime %s" % s(S_ST + 2 * idx, 2))
        if first_only: A.label("L_st%d" % nst[0])
def tl_pre(A):
    if TL: A("s_memrealtime s[94:95]" if opt("tlrt") else "s_memtime s[94:95]")
def tl_post(A):
    if TL:
        A("s_mov_b32 m0, s92"); A("s_add_u32 s92, s92, 1"); A("v_writelane_b32 %s, s94, m0" % v(V_TL))
def tl(A):
    if TL:
        tl_pre(A); A("s_waitcnt lgkmcnt(0)"); tl_post(A)

def decode(word):
    return ["s_and_b32 %s, %s, 0x1fff" % (s(S_T0), s(word)),
            "s_bfe_u32 %s, %s, 0xa000d" % (s(S_T1), s(word)),
            "s_add_u32 %s, %s, %s" % (s(S_T1), s(S_T0), s(S_T1)),
            "s_lshl_b32 %s, %s, 12" % (s(S_NNR), s(S_T1)),
            "s_bfe_u32 %s, %s, 0x1001e" % (s(S_T1), s(word)),
            "s_lshl_b32 %s, %s, 8" % (s(S_T1), s(S_T1)),
            "s_add_u32 %s, %s, %s" % (s(S_T1), s(S_T1), s(S_HOFF)),
            "s_lshl_b32 %s, %s, 12" % (s(S_NKB), s(S_T0)),
            "s_add_u32 %s, %s, %s" % (s(S_NKB), s(S_NKB), s(S_T1)),
            "s_bfe_u32 %s, %s, 0x3001b" % (s(S_NNQ), s(word)),
            "s_bfe_u32 %s, %s, 0x40017" % (s(S_T1), s(word)),
            "s_lshl_b32 %s, %s, 2" % (s(S_T1), s(S_T1)),
            "s_mul_i32 %s, %s, %s" % (s(S_T0), s(S_W), s(S_NNQ)),
            "s_add_u32 %s, %s, %s" % (s(S_T1), s(S_T1), s(S_T0)),
            "s_lshl_b32 %s, %s, 16" % (s(S_NQB), s(S_T1)),
            "s_add_u32 %s, %s, %s" % (s(S_NQB), s(S_NQB), s(S_NKB)),
            "s_lshl_b32 %s, %s, 14" % (s(S_T0), s(S_W)),
            "s_sub_u32 %s, %s, %s" % (s(S_T4), s(S_NQB), s(S_T0)),
            smov2(SRD_F, P_Q), smov(SRD_F + 2, S_NNR)]
def task_setup():
    return [smov(S_KBASE, S_NKB), smov(S_NR, S_NNR), smov(SRD_O + 2, S_NNR), smov(S_QOFF, S_NQB), smov(S_NQ, S_NNQ),
            "s_bfe_u32 %s, %s, 0xa000d" % (s(S_L), s(S_TASK)),
            sadd(S_N, S_L, 31), "s_lshr_b32 %s, %s, 5" % (s(S_N), s(S_N)),
            "s_sub_u32 %s, %s, 1" % (s(S_CNT), s(S_N)),
            "s_lshl_b32 %s, %s, 5" % (s(S_T1), s(S_CNT)),
            "s_sub_u32 %s, %s, %s" % (s(S_NV), s(S_L), s(S_T1)),
            "s_mov_b32 %s, 0" % s(S_FB),
            smov(S_QM, S_PRIV)] + decode(S_TASK + 1) + ["s_mov_b32 %s, 4" % s(S_HT)] + (["s_cmp_eq_u32 %s, 0" % s(S_NNR), "s_cselect_b32 %s, 0, 4" % s(S_HT)] if opt("norewarm") else []) + [
            "s_lshl_b32 %s, %s, 2" % (s(S_T0), s(S_NNQ)), "s_max_u32 %s, %s, 1" % (s(S_T0), s(S_T0)), "s_sub_u32 %s, %s, 1" % (s(S_T0), s(S_T0)),
            "s_mul_i32 %s, %s, %d" % (s(S_QME), s(S_T0), PS), "s_add_u32 %s, %s, %s" % (s(S_QME), s(S_QME), s(S_QM)),
            "s_lshl_b32 %s, %s, 14" % (s(S_T4E), s(S_T0)), "s_add_u32 %s, %s, %s" % (s(S_T4E), s(S_T4E), s(S_T4))]

A = Asm()
A.label(NAME)
A("s_cmp_ge_u32 s2, %d" % GRID)
A("s_cbranch_scc1 L_end")
if STAMPS: A("s_memrealtime %s" % s(S_ST + 12, 2))
stamp(A, 0)
A("s_load_dwordx4 s[64:67], s[0:1], 0")
A("s_load_dwordx2 s[68:69], s[0:1], 16")
A("s_load_dwordx2 s[70:71], s[0:1], 32")
if STAMPS: A("s_load_dwordx2 s[72:73], s[0:1], 48")
A("s_getpc_b64 s[74:75]")
A.label("L_pc")
A("s_lshr_b32 s76, s2, 3")
A("s_lshl_b32 s76, s76, 4")
A("s_add_u32 s78, s74, L_table-L_pc")
A("s_addc_u32 s79, s75, 0")
A("s_load_dwordx4 %s, s[78:79], s76" % s(S_TASK, 4))
A("v_lshlrev_b32 %s, 7, v0" % v(V_T4))
A("v_cmp_gt_u32 vcc, L_late-L_pc, %s" % v(V_T4))
A("v_lshrrev_b32 %s, 6, v0" % v(V_U))
A("v_and_b32 v22, 63, v0")
A("v_cndmask_b32 %s, 0, %s, vcc" % (v(V_T4), v(V_T4)))
A("v_readfirstlane_b32 %s, %s" % (s(S_W), v(V_U)))
A("global_load_dword %s, %s, s[74:75]" % (v(V_T4), v(V_T4)))
G, P16, R4, X0, X1, X2 = 16, 17, 18, 19, 20, 21
A("v_lshlrev_b32 %s, 7, v22" % v(V_T5))
A("v_lshrrev_b32 %s, 4, v22" % v(G))
A("v_and_b32 %s, 15, v22" % v(P16))
A("v_and_b32 %s, 3, v22" % v(R4))
def fswz(dst, src, tmp):
    A("v_and_b32 %s, 2, %s" % (v(tmp), v(src)))
    A("v_and_b32 %s, 1, %s" % (v(dst), v(src)))
    A("v_lshl_add_u32 %s, %s, 2, %s" % (v(dst), v(tmp), v(dst)))
fswz(X0, G, X1)
A("v_xor_b32 %s, %s, %s" % (v(X0), v(X0), v(P16)))
A("s_lshl_b32 %s, %s, 2" % (s(S_T0), s(S_W)))
A("v_add_u32 %s, %s, %s" % (v(X1), s(S_T0), v(G)))
A("v_lshlrev_b32 %s, 12, %s" % (v(X1), v(X1)))
A("v_lshl_add_u32 %s, %s, 4, %s" % (v(V_KVO), v(X0), v(X1)))
A("v_add_u32 %s, %d, %s" % (v(V_KVO2), 16 * 4096, v(V_KVO)))
A("v_lshl_add_u32 %s, %s, 3, %s" % (v(X1), v(G), s(S_W)))
A("v_lshlrev_b32 %s, 12, %s" % (v(X1), v(X1)))
A("v_lshl_add_u32 %s, %s, 4, %s" % (v(V_VVO), v(P16), v(X1)))
A("v_add_u32 %s, %d, %s" % (v(V_VVO2), 4 * 4096, v(V_VVO)))
A("s_mul_i32 %s, %s, %d" % (s(S_WBASE), s(S_W), PS))
A("s_mov_b32 %s, %d" % (s(S_BLK), BLK))
A("s_mul_i32 %s, %s, %d" % (s(S_PRIV), s(S_W), SZ))
A(sadd(S_PRIV, S_PRIV, PRIV))
A("s_and_b32 %s, s2, 7" % s(S_HOFF))
A("s_lshl_b32 %s, %s, 9" % (s(S_HOFF), s(S_HOFF)))
A("s_mov_b32 %s, 0" % s(S_TI))
A("s_mov_b32 %s, 0x%08x" % (s(S_C), struct.unpack("<I", struct.pack("<f", (128 ** -0.5) * math.log2(math.e)))[0]))
for srd in (SRD_K, SRD_F, SRD_V, SRD_O):
    A("s_mov_b32 %s, 0x20000" % s(srd + 3))
if TL:
    A("s_mov_b32 s92, 0"); A("v_mov_b32 %s, 0" % v(V_TL))
A("s_waitcnt lgkmcnt(0)")
if opt("tls"): tl(A)
A.ext(decode(S_TASK))
for srd, src in ((SRD_K, P_K), (SRD_V, P_V), (SRD_O, P_O)):
    A(smov2(srd, src))
for srd in (SRD_K, SRD_V): A(smov(srd + 2, S_NNR))
if STAMPS:
    A("s_mov_b32 %s, s72" % s(SRD_W)); A("s_mov_b32 %s, s73" % s(SRD_W + 1))
    A("s_mov_b32 %s, 0x1000000" % s(SRD_W + 2)); A("s_mov_b32 %s, 0x20000" % s(SRD_W + 3))
A(smov(S_KOFF, S_NKB)); A(smov(S_VOFF, S_NKB))
kb = kblock_flat(HALF)
SS = int(optv("ss", "2"))
def slowstart(tag):
    A("s_bitcmp1_b32 %s, 31" % s(S_TASK)); A("s_cbranch_scc0 L_ss%s" % tag)
    A("s_waitcnt vmcnt(0)")
    A.label("L_ss%s" % tag)
A.ext(kb[:3])
if SS >= 2: slowstart("a")
A.ext(kb[3:])
if SS >= 1: slowstart("b")
A.ext(kblock_flat(0))
A.ext(qgroup(0)); A.ext(qgroup(1))
if opt("tls"): tl(A)
fswz(X0, R4, X1)
A("v_xor_b32 %s, %s, %s" % (v(X0), v(X0), v(G)))
A("v_lshrrev_b32 %s, 2, %s" % (v(X2), v(P16)))
A("v_mul_u32_u24 %s, %d, %s" % (v(X1), PS, v(X2)))
A("v_lshl_add_u32 %s, %s, 8, %s" % (v(X1), v(R4), v(X1)))
A("v_lshl_add_u32 %s, %s, 4, %s" % (v(V_KA0), v(X0), v(X1)))
A("v_xor_b32 %s, 8, %s" % (v(X0), v(X0)))
A("v_lshl_add_u32 %s, %s, 4, %s" % (v(V_KA1), v(X0), v(X1)))
A("v_add_u32 %s, %s, %s" % (v(V_QA0), s(S_PRIV), v(V_KA0)))
A("v_add_u32 %s, %s, %s" % (v(V_QA1), s(S_PRIV), v(V_KA1)))
A("v_and_b32 %s, 1, %s" % (v(X0), v(G)))
A("v_lshl_add_u32 %s, %s, 2, %s" % (v(X0), v(X0), v(X2)))
A("v_mul_u32_u24 %s, %d, %s" % (v(X0), PS, v(X0)))
A("v_lshrrev_b32 %s, 1, %s" % (v(X1), v(G)))
A("v_lshl_add_u32 %s, %s, 8, %s" % (v(X0), v(X1), v(X0)))
A("v_lshl_add_u32 %s, %s, 3, %s" % (v(X0), v(R4), v(X0)))
A("v_add_u32 %s, %d, %s" % (v(V_VA), HALF, v(X0)))
A("v_mul_u32_u24 %s, 272, %s" % (v(X0), v(P16)))
A("v_lshl_add_u32 %s, %s, 3, %s" % (v(X0), v(G), v(X0)))
A("v_add_u32 %s, %s, %s" % (v(V_EW), s(S_PRIV), v(X0)))
A("v_mul_u32_u24 %s, 272, %s" % (v(X0), v(G)))
A("v_lshl_add_u32 %s, %s, 4, %s" % (v(X0), v(P16), v(X0)))
A("v_add_u32 %s, %s, %s" % (v(V_ER), s(S_PRIV), v(X0)))
A("v_lshlrev_b32 %s, 12, %s" % (v(X0), v(G)))
A("v_lshl_add_u32 %s, %s, 4, %s" % (v(V_SO), v(P16), v(X0)))
A("v_lshlrev_b32 %s, 2, %s" % (v(V_G4), v(G)))
A("v_mov_b32 %s, 0x3f803f80" % v(X0))
for i in range(4):
    A("v_accvgpr_write_b32 %s, %s" % (a(A_ONE + i), v(X0)))
    A("v_mov_b32 %s, 0" % v(V_Z + i))
LN = 24
A("v_bfe_u32 %s, v22, 2, 1" % v(X0))
A("v_lshrrev_b32 %s, 5, v22" % v(X1))
A("v_xor_b32 %s, %s, %s" % (v(X0), v(X0), v(X1)))
A("v_bfe_u32 %s, v22, 3, 2" % v(X1))
A("v_bfe_u32 %s, v22, 1, 1" % v(X2))
A("v_lshl_add_u32 %s, %s, 1, %s" % (v(X1), v(X1), v(X2)))
A("v_lshl_add_u32 %s, %s, 4, %s" % (v(X1), v(X0), v(X1)))
A("v_and_b32 %s, 1, v22" % v(X2))
A("v_lshlrev_b32 %s, 4, %s" % (v(X2), v(X2)))
A("v_mov_b32 %s, 0x3e03" % v(LN + 1))
A("v_mov_b32 %s, 0xb9d8" % v(LN + 2))
A("v_lshlrev_b32 %s, %s, %s" % (v(LN + 1), v(X2), v(LN + 1)))
A("v_lshlrev_b32 %s, %s, %s" % (v(LN + 2), v(X2), v(LN + 2)))
for r in range(8):
    A("v_cmp_eq_u32 vcc, %d, %s" % (r, v(X1)))
    A("s_nop 1")
    A("v_cndmask_b32 %s, 0, %s, vcc" % (v(LN + 3), v(LN + 1)))
    A("v_cndmask_b32 %s, 0, %s, vcc" % (v(LN + 4), v(LN + 2)))
    A("v_accvgpr_write_b32 %s, %s" % (a(A_PS + r), v(LN + 3)))
    A("v_accvgpr_write_b32 %s, %s" % (a(A_PS + 8 + r), v(LN + 4)))
if opt("tls"): tl(A)
for g in (2, 3):
    A("s_cmp_le_u32 %s, %d" % (s(S_NNQ), g)); A("s_cbranch_scc1 L_qdone")
    A.ext(qgroup(g))
A.label("L_qdone")
if opt("tls"): tl(A)
A.ext(task_setup())
MAXT = max(len(x) for x in plan)
for t in range(MAXT): A.ext(onm_ops(t))
A(lzero())
Fs = sorted(needF)
for N in Fs[:-1]:
    A("s_cmp_eq_u32 %s, %d" % (s(S_NQ), N)); A("s_cbranch_scc1 L_f%d" % N)
def qnext_items():
    it = []
    for g in range(4):
        q = qgroup(g)
        for k in range(4):
            pre = []
            if g >= 2 and k == 0:
                pre = ["s_cmp_le_u32 %s, %d" % (s(S_NNQ), g), "s_cselect_b32 %s, 0, %s" % (s(SRD_F + 2), s(SRD_F + 2))]
            it.append(pre + [q[4 * k]]); it.append([q[4 * k + 2], q[4 * k + 3]])
    return it
def weave(va, items, first=0):
    out = []
    step = max(1, (len(va) - first) // (len(items) + 1))
    items = list(items)
    for i, l in enumerate(va):
        out.append(l)
        if i >= first and (i - first) % step == 0 and items: out += items.pop(0)
    assert not items
    return out
def pvalu(b, N, raw):
    va = rowmax(b, N, True) + crossmax(N)
    if raw: va += ["v_mul_f32 %s, %s, %s" % (v(V_T + q), s(S_C), v(V_T + q)) for q in range(N)]
    va += ["v_sub_f32 %s, 0, %s" % (v(CI + 8 * q), v(V_T + q)) for q in range(N)]
    for i in range(8 * N):
        if raw: va.append("v_fma_f32 %s, %s, %s, -%s" % (v(b + i), v(b + i), s(S_C), v(V_T + (i >> 3))))
        else: va.append("v_sub_f32 %s, %s, %s" % (v(b + i), v(b + i), v(V_T + (i >> 3))))
        if 1 <= (i & 7) < 4: va.append("v_mov_b32 %s, %s" % (v(CI + i), v(CI + (i & ~7))))
    va += flat_sm([op for p, op in softmax_ops(b, N) if p < 17 * N])
    return va
def first(A, N):
    qr = q_reads()
    issued = 0
    S1 = int(optv("s1at", "1"))
    for q in range(N):
        if q == max(0, N - S1):
            A.ext(stream_flat(1)); issued = 4
        if opt("tls"): tl(A)
        A("s_waitcnt vmcnt(%d)" % (issued + 4 * (N - 1 - q)))
        if opt("tls"): tl(A)
        A.ext(qr[4 * q:4 * q + 4])
        A("s_waitcnt lgkmcnt(2)")
        A.ext(ps_mfmas(2 * q))
        A("s_waitcnt lgkmcnt(0)")
        A.ext(ps_mfmas(2 * q + 1))
        if q == N - 1:
            A("s_barrier")
            tl(A)
            stamp(A, 1, True)
            for f in range(8): A(k_read(f, HALF))
        else:
            A("s_nop 7")
        A.ext(ps_cvts(2 * q)); A(ozero(2 * q))
        A.ext(ps_cvts(2 * q + 1)); A(ozero(2 * q + 1))
    b = S_BUF[0]
    A("s_waitcnt lgkmcnt(0)")
    sg = stream_groups(2)
    for i in range(8 * N):
        m_ = qk_mfma(b, i)
        if (i & 3) == 0: m_ = m_[:m_.rindex(",")] + ", 0"
        A(m_)
        if i < 10: A.ext(sg[i])
        if i >= 8 * N - 8: A(k_read(i - (8 * N - 8), 0))
    A("s_nop 5")
    A.ext(weave(pvalu(b, N, False), [[x] for x in aux_ops()] + stream_groups(3)))
    tl_pre(A)
    A("s_waitcnt vmcnt(9) lgkmcnt(0)")
    if (N, True) in needN:
        A("s_cmp_lg_u32 %s, 0" % s(S_NNR))
        A("s_cbranch_scc1 L_itb%dx_1" % N)
    A("s_branch L_itb%d%s_1" % (N, "" if (N, False) in needN else "x"))
first(A, Fs[-1])
for N in Fs[:-1]:
    A.label("L_f%d" % N)
    first(A, N)
def dispatchP(A, u):
    Ns = sorted(N for (p, N) in needP if p == u)
    for N in Ns[:-1]:
        A("s_cmp_eq_u32 %s, %d" % (s(S_NQ), N)); A("s_cbranch_scc1 L_p%d_%d" % (N, u))
    A("s_branch L_p%d_%d" % (Ns[-1], u))

def pphase(A, u, N):
    b = S_BUF[u & 1]
    mv = ["v_accvgpr_mov_b32 %s, %s" % (a(A_ONM + i), a(A_ONM + 4 + i)) for i in range(4 * (MAXT - 1))]
    for i in range(8 * N):
        m_ = qk_mfma(b, i)
        if (i & 3) == 0: m_ = m_[:m_.rindex(",")] + ", 0"
        A(m_)
        if i >= 8 * N - 8: A(k_read(i - (8 * N - 8), u * SZ))
        elif mv: A(mv.pop(0))
    assert not mv
    A(lzero())
    A("s_nop 4")
    A.ext(pvalu(b, N, False))
    tl_pre(A)
    A("s_waitcnt lgkmcnt(0)")

for (N, aux) in sorted(needN, reverse=True):
    X = "%d%s" % (N, "x" if aux else "")
    A(".p2align 6")
    phase = int(optv("al", "1"))
    for _ in range(phase): A("s_nop 0")
    for u in (1, 2, 3, 0):
        A.label("L_itb%s_%d" % (X, u))
        tl_post(A)
        A("s_barrier")
        i0 = len(A.lines)
        iteration(A, u, N, aux)
        def isz(l):
            op = l.split()[0]
            if op.startswith(("v_mfma", "ds_", "buffer_", "v_cvt")): return 8
            if op == "s_add_u32" and l.split(",")[-1].strip().isdigit() and int(l.split(",")[-1]) > 64: return 8
            return 4
        phase = (phase + (8 + (20 if TL else 0) + sum(isz(l) for l in A.lines[i0:])) // 4) % 8
        k = {0: 1, 7: 2}.get(phase, 0)
        ex = [i for i in range(i0, len(A.lines)) if A.lines[i].startswith("v_exp_f32 ")]
        for j in range(k):
            i = ex[(2 * j + 1) * len(ex) // (2 * k)]
            A.lines[i] = A.lines[i].replace("v_exp_f32 ", "v_exp_f32_e64 ")
        phase = (phase + k) % 8
        if u != 0: A("s_cbranch_scc1 L_sp%s_%d" % (X, (u + 1) % 4))
        else: A("s_cbranch_scc0 L_itb%s_1" % X)
    for u in (1, 2, 3, 0):
        A.label("L_sp%s_%d" % (X, u))
        mine = [x for x in needE3 if x[:2] == (u, N) and (x[2] > 0) == aux]
        if mine:
            A("s_cmp_eq_u32 %s, 0" % s(S_CNT))
            A("s_cbranch_scc1 L_e%s_%d" % (X, u))
        if aux:
            A("s_cmp_eq_u32 %s, 2" % s(S_CNT))
            A("s_cbranch_scc1 L_sv%s_%d" % (X, u))
            A(smov(SRD_K + 2, S_NNR)); A(smov(S_KOFF, S_NKB))
        A("s_mov_b32 %s, %d" % (s(S_HT), 2 if aux else 0))
        if mine:
            A("s_mov_b32 %s, L_e%s_%d-L_pc" % (s(S_T0), X, u))
            if aux:
                for w_, lab in ((1, "L_e%s_%d-L_pc+8192" % (X, u)), (2, "L_adv%d-L_pc" % u)):
                    A("s_cmp_eq_u32 %s, %d" % (s(S_W), w_))
                    A("s_cselect_b32 %s, %s, %s" % (s(S_T0), lab, s(S_T0)))
            A("v_add_u32 %s, %s, %s" % (v(V_U), s(S_T0), v(V_T5)))
            A("v_min_u32 %s, L_table-L_pc, %s" % (v(V_U), v(V_U)))
            A("global_load_dword %s, %s, s[74:75]" % (v(V_T4), v(V_U)))
        A("s_branch L_itb%s_%d" % (X, u))
        if aux:
            A.label("L_sv%s_%d" % (X, u))
            A(smov(SRD_V + 2, S_NNR)); A(smov(S_VOFF, S_NKB)); A("s_mov_b32 %s, 0" % s(S_HT))
            A("s_branch L_itb%s_%d" % (X, u))
A.label("L_late")

def norm_q2(q2):
    out = []
    for j in range(8 + 2):
        if j < 8:
            r = oreg(q2, j)
            out += ["v_mul_f32 %s, %s, %s" % (v(r + i), v(V_I + q2), v(r + i)) for i in range(4)]
        if 1 <= j < 9:
            r = oreg(q2, j - 1)
            out.append("v_cvt_pk_bf16_f32 %s, %s, %s" % (v(r), v(r), v(r + 1)))
            out.append("v_cvt_pk_bf16_f32 %s, %s, %s" % (v(r + 1), v(r + 2), v(r + 3)))
        if j >= 2:
            r = oreg(q2, j - 2)
            out.append("ds_write_b64 %s, %s offset:%d" % (v(V_EW), v(r, 2), 16 * 272 * q2 + 32 * (j - 2)))
    return out
def lfinal(N):
    o = ["v_accvgpr_read_b32 %s, %s" % (v(V_T + q), a(A_LS + 4 * q)) for q in range(N)]
    for q in range(N):
        o += ["v_cmp_nge_f32 vcc, 0x44800000, %s" % v(V_T + q), "v_rcp_f32 %s, %s" % (v(V_I + q), v(V_T + q)), "s_nop 0",
              "s_mov_b64 %s, vcc" % s(S_BAD, 2) if q == 0 else "s_or_b64 %s, %s, vcc" % (s(S_BAD, 2), s(S_BAD, 2))]
    o += [smov(S_T2, S_QOFF)]
    return o
def readback(k, reg): return "ds_read_b128 %s, %s offset:%d" % (v(reg, 4), v(V_ER), 4 * 272 * k)
def store(reg, w):
    return ["s_waitcnt lgkmcnt(%d)" % w,
            "buffer_store_dwordx4 %s, %s, %s, %s offen%s" % (v(reg, 4), v(V_SO), s(SRD_O, 4), s(S_T2), STMOD),
            sadd(S_T2, S_T2, 16384)]
def psg(g, dst):
    d = v(dst, 16)
    mm = ["%s %s, %s, %s, %s" % (M32, d, a(A_PS + m, 4), a(A_QR + 8 * g + 4 * fr, 4), "0" if k == 0 else d) for k, (m, fr) in enumerate(((0, 0), (4, 1), (8, 0), (12, 1)))]
    cv = ["v_cvt_pk_bf16_f32 %s, %s, %s" % (v(dst + i), v(dst + 2 * i), v(dst + 2 * i + 1)) for i in range(8)]
    cv += ["v_accvgpr_write_b32 %s, %s" % (a(A_Q + 8 * g + i), v(dst + i)) for i in range(8)]
    return mm, cv
def ephase(A, u, N, NX):
    cur, nxt = S_BUF[1 - (u & 1)], S_BUF[u & 1]
    RB = [CI, CI + 16, CI, CI + 16]
    rd = []
    for db in range(8): rd += [v_read(db, 0, u * SZ), v_read(db, 1, u * SZ)]
    sm = flat_sm([op for p, op in softmax_ops(cur, N) if p >= 17 * N])
    late_q = {(int(op.split()[1].strip("v,")) - cur) >> 3 for op in sm if op.startswith("v_")}
    sums = [sum_mfma(cur, q, A_ONM) for q in range(N) if q not in late_q]
    while rd or sm:
        if sums: A(sums.pop(0))
        if rd: A(rd.pop(0))
        if sm: A(sm.pop(0))
    A("s_nop 1")
    for q in sorted(late_q): A(sum_mfma(cur, q, A_ONM))
    qn = q_reads(NX)
    sg = stream_groups((u + 3) % 4) if NX else [[]] * 10
    if opt("tlx"): tl(A)
    A("s_waitcnt lgkmcnt(8)")
    for db in range(4):
        A(pv_mfma(cur, 0, db)); A.ext(sg[db])
    A("s_waitcnt lgkmcnt(0)")
    for db in range(4, 8):
        A(pv_mfma(cur, 0, db)); A.ext(sg[db]); A.ext(qn[NX * (db - 4):NX * (db - 3)])
    A.ext(sg[8] + sg[9])
    A.ext(lfinal(N))
    A("s_cbranch_scc1 L_es%d_%d" % (N, u & 1))
    if NX: A("s_waitcnt vmcnt(8) lgkmcnt(0)")
    ex = []
    prev = None
    for g in range(2 * NX):
        mm, cv = psg(g, nxt + 16 * (g & 1))
        ex += [[x] for x in mm]
        if prev: ex += [prev[i:i + 4] for i in range(0, 16, 4)]
        prev = cv
    body = []
    for q2 in range(N):
        if opt("tlx"): body.append("#TL")
        nb = norm_q2(q2)
        pv = [pv_mfma(cur, q2 + 1, db) for db in range(8)] if q2 + 1 < N else []
        nw = 0; kst = 0
        for i, l in enumerate(nb):
            if i % 4 == 0 and pv: body.append(pv.pop(0))
            body.append(l)
            if l.startswith("ds_write"):
                nw += 1
                if q2 > 0 and nw >= 2 and kst < 4:
                    body += store(RB[q2 - 1] + 4 * kst, nw + 3 - kst); kst += 1
                if q2 > 0 and nw >= 7 and q2 - 1 < NX: body.append(ozero(2 * (q2 - 1) + nw - 7))
        for k in range(4): body.append(readback(4 * q2 + k, RB[q2] + 4 * k))
    step = max(1, len(body) // (len(ex) + 1))
    for i, l in enumerate(body):
        if l == "#TL": tl(A)
        else: A(l)
        if i % step == step - 1 and ex: A.ext(ex.pop(0))
    for e_ in ex: A.ext(e_)
    if opt("tlx"): tl(A)
    zs = [ozero(g) for g in range(2 * (N - 1), 2 * NX)]
    for k in range(4):
        A.ext(store(RB[N - 1] + 4 * k, 3 - k))
        if zs: A(zs.pop(0))
    A.ext(zs)
    if prev: A.ext(prev)
    if opt("tlx"): tl(A)
    A("s_branch %s" % ("L_adv%d" % u if NX else "L_fin"))
for (u, N, aux) in sorted({(x[0], x[1], x[2] > 0) for x in needE3}, key=lambda x: (-x[1], x[0])):
    A.label("L_e%d%s_%d" % (N, "x" if aux else "", u))
    stamp(A, 2, True)
    A("s_mov_b32 %s, %d" % (s(S_PH), u))
    tl_post(A)
    A("s_barrier")
    NXs = sorted(x[2] for x in needE3 if x[:2] == (u, N) and (x[2] > 0) == aux)
    for NX in NXs[1:]:
        A("s_cmp_eq_u32 %s, %d" % (s(S_NNQ), NX)); A("s_cbranch_scc1 L_e%d_%d_%d" % (N, u, NX))
    for NX in NXs:
        A.label("L_e%d_%d_%d" % (N, u, NX))
        ephase(A, u, N, NX)
for u in range(4):
    A.label("L_adv%d" % u)
    stamp(A, 3, True)
    if any(p == u for (p, N) in needP):
        A("s_cmp_eq_u32 %s, 0" % s(S_TASK + 1))
        A("s_cbranch_scc1 L_fin")
        A(smov(S_TASK, S_TASK + 1)); A(smov(S_TASK + 1, S_TASK + 2)); A("s_mov_b32 %s, 0" % s(S_TASK + 2))
        A(sadd(S_TI, S_TI, 1))
        A.ext(task_setup())
        tl(A)
        dispatchP(A, u)
    else:
        A("s_branch L_fin")
    for N in sorted(N for (p, N) in needP if p == u):
        A.label("L_p%d_%d" % (N, u))
        pphase(A, u, N)
        A("s_branch L_itb%d_%d" % (N, (u + 1) % 4))
A.label("L_fin")
if STAMPS:
    A("s_waitcnt vmcnt(0)")
    stamp(A, 4)
    A("s_memrealtime %s" % s(S_ST + 14, 2))
    A("s_getreg_b32 %s, hwreg(HW_REG_XCC_ID)" % s(S_ST + 10))
    A("s_getreg_b32 %s, hwreg(HW_REG_HW_ID)" % s(S_ST + 11))
    A("s_waitcnt lgkmcnt(0)")
    A("s_cmp_eq_u32 %s, 0" % s(S_W))
    A("s_cbranch_scc0 L_end")
    for i in range(16): A("v_mov_b32 %s, %s" % (v(16 + i), s(S_ST + i)))
    for i in range(16): A("v_mov_b32 v%d, 0" % (32 + i))
    if TL:
        A("s_lshl_b32 %s, s2, 8" % s(S_T0))
        A("s_add_u32 %s, %s, 0x100000" % (s(S_T0), s(S_T0)))
        A("v_mbcnt_lo_u32_b32 v48, -1, 0"); A("v_mbcnt_hi_u32_b32 v48, -1, v48"); A("v_lshlrev_b32 v48, 2, v48")
        A("buffer_store_dword %s, v48, %s, %s offen" % (v(V_TL), s(SRD_W, 4), s(S_T0)))
    A("s_lshl_b32 %s, s2, 7" % s(S_T0))
    A("v_mov_b32 v48, 0")
    A("s_mov_b64 exec, 1")
    for i in range(8):
        A("buffer_store_dwordx4 %s, v48, %s, %s offen offset:%d" % (v(16 + 4 * i, 4), s(SRD_W, 4), s(S_T0), 16 * i))
A("s_endpgm")

for (par, N) in sorted({(u & 1, N) for (u, N) in needE}):
    A.label("L_es%d_%d" % (N, par))
    for q2 in range(1, N):
        for db in range(8): A(pv_mfma(S_BUF[1 - par], q2, db))
    A("s_branch L_slow")
A.label("L_slow")
A("s_waitcnt vmcnt(8) lgkmcnt(0)")
A("s_nop 7")
for q2 in range(4): A.ext(norm_q2(q2))
A("s_cmp_eq_u32 %s, 0" % s(S_FB))
A("s_cbranch_scc0 L_sstore")
A("s_mov_b64 %s, 0" % s(S_BAD, 2))
for q2 in range(4):
    if q2 >= 2:
        A("s_cmp_le_u32 %s, %d" % (s(S_NQ), q2)); A("s_cbranch_scc1 L_sdec")
    for k in range(4): A(readback(4 * q2 + k, 16 + 4 * k))
    A("v_cmp_ngt_f32 vcc, 0x71800000, %s" % v(V_T + q2))
    A("v_mov_b32 %s, 0" % v(V_U))
    A("s_nop 0")
    A("s_or_b64 %s, %s, vcc" % (s(S_BAD, 2), s(S_BAD, 2)))
    A("s_waitcnt lgkmcnt(0)")
    for k in range(8): A("v_pk_maximum3_f16 %s, %s, %s, %s" % (v(V_U), v(V_U), v(16 + 2 * k), v(17 + 2 * k)))
    A("v_and_b32 %s, 0x7c00, %s" % (v(V_U + 1), v(V_U)))
    A("v_and_b32 %s, 0x7c000000, %s" % (v(V_U + 2), v(V_U)))
    for c_ in ("v_cmp_eq_u32 vcc, 0x7c00, %s" % v(V_U + 1), "v_cmp_eq_u32 vcc, 0x7c000000, %s" % v(V_U + 2)):
        A(c_); A("s_nop 1"); A("s_or_b64 %s, %s, vcc" % (s(S_BAD, 2), s(S_BAD, 2)))
A.label("L_sdec")
A("s_cmp_lg_u64 %s, 0" % s(S_BAD, 2))
A("s_cbranch_scc1 L_fb")
A.label("L_sstore")
A(smov(S_T2, S_QOFF))
for q2 in range(4):
    if q2 >= 2:
        A("s_cmp_le_u32 %s, %d" % (s(S_NQ), q2)); A("s_cbranch_scc1 L_sret")
    for k in range(4): A(readback(4 * q2 + k, 16 + 16 * q2 + 4 * k))
    for k in range(4): A.ext(store(16 + 16 * q2 + 4 * k, 3 - k))
A.label("L_sret")
for g in range(8): A.ext(ps_mfmas(g))
A("s_nop 15")
for g in range(8):
    A.ext(ps_cvts(g)); A(ozero(g))
for u in range(3):
    A("s_cmp_eq_u32 %s, %d" % (s(S_PH), u)); A("s_cbranch_scc1 L_adv%d" % u)
A("s_branch L_adv3")
A.label("L_fb")
A("s_mov_b32 %s, 1" % s(S_FB))
FV, FKO, FVO = 48, 49, 50
S_FOFF, S_FCNT = S_L, S_CNT
A("s_sub_u32 %s, %s, %d" % (s(S_T0), s(S_PRIV), HALF))
A("v_add_u32 %s, %s, %s" % (v(FV), s(S_T0), v(V_VA)))
A("s_lshl_b32 %s, %s, 14" % (s(S_T0), s(S_W)))
A("v_subrev_u32 %s, %s, %s" % (v(FKO), s(S_T0), v(V_KVO)))
A("s_lshl_b32 %s, %s, 12" % (s(S_T0), s(S_W)))
A("v_subrev_u32 %s, %s, %s" % (v(FVO), s(S_T0), v(V_VVO)))
A(smov(SRD_F + 2, S_NR))
def fb_load(A, vo, ptr, step):
    A(smov2(SRD_F, ptr)); A(smov(S_T4, S_FOFF))
    for n in range(8):
        A(m0(n * PS, S_PRIV))
        A(sadd(S_T4, S_T4, step) if n else "s_nop 0")
        A(dma(vo, SRD_F, S_T4))
    A("s_waitcnt vmcnt(0)")
def fb_qk(A, tag):
    A("s_cmp_eq_u32 %s, 1" % s(S_FCNT)); A("s_cbranch_scc0 L_fbnm%s" % tag)
    A.ext(mask_ops())
    A.label("L_fbnm%s" % tag)
    fb_load(A, FKO, P_K, 16384)
    for f in range(8): A(k_read(f, 0, V_QA0, a(A_VF + 4 * f, 4)))
    A("s_waitcnt lgkmcnt(0)")
    for i in range(32): A(qk_mfma(S_BUF[0], i, False, A_VF))
    A("s_nop 15")
for i in range(32): A("v_mov_b32 %s, 0" % v(CI + i))
for q in range(4): A("v_mov_b32 %s, 0xff800000" % v(V_T + q))
for g in range(8): A(ozero(g))
A(lzero())
A(smov(S_FOFF, S_KBASE)); A(smov(S_FCNT, S_N))
A.label("L_fb1")
fb_qk(A, "1")
A.ext(rowmax(S_BUF[0], 4, False))
A(sadd(S_FOFF, S_FOFF, BLK))
A("s_sub_u32 %s, %s, 1" % (s(S_FCNT), s(S_FCNT))); A("s_cmp_eq_u32 %s, 0" % s(S_FCNT)); A("s_cbranch_scc0 L_fb1")
A.ext(crossmax(4))
for i in range(32): A("v_sub_f32 %s, 0, %s" % (v(CI + i), v(V_T + (i >> 3))))
A(smov(S_FOFF, S_KBASE)); A(smov(S_FCNT, S_N))
A.label("L_fb2")
fb_qk(A, "2")
A.ext(flat_sm([op for p, op in softmax_ops(S_BUF[0], 4)]))
fb_load(A, FVO, P_V, 4096)
for db in range(8):
    A(v_read(db, 0, 0, FV)); A(v_read(db, 1, 0, FV))
A("s_waitcnt lgkmcnt(0)")
for q2 in range(4):
    for db in range(8): A(pv_mfma(S_BUF[0], q2, db))
    A(sum_mfma(S_BUF[0], q2))
A("s_nop 15")
A(sadd(S_FOFF, S_FOFF, BLK))
A("s_sub_u32 %s, %s, 1" % (s(S_FCNT), s(S_FCNT))); A("s_cmp_eq_u32 %s, 0" % s(S_FCNT)); A("s_cbranch_scc0 L_fb2")
A.ext(lfinal(4))
A("s_branch L_slow")
A.label("L_end")
A("s_endpgm")

errs = check_hazards(A.lines)
for e in errs: print(e, file=sys.stderr)
if errs and not opt("force"): sys.exit(1)

hdr = open("standalone__varlen_attn_packed__ragged.s.ref").read().split("\n")
hdr = [l for l in hdr[:10] if l.startswith(";") and "@launch" not in l]
out = "\n".join(hdr) + "\n; @launch grid=(%d,1,1) block=(256,1,1) lds=%d\n" % (GRID, LDS)
out += '.amdgcn_target "amdgcn-amd-amdhsa--gfx950"\n.text\n.globl %s\n.p2align 8\n.type %s,@function\n' % (NAME, NAME)
out += A.text()
out += ".p2align 6\n.type L_table,@object\nL_table:\n"
for j, ent in enumerate(table):
    w = [t[0] | (t[1] << 13) | (t[2] << 23) | (t[3] << 27) | (t[4] << 30) for t in ent] + [0] * (4 - len(ent))
    if late[j >> 1]: w[0] |= 1 << 31
    out += ".long " + ", ".join("0x%08x" % x for x in w) + "\n"
out += """.section .rodata,"a"
.p2align 6
.amdhsa_kernel %s
  .amdhsa_next_free_vgpr 512
  .amdhsa_next_free_sgpr 102
  .amdhsa_accum_offset 256
  .amdhsa_group_segment_fixed_size 0
  .amdhsa_kernarg_size 56
  .amdhsa_user_sgpr_count 2
  .amdhsa_user_sgpr_kernarg_segment_ptr 1
  .amdhsa_system_sgpr_workgroup_id_x 1
.end_amdhsa_kernel
""" % NAME
sys.stdout.write(out)
```

```python
import re

class Asm:
    def __init__(self):
        self.lines = []
    def __call__(self, s):
        for l in s.strip("\n").split("\n"):
            self.lines.append(l.strip())
    def label(self, name):
        self.lines.append(name + ":")
    def ext(self, lst):
        for l in lst:
            self(l)
    def text(self):
        out = []
        for l in self.lines:
            if l.endswith(":") or l.startswith("."):
                out.append(l)
            else:
                out.append("    " + l)
        return "\n".join(out) + "\n"

_reg = re.compile(r"^(-?)(?:abs\()?([vas])(\d+)\)?$|^(-?)([vas])\[(\d+):(\d+)\]$")

def parse_operand(op):
    op = op.strip()
    op = op.lstrip("-")
    if op.startswith("|") and op.endswith("|"):
        op = op[1:-1]
    m = re.match(r"^abs\((.*)\)$", op)
    if m:
        op = m.group(1)
    m = re.match(r"^([vas])(\d+)$", op)
    if m:
        return [(m.group(1), int(m.group(2)))]
    m = re.match(r"^([vas])\[(\d+):(\d+)\]$", op)
    if m:
        return [(m.group(1), i) for i in range(int(m.group(2)), int(m.group(3)) + 1)]
    if op == "vcc":
        return [("s", 106), ("s", 107)]
    if op == "m0":
        return [("s", 124)]
    if op == "exec":
        return [("s", 126), ("s", 127)]
    return []

TRANS = ("v_exp_f32", "v_log_f32", "v_rcp_f32", "v_rsq_f32", "v_sqrt_f32", "v_sin_f32", "v_cos_f32")

class Ins:
    def __init__(self, line):
        self.line = line
        code = line.split(";")[0].strip()
        parts = code.split(None, 1)
        self.op = parts[0]
        rest = parts[1] if len(parts) > 1 else ""
        ops = []
        cur = ""
        depth = 0
        for ch in rest:
            if ch in "[(":
                depth += 1
            if ch in "])":
                depth -= 1
            if ch == "," and depth == 0:
                ops.append(cur)
                cur = ""
            else:
                cur += ch
        if cur.strip():
            ops.append(cur)
        ops = [o.strip() for o in ops]
        mods = ""
        if ops:
            sp = ops[-1].split(None, 1)
            if len(sp) > 1:
                ops[-1] = sp[0]
                mods = sp[1]
        self.ops = ops
        self.mods = mods
        op = self.op
        self.is_mfma = op.startswith("v_mfma") or op.startswith("v_smfmac")
        self.is_valu = op.startswith("v_") and not self.is_mfma
        self.is_trans = any(op.startswith(t) for t in TRANS)
        self.is_salu = op.startswith("s_")
        self.is_ds = op.startswith("ds_")
        self.is_vmem = op.startswith("buffer_") or op.startswith("global_")
        self.w = []
        self.r = []
        self.srcC = []
        self.srcAB = []
        P = parse_operand
        if self.is_mfma:
            self.w = P(ops[0])
            self.srcAB = P(ops[1]) + P(ops[2])
            self.srcC = P(ops[3])
            if op.startswith("v_smfmac"):
                self.srcAB += self.srcC
                self.srcC = list(self.w)
            self.r = self.srcAB + self.srcC
            self.passes = 8 if ("32x32" in op or "smfmac" in op) else 4
        elif self.is_valu:
            if op.startswith("v_cmp"):
                self.w = P(ops[0]); self.r = sum((P(o) for o in ops[1:]), [])
            elif (op.startswith("v_permlane") and "swap" in op) or op.startswith("v_swap"):
                self.w = P(ops[0]) + P(ops[1]); self.r = list(self.w)
            elif op.startswith("v_nop"):
                pass
            else:
                self.w = P(ops[0]); self.r = sum((P(o) for o in ops[1:]), [])
                if op.startswith("v_fmac") or op.startswith("v_writelane"):
                    self.r += self.w
                if op.startswith("v_add_co") or op.startswith("v_addc_co"):
                    self.w += P(ops[1])
        elif self.is_ds:
            if op.startswith("ds_read") or op.startswith("ds_bpermute") or op.startswith("ds_swizzle"):
                self.w = P(ops[0]); self.r = sum((P(o) for o in ops[1:]), [])
            else:
                self.r = sum((P(o) for o in ops), [])
        elif self.is_vmem:
            lds = "lds" in mods.split()
            self.lds = lds
            if "load" in op and not lds:
                self.w = P(ops[0]); self.r = sum((P(o) for o in ops[1:]), [])
            else:
                self.r = sum((P(o) for o in ops), [])
                if lds:
                    self.r += [("s", 124)]
            self.is_store = "store" in op
        elif self.is_salu:
            if op in ("s_waitcnt", "s_barrier", "s_nop", "s_branch", "s_endpgm", "s_setprio", "s_sleep") or op.startswith("s_cbranch"):
                pass
            elif op.startswith("s_cmp") or op.startswith("s_bitcmp"):
                self.r = sum((P(o) for o in ops), [])
            else:
                self.w = P(ops[0]); self.r = sum((P(o) for o in ops[1:]), [])
        self.states = 1
        if op == "s_nop":
            self.states = int(ops[0], 0) + 1

def need(a, b):
    n = 0
    aw = set(a.w); ar = set(a.r); bw = set(b.w); br = set(b.r)
    awv = {x for x in aw if x[0] != "s"}
    aws = {x for x in aw if x[0] == "s"}
    if a.is_valu:
        if b.is_mfma and awv & br: n = max(n, 2)
        if b.op.startswith("v_permlane") and awv & br: n = max(n, 2)
        if (b.op.startswith("v_readlane") or b.op.startswith("v_readfirstlane")) and awv & br: n = max(n, 1)
        if b.is_valu and "dpp" in b.line and awv & br: n = max(n, 2)
        if a.is_trans and b.is_valu and not b.is_trans and awv & br: n = max(n, 1)
        if a.is_trans and b.is_mfma and awv & br: n = max(n, 2)
        if aws and b.is_valu and aws & br: n = max(n, 2)
        if aws and b.is_vmem and aws & br: n = max(n, 5)
        if aws and b.is_salu and aws & br: n = max(n, 1)
        if ("s", 126) in aws and b.is_mfma: n = max(n, 4)
    if a.is_mfma:
        big = {8: 12, 4: 8}[a.passes]
        ov = {8: 10, 4: 6}[a.passes]
        war = {8: 7, 4: 3}[a.passes]
        if b.is_mfma:
            if aw & set(b.srcAB): n = max(n, big)
            if aw & set(b.srcC):
                if not (set(b.srcC) == aw and b.passes == a.passes): n = max(n, ov)
            elif aw & bw: n = max(n, ov)
        elif b.is_valu:
            if aw & (br | bw): n = max(n, big)
            if set(a.srcC) & bw: n = max(n, war)
        elif b.is_ds or b.is_vmem:
            if aw & (br | bw): n = max(n, big)
    if a.is_salu and ("s", 124) in aw and b.is_vmem and getattr(b, "lds", False): n = max(n, 1)
    if a.is_vmem and getattr(a, "is_store", False) and ("x4" in a.op or "x3" in a.op):
        data = set(parse_operand(a.ops[0]))
        if data & bw: n = max(n, 2)
    return n

def check_hazards(lines, maxlook=24):
    ins = []
    labels = {}
    for l in lines:
        c = l.split(";")[0].strip()
        if not c or c.startswith("."):
            continue
        if c.endswith(":"):
            labels[c[:-1]] = len(ins)
            continue
        ins.append(Ins(c))
    def succ(i):
        I = ins[i]
        if I.op == "s_endpgm": return []
        if I.op == "s_branch": return [labels[I.ops[0]]]
        if I.op.startswith("s_cbranch"): return [labels[I.ops[0]], i + 1]
        if I.op.startswith("s_setpc"): return [k + 1 for k, J in enumerate(ins) if J.op == "s_call_b64"]
        if I.op == "s_call_b64": return [labels[I.ops[1]]]
        return [i + 1] if i + 1 < len(ins) else []
    errs = []
    for i, a in enumerate(ins):
        if not (a.is_valu or a.is_mfma or a.is_vmem or (a.is_salu and ("s", 124) in a.w)):
            continue
        lim = 12 if a.is_mfma else 5
        stack = [(j, 0) for j in succ(i)]
        seen = {}
        while stack:
            j, d = stack.pop()
            if d >= lim or j >= len(ins): continue
            if seen.get(j, 99) <= d: continue
            seen[j] = d
            b = ins[j]
            n = need(a, b)
            if n > d:
                errs.append("HAZARD need %d have %d: [%d] %s  ->  [%d] %s" % (n, d, i, a.line, j, b.line))
            for k in succ(j):
                stack.append((k, d + b.states))
    return errs
```

```python
import sys
CU = [0, 534, 1426, 1714, 2675, 3469, 4036, 4628, 4845]
SEG = {}
for i in range(8):
    L = CU[i + 1] - CU[i]
    SEG[(L + 31) // 32] = (CU[i], L)
PA1 = [[(18, 2), (25, 3)], [(18, 2), (25, 3)], [(28, 3), (7, 4)], [(9, 2), (25, 4)], [(28, 3), (9, 3)], [(18, 2), (19, 4)], [(17, 2), (25, 3)],
       [(31, 4)], [(31, 4)], [(31, 4)], [(31, 4)], [(19, 2), (18, 4)], [(19, 2), (17, 4)], [(28, 4)], [(28, 4)], [(19, 2), (17, 3)]]
def build(plan, check=True):
    table = [None] * 32
    for hb in range(2):
        occ = {}
        for b, bin_ in enumerate(plan):
            for i, (n, N) in enumerate(bin_): occ.setdefault(n, []).append((-N, b, i))
        start = {}
        for n, l in occ.items():
            u = 0
            for mN, b, i in sorted(l):
                start[(b, i)] = u if check else u % max(1, (SEG[n][1] // 64 - 3))
                u += -mN
            if check: assert u * 64 >= SEG[n][1] and (u + mN) * 64 < SEG[n][1], (n, u)
        if check: assert len(occ) == 8
        for b, bin_ in enumerate(plan):
            table[2 * b + hb] = [(SEG[n][0], SEG[n][1], start[(b, i)], N, hb ^ (i & 1)) for i, (n, N) in enumerate(bin_)]
    return table
PA2 = [[(19, 4), (18, 2)], [(25, 3), (18, 2)], [(25, 3), (18, 2)], [(25, 4), (7, 2)], [(25, 4), (7, 2)], [(28, 3), (9, 3)], [(28, 3), (9, 3)], [(19, 3), (17, 3)], [(19, 3), (17, 3)],
       [(31, 4)], [(31, 4)], [(31, 4)], [(31, 4)], [(18, 3), (17, 3)], [(28, 4)], [(28, 4)]]
PS4 = [[(31, 4)]] * 8 + [[(31, 3)]] * 4 + [[(31, 2)]] * 4
PA3 = [[(19, 4, 0), (19, 2)], [(25, 3, 0), (19, 2)], [(25, 3, 0), (19, 2)], [(25, 4, 0), (7, 2)], [(31, 4, 0)], [(31, 4, 0)], [(31, 4, 0)], [(31, 4, 0)], [(18, 3, 1), (17, 3)], [(18, 3, 1), (17, 3)], [(18, 3, 1), (17, 3)], [(25, 3, 1), (9, 3)], [(28, 3, 1), (9, 2)], [(28, 4, 1)], [(28, 4, 1)], [(28, 3, 1), (7, 2)]]
PA4 = [[(19, 3, 0), (28, 2)], [(25, 4, 0), (7, 2)], [(25, 4, 0), (7, 2)], [(19, 3, 0), (17, 3)], [(31, 4, 0)], [(31, 4, 0)], [(31, 4, 0)], [(31, 4, 0)], [(18, 4, 1), (17, 2)], [(18, 3, 1), (25, 2)], [(17, 4, 1), (18, 2)], [(19, 4, 1), (9, 3)], [(28, 4, 1)], [(28, 4, 1)], [(28, 4, 1)], [(25, 3, 1), (9, 2)]]
PA5 = [[(25, 3, 0), (19, 2)], [(25, 3, 0), (19, 2)], [(31, 4, 0)], [(31, 4, 0)], [(31, 4, 0)], [(31, 4, 0)], [(28, 3, 0), (9, 3)], [(25, 3, 0), (7, 4)], [(19, 3, 1), (25, 2)], [(19, 3, 1), (25, 2)], [(18, 3, 1), (17, 3)], [(18, 3, 1), (17, 3)], [(18, 3, 1), (17, 3)], [(28, 3, 1), (9, 2)], [(28, 4, 1)], [(28, 4, 1)]]
PA6 = [[(25, 3, 0), (19, 2)], [(25, 3, 0), (19, 2)], [(31, 4, 0)], [(31, 4, 0)], [(31, 4, 0)], [(31, 4, 0)], [(19, 3, 0), (18, 3)], [(28, 3, 0), (9, 3)], [(19, 3, 0), (17, 3)], [(25, 3, 0), (7, 4)], [(18, 3, 1), (17, 3)], [(18, 3, 1), (17, 3)], [(28, 3, 1), (9, 2)], [(28, 4, 1)], [(28, 4, 1)], [(25, 4, 1)]]
PA7 = [[(28, 3, 0), (9, 3)], [(18, 3, 0), (19, 3)], [(31, 4, 0)], [(31, 4, 0)], [(31, 4, 0)], [(31, 4, 0)], [(17, 3, 0), (19, 3)], [(19, 2, 0), (18, 4)], [(18, 2, 0), (25, 3)], [(25, 3, 0), (7, 4)], [(17, 2, 0), (25, 3)], [(19, 2, 0), (17, 4)], [(28, 3, 1), (9, 2)], [(28, 4, 1)], [(28, 4, 1)], [(25, 4, 1)]]
PA8 = [[(19, 2, 0), (25, 3)], [(19, 2, 0), (25, 3)], [(31, 4, 0)], [(31, 4, 0)], [(31, 4, 0)], [(31, 4, 0)], [(19, 3, 0), (18, 3)], [(28, 3, 0), (9, 3)], [(19, 3, 0), (17, 3)], [(25, 3, 0), (7, 4)], [(18, 3, 0), (17, 3)], [(18, 3, 0), (17, 3)], [(28, 3, 1), (9, 2)], [(28, 4, 1)], [(28, 4, 1)], [(25, 4, 1)]]
PA9 = [[(25, 3, 0), (19, 2)], [(25, 3, 0), (19, 2)], [(31, 4, 1)], [(31, 4, 1)], [(31, 4, 1)], [(31, 4, 1)], [(19, 3, 0), (18, 3)], [(28, 3, 0), (9, 3)], [(19, 3, 1), (17, 3)], [(25, 3, 0), (7, 4)], [(18, 3, 2), (17, 3)], [(18, 3, 2), (17, 3)], [(28, 3, 2), (9, 2)], [(28, 4, 3)], [(28, 4, 3)], [(25, 4, 4)]]
PA10 = [[(25, 3, 0), (19, 2)], [(25, 3, 0), (19, 2)], [(31, 4, 0)], [(31, 4, 0)], [(31, 4, 0)], [(31, 4, 0)], [(19, 3, 0), (18, 3)], [(28, 3, 0), (9, 3)], [(19, 3, 2), (17, 3)], [(25, 3, 1), (7, 4)], [(18, 3, 2), (17, 3)], [(18, 3, 2), (17, 3)], [(28, 3, 3), (9, 2)], [(28, 4, 3)], [(28, 4, 3)], [(25, 4, 4)]]
PS5 = [[(31, 4)]] * 8 + [[(28, 4)]] * 8
def cls(plan, c): return [[b[0][:2] + (k,)] + list(b[1:]) for b, k in zip(plan, c)]
PB0 = cls(PA6, [0] * 16)
PB1 = cls(PA6, [0, 0, 0, 0, 0, 0, 0, 0, 0, 0, 1, 1, 1, 2, 2, 3])
PB2 = cls(PA6, [0, 0, 0, 0, 0, 0, 0, 0, 0, 0, 1, 1, 2, 3, 3, 4])
PB3 = cls(PA6, [0, 0, 1, 1, 1, 1, 0, 0, 1, 1, 2, 2, 2, 3, 3, 4])
PB4 = cls(PA6, [0, 0, 0, 0, 0, 0, 0, 0, 0, 0, 1, 1, 1, 1, 1, 2])
PB5 = cls(PA6, [0, 0, 1, 1, 1, 1, 0, 0, 0, 0, 1, 1, 1, 2, 2, 3])
```

```python
import sys, struct, math
from asmlib import Asm, check_hazards
import schedA

def opt(x): return ("--" + x) in sys.argv
def optv(x, d):
    for a_ in reversed(sys.argv):
        if a_.startswith("--" + x + "="): return a_.split("=")[1]
    return d
DEF = {("salux", 4): "1", ("sm", 3): "28", ("dw", 3): "6,20", ("rad", 3): "2", ("tp", 3): "7,5,5,3,3", ("vend", 3): "2",
       ("sm", 2): "19", ("dw", 2): "4,13", ("vend", 2): "0", ("salux", 2): "1"}
def optn(x, N, d): return optv("%s%d" % (x, N), optv(x, DEF.get((x, N), d)))
STAMPS = opt("stamps"); TL = opt("tl")
NAME = "standalone__varlen_attn_packed__ragged_kernel"
HALF = 8704; PS = 1056; SZ = 2 * HALF
PRIV = 4 * SZ
LDS = 8 * SZ
BLK = 32 * 4096
GRID = 256
plan0 = getattr(schedA, optv("plan", "PB0"))
late = [len(b[0]) > 2 and b[0][2] for b in plan0]
plan = [[x[:2] for x in b] for b in plan0]
table = schedA.build(plan, not opt("nocheck"))
STMOD = " " + optv("stmod", "sc0+sc1").replace("+", " ")
needP, needE, needN, needF, needE3 = set(), set(), set(), set(), set()
for bin_ in plan:
    assert len(bin_) <= 2
    for x, y in zip(bin_, bin_[1:]): assert x[0] >= 3 + 4 * y[1], bin_
for bin_ in plan:
    ph = 0
    for ti, (n, N) in enumerate(bin_):
        if ti: needP.add((ph, N))
        else: needF.add(N)
        needN.add((N, ti + 1 < len(bin_)))
        ph = (ph + n) & 3
        needE.add((ph, N))
        needE3.add((ph, N, bin_[ti + 1][1] if ti + 1 < len(bin_) else 0))

V_KA0, V_KA1, V_VA, V_KVO, V_KVO2, V_VVO, V_VVO2, V_G4, V_QA0, V_QA1, V_EW, V_ER, V_SO, V_T4, V_T5 = range(1, 16)
V_TL = 0
S_BUF = [16, 48]
CI = 80
V_T = 112
V_U = 116
V_I = 120
V_Z = 124
V_IDX, V_SG, V_SA = V_T5, 109, 110
O = 128
A_Q, A_QR, A_KF, A_VF, A_PS, A_LS, A_ONE, A_ONM = 0, 64, 128, 160, 192, 208, 224, 232
SRD_F, SRD_K, SRD_V, SRD_O, SRD_W = 4, 8, 12, 16, 20
(S_KOFF, S_VOFF, S_WBASE, S_CNT, S_HT, S_PRIV, S_QOFF, S_NV, S_N, S_L, S_T0, S_T1, S_T2, S_T3,
 S_KBASE, S_NR, S_PH, S_HOFF, S_FB, S_TI) = range(28, 48)
S_ST = 48
P_Q, P_K, P_V, P_O = 64, 66, 68, 70
S_TASK = 80
S_BAD = 84
S_T4, S_W, S_NQ, S_NKB, S_NNR, S_NQB, S_NNQ, S_C, S_QM, S_QME, S_BLK = 86, 87, 88, 89, 90, 91, 93, 98, 99, 100, 101
S_T4E = 96

def v(i, n=1): return "v%d" % i if n == 1 else "v[%d:%d]" % (i, i + n - 1)
def a(i, n=1): return "a%d" % i if n == 1 else "a[%d:%d]" % (i, i + n - 1)
def s(i, n=1): return "s%d" % i if n == 1 else "s[%d:%d]" % (i, i + n - 1)
M16 = "v_mfma_f32_16x16x32_bf16"; M32 = "v_mfma_f32_32x32x16_bf16"

def qk_mfma(buf, i, raw=False, kf=A_KF):
    q2, kb, st = i >> 3, (i >> 2) & 1, i & 3
    d = v(buf + 8 * q2 + 4 * kb, 4)
    c = d if st else ("0" if raw else v(CI + (8 * q2 + 4 * kb if kf != A_KF else 4 * q2), 4))
    return "%s %s, %s, %s, %s" % (M16, d, a(kf + 4 * (4 * kb + st), 4), a((A_QR if raw else A_Q) + 16 * q2 + 4 * st, 4), c)
def preg(buf, q2): return buf + 8 * q2 - (4 if q2 & 1 else 0)
def GAPS(N): return 16 * N + (N + 1) // 2
def oreg(q2, db): return O + 32 * q2 + 4 * db
def pv_mfma(buf, q2, db):
    d = v(oreg(q2, db), 4)
    return "%s %s, %s, %s, %s" % (M16, d, a(A_VF + 4 * db, 4), v(preg(buf, q2), 4), d)
def sum_mfma(buf, q2, one=None, slot=None):
    d = a(A_LS + 4 * (q2 if slot is None else slot), 4)
    return "%s %s, %s, %s, %s" % (M16, d, a(A_ONE if one is None else one, 4), v(preg(buf, q2), 4), d)
def sums_after(buf, N, q2, one=A_ONE):
    if q2 & 1: return ["v_smfmac_f32_16x16x64_bf16 %s, %s, %s, %s" % (a(A_LS + 4 * (q2 >> 1), 4), a(one + 4, 4), v(buf + 8 * (q2 - 1), 8), v(V_IDX))]
    if q2 == N - 1: return [sum_mfma(buf, q2, one, q2 >> 1)]
    return []
def onm_ops(t=0):
    o = ["s_bfe_u32 %s, %s, 0xa000d" % (s(S_T2), s(S_TASK + t)), sadd(S_T2, S_T2, 31), "s_and_b32 %s, %s, 31" % (s(S_T2), s(S_T2)), sadd(S_T2, S_T2, 1),
         "v_mov_b32 %s, 0x3f80" % v(V_I + 1), "v_mov_b32 %s, 0x3f803f80" % v(V_I + 2)]
    for sp in range(2):
        o.append("v_sub_u32 %s, %s, %s" % (v(V_I), s(S_T2), v(V_SG if sp else V_G4)))
        for r in range(4):
            k = (16 * (r & 1) + 4 * (r >> 1)) if sp else (16 * (r >> 1) + 2 * (r & 1))
            o += ["v_cmp_lt_i32 vcc, %d, %s" % (k, v(V_I)), "v_cmp_lt_i32 %s, %d, %s" % (s(S_T0, 2), k + 1, v(V_I)), "s_nop 0",
                  "v_cndmask_b32 %s, 0, %s, vcc" % (v(V_I + 3), v(V_I + 1)),
                  "v_cndmask_b32 %s, %s, %s, %s" % (v(V_I + 3), v(V_I + 3), v(V_I + 2), s(S_T0, 2))]
            if sp: o.append("v_and_b32 %s, %s, %s" % (v(V_I + 3), v(V_I + 3), v(V_SA)))
            o.append("v_accvgpr_write_b32 %s, %s" % (a(A_ONM + 8 * t + 4 * sp + r), v(V_I + 3)))
    return o
def k_read(f, base, areg=V_KA0, dst=None):
    kb, st = f >> 2, f & 3
    return "ds_read_b128 %s, %s offset:%d" % (dst or a(A_KF + 4 * f, 4), v(areg + (st >> 1)), base + 4 * PS * kb + 64 * (st & 1))
def v_read(db, j, base, areg=V_VA):
    return "ds_read_b64_tr_b16 %s, %s offset:%d" % (a(A_VF + 4 * db + 2 * j, 2), v(areg), base + 512 * j + 32 * db)
def q_reads(n=4):
    return [k_read(f, 0, V_QA0, a(A_QR + 4 * f, 4)) for f in range(4 * n)]

def sm_start(N): return int(optn("sm", N, "15"))
def opq(op, buf): return (int(op.split()[-1].strip("v,")) - buf) >> 3
def softmax_ops(buf, N):
    ops = []
    st = sm_start(N)
    G = GAPS(N)
    for e in range(8 * N):
        p = st + e * G // (8 * N)
        ops.append((p, 0, "v_exp_f32 %s, %s" % (v(buf + e), v(buf + e))))
        if e & 1:
            pc = p + int(optn("cd", N, "1"))
            if optn("cvt2", N, "0") == "1" and (e & 3) == 1: pc += 4
            ops.append((pc, 1 + (e & 2), "v_cvt_pk_bf16_f32 %s, %s, %s" % (v(preg(buf, e >> 3) + ((e & 7) >> 1)), v(buf + e - 1), v(buf + e))))
    for p, _, op in ops:
        q = opq(op, buf)
        assert 8 * q + 8 <= p < G + 8 * N + 8 * q - 1, (N, p, op)
    ops.sort()
    cv = [o for o in ops if o[1]]
    assert all(opq(x[2], buf) <= opq(y[2], buf) for x, y in zip(cv, cv[1:]))
    return [(o[0], o[2]) for o in ops]
def flat_sm(ops):
    out = []
    pend = []
    for op in ops:
        if op.startswith("v_cvt"):
            pend.append(op)
        else:
            out.append(op)
            out += pend; pend = []
    if pend: out += ["s_nop 0"] + pend
    return out

def dma(vo, srd, so): return "buffer_load_dwordx4 %s, %s, %s offen lds" % (v(vo), s(srd, 4), s(so))
def m0(off, base=None): return "s_add_u32 m0, %s, %d" % (s(S_WBASE if base is None else base), off)
def sadd(d, x, imm): return "s_add_u32 %s, %s, %d" % (s(d), s(x), imm)
def smov(d, x): return "s_mov_b32 %s, %s" % (s(d), s(x))
def smov2(d, x): return "s_mov_b64 %s, %s" % (s(d, 2), s(x, 2))
def stream_groups(slot):
    b = slot * SZ
    return [[m0(b)], [dma(V_KVO, SRD_K, S_KOFF)], [m0(b + 4 * PS)], [dma(V_KVO2, SRD_K, S_KOFF)],
            [m0(b + HALF)], [dma(V_VVO, SRD_V, S_VOFF)], [m0(b + HALF + 4 * PS)], [dma(V_VVO2, SRD_V, S_VOFF)],
            ["s_add_u32 %s, %s, %s" % (s(S_KOFF), s(S_KOFF), s(S_BLK))], ["s_add_u32 %s, %s, %s" % (s(S_VOFF), s(S_VOFF), s(S_BLK))]]
def stream_flat(slot):
    out = []
    for g in stream_groups(slot):
        out += g
        if " m0," in g[0]: out.append("s_nop 0")
    return out
def kblock_flat(ldsoff):
    return [m0(ldsoff), "s_nop 0", dma(V_KVO, SRD_K, S_KOFF), m0(ldsoff + 4 * PS), "s_nop 0", dma(V_KVO2, SRD_K, S_KOFF), sadd(S_KOFF, S_KOFF, BLK)]
def qgroup(g):
    out = []
    for n in range(4 * g, 4 * g + 4):
        out += [m0(n * PS, S_PRIV), "s_nop 0", dma(V_KVO, SRD_F, S_T4), sadd(S_T4, S_T4, 16384)]
    return out

COST = {"ds_read_b128": 12, "ds_read_b64_tr_b16": 8, "buffer_load_dwordx4": 12, "v_exp_f32": 8}
def cost(op): return COST.get(op.split()[0], 4)

def aux_ops():
    return ["s_mov_b32 m0, %s" % s(S_QM), dma(V_KVO, SRD_F, S_T4),
            sadd(S_QM, S_QM, PS), "s_min_u32 %s, %s, %s" % (s(S_QM), s(S_QM), s(S_QME)),
            sadd(S_T4, S_T4, 16384), "s_min_u32 %s, %s, %s" % (s(S_T4), s(S_T4), s(S_T4E))]
def iteration(A, u, N, aux=False):
    nxt, cur = S_BUF[u & 1], S_BUF[1 - (u & 1)]
    G = GAPS(N)
    ms = [qk_mfma(nxt, i) for i in range(8 * N)]
    for q2 in range(N):
        ms += [pv_mfma(cur, q2, db) for db in range(8)] + sums_after(cur, N, q2)
    if opt("pvord"):
        ms = ms[:8 * N] + [pv_mfma(cur, q2, db) for db in range(8) for q2 in range(N)] + sum((sums_after(cur, N, q) for q in range(N)), [])
    if opt("pvord2"):
        ms = ms[:8 * N] + [pv_mfma(cur, 2 * h + q2, db) for h in range(N // 2) for db in range(8) for q2 in range(2)] + sum((sums_after(cur, N, q) for q in range(N)), [])
    if opt("qkord"):
        ms = [qk_mfma(nxt, 16 * h + 8 * q2 + f) for h in range(N // 2) for f in range(8) for q2 in range(2)] + ms[8 * N:]
    if opt("qkord2"):
        ms = [qk_mfma(nxt, 8 * q2 + 4 * kb + st) for q2 in range(N) for st in range(4) for kb in range(2)] + ms[8 * N:]
    va = [[] for _ in range(G)]; nv = [[] for _ in range(G)]
    for p, op in softmax_ops(cur, N):
        if p >= G: va[p - G].append(op)
    for p, op in softmax_ops(nxt, N):
        if p < G: va[p].append(op)
    RAD = int(optn('rad', N, '1'))
    load = lambda g: sum(map(cost, va[g] + nv[g]))
    def place(items, lo, hi, strict=False):
        last = lo - (1 if strict else 0)
        pos = []
        for i, it in enumerate(items):
            t = lo + (i + 0.5) * (hi - lo + 1) / len(items)
            mn = last + (1 if strict else 0)
            mx = hi - ((len(items) - 1 - i) if strict else 0)
            cand = [g for g in range(int(t) - RAD, int(t) + RAD + 1) if mn <= g <= mx] or [min(max(int(t), mn), mx)]
            if it.startswith("s_") and optn("salux", N, "0") == "1":
                g = min(cand, key=lambda g: (len(nv[g]) > 0, not any("exp" in x for x in va[g]), abs(g + 0.5 - t)))
            else:
                g = min(cand, key=lambda g: (load(g), abs(g + 0.5 - t)))
            nv[g].append(it); last = g; pos.append(g)
        return pos
    H = 8 * N
    vpos = place([v_read(i >> 1, i & 1, u * SZ) for i in range(16)], int(optn('vbeg', N, '0')), H + int(optn('vend', N, '-1' if N == 2 else '-3')))
    kpos = place([k_read(f, u * SZ) for f in range(8)], max(H + int(optn('kbeg', N, '0')), vpos[-1]), G - int(optn('kend', N, '7')))
    sg = stream_groups((u + 3) % 4)
    dlo, dhi = [int(x) for x in optn("dw", N, {2: "1,15", 3: "24,43", 4: "33,56"}[N]).split(",")]
    ax = aux_ops() if aux else []
    dpos = place(ax[:2] + [g[0] for g in sg[:8]], dlo, dhi, True)
    if aux: place(ax[2:], dpos[1] + 1, G - 8, True)
    tailp = [int(x) for x in optn("tp", N, "6,5,4,3,2").split(",")]
    nv[G - tailp[0]] += sg[8]; nv[G - tailp[1]] += sg[9]
    nv[G - tailp[2]].append("s_sub_u32 %s, %s, 1" % (s(S_CNT), s(S_CNT)))
    nv[G - tailp[3]].append("s_cmp_le_u32 %s, %s" % (s(S_CNT), s(S_HT)))
    if TL: nv[G - tailp[4]].append("s_memrealtime s[94:95]" if opt("tlrt") else "s_memtime s[94:95]")
    nv[G - tailp[4]].append("s_waitcnt vmcnt(%d) lgkmcnt(0)" % (10 if aux else 8))
    assert dhi < G - tailp[0] and kpos[-1] < G - tailp[4]
    covered = -1
    for g in range(G):
        if H <= g < H + 8 and g - H > covered:
            db = g - H
            while db + 1 < 8 and vpos[2 * db + 3] <= g - int(optn("wd", N, "4")): db += 1
            covered = db
            assert vpos[2 * db + 1] < g
            younger = sum(1 for p in vpos[2 * db + 2:] if p < g) + sum(1 for p in kpos if p < g)
            A("s_waitcnt lgkmcnt(%d)" % younger)
        A(ms[g]); A.ext(nv[g]); A.ext(va[g])

def mask_ops(N=4):
    o = ["v_sub_u32 %s, %s, %s" % (v(V_U), s(S_NV), v(V_G4)), "v_mov_b32 %s, 0xff800000" % v(V_U + 1)]
    prs = ["vcc", s(S_T0, 2)]
    for r in range(8 + 1):
        if r < 8: o.append("v_cmp_lt_i32 %s, %d, %s" % (prs[r % 2], 16 * (r >> 2) + (r & 3), v(V_U)))
        if r == 0: o.append("s_nop 0")
        if r >= 1:
            for q2 in range(N):
                x = CI + 8 * q2 + r - 1
                o.append("v_cndmask_b32 %s, %s, %s, %s" % (v(x), v(V_U + 1), v(x), prs[(r - 1) % 2]))
    o.append("s_nop 1")
    return o
def rowmax(b, N, first):
    o = []
    if first:
        for q2 in range(N): o.append("v_max3_f32 %s, %s, %s, %s" % (v(V_T + q2), v(b + 8 * q2), v(b + 8 * q2 + 1), v(b + 8 * q2 + 2)))
        for i in (3, 5):
            for q2 in range(N): o.append("v_max3_f32 %s, %s, %s, %s" % (v(V_T + q2), v(V_T + q2), v(b + 8 * q2 + i), v(b + 8 * q2 + i + 1)))
        for q2 in range(N): o.append("v_max_f32 %s, %s, %s" % (v(V_T + q2), v(V_T + q2), v(b + 8 * q2 + 7)))
    else:
        for i in range(0, 8, 2):
            for q2 in range(N): o.append("v_max3_f32 %s, %s, %s, %s" % (v(V_T + q2), v(V_T + q2), v(b + 8 * q2 + i), v(b + 8 * q2 + i + 1)))
    return o
def crossmax(N):
    o = []
    for w in (32, 16):
        o += ["v_mov_b32 %s, %s" % (v(V_U + q), v(V_T + q)) for q in range(N)] + (["s_nop 0"] if N == 2 else [])
        o += ["v_permlane%d_swap_b32 %s, %s" % (w, v(V_T + q), v(V_U + q)) for q in range(N)]
        o += ["v_max_f32 %s, %s, %s" % (v(V_T + q), v(V_T + q), v(V_U + q)) for q in range(N)]
    return o
def ps_mfmas(g):
    d = v(O + 16 * g, 16)
    return ["%s %s, %s, %s, %s" % (M32, d, a(A_PS + m, 4), a(A_QR + 8 * g + 4 * fr, 4), "0" if k == 0 else d) for k, (m, fr) in enumerate(((0, 0), (4, 1), (8, 0), (12, 1)))]
def ps_cvts(g):
    b = O + 16 * g
    o = ["v_cvt_pk_bf16_f32 %s, %s, %s" % (v(b + i), v(b + 2 * i), v(b + 2 * i + 1)) for i in range(8)]
    o += ["v_accvgpr_write_b32 %s, %s" % (a(A_Q + 8 * g + i), v(b + i)) for i in range(8)]
    return o
def ozero(g): return "%s %s, %s, %s, 0" % (M32, v(O + 16 * g, 16), v(V_Z, 4), v(V_Z, 4))
def lzero(): return "%s %s, %s, %s, 0" % (M32, a(A_LS, 16), v(V_Z, 4), v(V_Z, 4))

nst = [0]
def stamp(A, idx, first_only=False):
    if STAMPS:
        if first_only:
            nst[0] += 1
            A("s_cmp_eq_u32 %s, 0" % s(S_TI)); A("s_cbranch_scc0 L_st%d" % nst[0])
        A("s_memtime %s" % s(S_ST + 2 * idx, 2))
        if first_only: A.label("L_st%d" % nst[0])
def tl_pre(A):
    if TL: A("s_memrealtime s[94:95]" if opt("tlrt") else "s_memtime s[94:95]")
def tl_post(A):
    if TL:
        A("s_mov_b32 m0, s92"); A("s_add_u32 s92, s92, 1"); A("v_writelane_b32 %s, s94, m0" % v(V_TL))
def tl(A):
    if TL:
        tl_pre(A); A("s_waitcnt lgkmcnt(0)"); tl_post(A)

def decode(word):
    return ["s_and_b32 %s, %s, 0x1fff" % (s(S_T0), s(word)),
            "s_bfe_u32 %s, %s, 0xa000d" % (s(S_T1), s(word)),
            "s_add_u32 %s, %s, %s" % (s(S_T1), s(S_T0), s(S_T1)),
            "s_lshl_b32 %s, %s, 12" % (s(S_NNR), s(S_T1)),
            "s_bfe_u32 %s, %s, 0x1001e" % (s(S_T1), s(word)),
            "s_lshl_b32 %s, %s, 8" % (s(S_T1), s(S_T1)),
            "s_add_u32 %s, %s, %s" % (s(S_T1), s(S_T1), s(S_HOFF)),
            "s_lshl_b32 %s, %s, 12" % (s(S_NKB), s(S_T0)),
            "s_add_u32 %s, %s, %s" % (s(S_NKB), s(S_NKB), s(S_T1)),
            "s_bfe_u32 %s, %s, 0x3001b" % (s(S_NNQ), s(word)),
            "s_bfe_u32 %s, %s, 0x40017" % (s(S_T1), s(word)),
            "s_lshl_b32 %s, %s, 2" % (s(S_T1), s(S_T1)),
            "s_mul_i32 %s, %s, %s" % (s(S_T0), s(S_W), s(S_NNQ)),
            "s_add_u32 %s, %s, %s" % (s(S_T1), s(S_T1), s(S_T0)),
            "s_lshl_b32 %s, %s, 16" % (s(S_NQB), s(S_T1)),
            "s_add_u32 %s, %s, %s" % (s(S_NQB), s(S_NQB), s(S_NKB)),
            "s_lshl_b32 %s, %s, 14" % (s(S_T0), s(S_W)),
            "s_sub_u32 %s, %s, %s" % (s(S_T4), s(S_NQB), s(S_T0)),
            smov2(SRD_F, P_Q), smov(SRD_F + 2, S_NNR)]
def task_setup(more=True):
    base = [smov(S_KBASE, S_NKB), smov(S_NR, S_NNR), smov(SRD_O + 2, S_NNR), smov(S_QOFF, S_NQB), smov(S_NQ, S_NNQ),
            "s_bfe_u32 %s, %s, 0xa000d" % (s(S_L), s(S_TASK)),
            sadd(S_N, S_L, 31), "s_lshr_b32 %s, %s, 5" % (s(S_N), s(S_N)),
            "s_sub_u32 %s, %s, 1" % (s(S_CNT), s(S_N)),
            "s_lshl_b32 %s, %s, 5" % (s(S_T1), s(S_CNT)),
            "s_sub_u32 %s, %s, %s" % (s(S_NV), s(S_L), s(S_T1)),
            "s_mov_b32 %s, 0" % s(S_FB),
            smov(S_QM, S_PRIV)]
    if not more: return base + ["s_mov_b32 %s, 0" % s(S_HT), "s_mov_b32 %s, 0" % s(S_NNQ), "s_mov_b32 %s, 0" % s(S_NNR)]
    return base + decode(S_TASK + 1) + ["s_cmp_eq_u32 %s, 0" % s(S_NNR), "s_cselect_b32 %s, 0, 4" % s(S_HT),
            "s_lshl_b32 %s, %s, 2" % (s(S_T0), s(S_NNQ)), "s_max_u32 %s, %s, 1" % (s(S_T0), s(S_T0)), "s_sub_u32 %s, %s, 1" % (s(S_T0), s(S_T0)),
            "s_mul_i32 %s, %s, %d" % (s(S_QME), s(S_T0), PS), "s_add_u32 %s, %s, %s" % (s(S_QME), s(S_QME), s(S_QM)),
            "s_lshl_b32 %s, %s, 14" % (s(S_T4E), s(S_T0)), "s_add_u32 %s, %s, %s" % (s(S_T4E), s(S_T4E), s(S_T4))]

A = Asm()
A.label(NAME)
A("s_cmp_ge_u32 s2, %d" % GRID)
A("s_cbranch_scc1 L_end")
if STAMPS: A("s_memrealtime %s" % s(S_ST + 12, 2))
stamp(A, 0)
A("s_load_dwordx4 s[64:67], s[0:1], 0")
A("s_load_dwordx2 s[68:69], s[0:1], 16")
A("s_load_dwordx2 s[70:71], s[0:1], 32")
if STAMPS: A("s_load_dwordx2 s[72:73], s[0:1], 48")
A("s_getpc_b64 s[74:75]")
A.label("L_pc")
A("s_lshr_b32 s76, s2, 3")
A("s_lshl_b32 s76, s76, 4")
A("s_add_u32 s78, s74, L_table-L_pc")
A("s_addc_u32 s79, s75, 0")
A("s_load_dwordx4 %s, s[78:79], s76" % s(S_TASK, 4))
A("v_lshrrev_b32 %s, 6, v0" % v(V_U))
A("v_and_b32 v22, 63, v0")
A("s_lshl_b32 s77, s76, 8")
A("v_readfirstlane_b32 %s, %s" % (s(S_W), v(V_U)))
A("v_and_b32 %s, 31, v0" % v(V_T4))
A("v_lshl_add_u32 %s, %s, 7, s77" % (v(V_T4), v(V_T4)))
A("v_min_u32 %s, L_cold-L_pc, %s" % (v(V_T4), v(V_T4)))
A("s_cmp_eq_u32 %s, 0" % s(S_W))
A("s_cbranch_scc0 L_nowarm")
A("global_load_dword %s, %s, s[74:75]" % (v(V_T4), v(V_T4)))
A.label("L_nowarm")
G, P16, R4, X0, X1, X2 = 16, 17, 18, 19, 20, 21
A("v_lshrrev_b32 %s, 4, v22" % v(G))
A("v_and_b32 %s, 15, v22" % v(P16))
A("v_and_b32 %s, 3, v22" % v(R4))
def fswz(dst, src, tmp):
    A("v_and_b32 %s, 2, %s" % (v(tmp), v(src)))
    A("v_and_b32 %s, 1, %s" % (v(dst), v(src)))
    A("v_lshl_add_u32 %s, %s, 2, %s" % (v(dst), v(tmp), v(dst)))
fswz(X0, G, X1)
A("v_xor_b32 %s, %s, %s" % (v(X0), v(X0), v(P16)))
A("s_lshl_b32 %s, %s, 2" % (s(S_T0), s(S_W)))
A("v_add_u32 %s, %s, %s" % (v(X1), s(S_T0), v(G)))
A("v_lshlrev_b32 %s, 12, %s" % (v(X1), v(X1)))
A("v_lshl_add_u32 %s, %s, 4, %s" % (v(V_KVO), v(X0), v(X1)))
A("v_add_u32 %s, %d, %s" % (v(V_KVO2), 16 * 4096, v(V_KVO)))
A("v_lshl_add_u32 %s, %s, 3, %s" % (v(X1), v(G), s(S_W)))
A("v_lshlrev_b32 %s, 12, %s" % (v(X1), v(X1)))
A("v_lshl_add_u32 %s, %s, 4, %s" % (v(V_VVO), v(P16), v(X1)))
A("v_add_u32 %s, %d, %s" % (v(V_VVO2), 4 * 4096, v(V_VVO)))
A("s_mul_i32 %s, %s, %d" % (s(S_WBASE), s(S_W), PS))
A("s_mov_b32 %s, %d" % (s(S_BLK), BLK))
A("s_mul_i32 %s, %s, %d" % (s(S_PRIV), s(S_W), SZ))
A(sadd(S_PRIV, S_PRIV, PRIV))
A("s_and_b32 %s, s2, 7" % s(S_HOFF))
A("s_lshl_b32 %s, %s, 9" % (s(S_HOFF), s(S_HOFF)))
A("s_mov_b32 %s, 0" % s(S_TI))
A("s_mov_b32 %s, 0x%08x" % (s(S_C), struct.unpack("<I", struct.pack("<f", (128 ** -0.5) * math.log2(math.e)))[0]))
for srd in (SRD_K, SRD_F, SRD_V, SRD_O):
    A("s_mov_b32 %s, 0x20000" % s(srd + 3))
if TL:
    A("s_mov_b32 s92, 0"); A("v_mov_b32 %s, 0" % v(V_TL))
A("s_waitcnt lgkmcnt(0)")
if opt("tls"): tl(A)
A.ext(decode(S_TASK))
for srd, src in ((SRD_K, P_K), (SRD_V, P_V), (SRD_O, P_O)):
    A(smov2(srd, src))
for srd in (SRD_K, SRD_V): A(smov(srd + 2, S_NNR))
if STAMPS:
    A("s_mov_b32 %s, s72" % s(SRD_W)); A("s_mov_b32 %s, s73" % s(SRD_W + 1))
    A("s_mov_b32 %s, 0x1000000" % s(SRD_W + 2)); A("s_mov_b32 %s, 0x20000" % s(SRD_W + 3))
A(smov(S_KOFF, S_NKB)); A(smov(S_VOFF, S_NKB))
nd = 0
A.ext(kblock_flat(HALF) + kblock_flat(0))
for l in qgroup(0):
    A(l)
    if l.startswith("buffer_load"):
        A("s_cmp_le_u32 %s, %d" % (s(S_TASK + 3), nd)); A("s_cbranch_scc1 L_ss%d" % nd)
        A("s_waitcnt vmcnt(0)")
        A.label("L_ss%d" % nd)
        nd += 1
A.ext(qgroup(1))
if opt("tls"): tl(A)
fswz(X0, R4, X1)
A("v_xor_b32 %s, %s, %s" % (v(X0), v(X0), v(G)))
A("v_lshrrev_b32 %s, 2, %s" % (v(X2), v(P16)))
A("v_mul_u32_u24 %s, %d, %s" % (v(X1), PS, v(X2)))
A("v_lshl_add_u32 %s, %s, 8, %s" % (v(X1), v(R4), v(X1)))
A("v_lshl_add_u32 %s, %s, 4, %s" % (v(V_KA0), v(X0), v(X1)))
A("v_xor_b32 %s, 8, %s" % (v(X0), v(X0)))
A("v_lshl_add_u32 %s, %s, 4, %s" % (v(V_KA1), v(X0), v(X1)))
A("v_add_u32 %s, %s, %s" % (v(V_QA0), s(S_PRIV), v(V_KA0)))
A("v_add_u32 %s, %s, %s" % (v(V_QA1), s(S_PRIV), v(V_KA1)))
A("v_and_b32 %s, 1, %s" % (v(X0), v(G)))
A("v_lshl_add_u32 %s, %s, 2, %s" % (v(X0), v(X0), v(X2)))
A("v_mul_u32_u24 %s, %d, %s" % (v(X0), PS, v(X0)))
A("v_lshrrev_b32 %s, 1, %s" % (v(X1), v(G)))
A("v_lshl_add_u32 %s, %s, 8, %s" % (v(X0), v(X1), v(X0)))
A("v_lshl_add_u32 %s, %s, 3, %s" % (v(X0), v(R4), v(X0)))
A("v_add_u32 %s, %d, %s" % (v(V_VA), HALF, v(X0)))
A("v_mul_u32_u24 %s, 272, %s" % (v(X0), v(P16)))
A("v_lshl_add_u32 %s, %s, 3, %s" % (v(X0), v(G), v(X0)))
A("v_add_u32 %s, %s, %s" % (v(V_EW), s(S_PRIV), v(X0)))
A("v_mul_u32_u24 %s, 272, %s" % (v(X0), v(G)))
A("v_lshl_add_u32 %s, %s, 4, %s" % (v(X0), v(P16), v(X0)))
A("v_add_u32 %s, %s, %s" % (v(V_ER), s(S_PRIV), v(X0)))
A("v_lshlrev_b32 %s, 12, %s" % (v(X0), v(G)))
A("v_lshl_add_u32 %s, %s, 4, %s" % (v(V_SO), v(P16), v(X0)))
A("v_lshlrev_b32 %s, 2, %s" % (v(V_G4), v(G)))
A("v_bfe_u32 %s, v22, 1, 1" % v(X0))
A("v_lshrrev_b32 %s, 5, v22" % v(X1))
A("v_cmp_eq_u32 vcc, %s, %s" % (v(X0), v(X1)))
A("v_and_b32 %s, 1, v22" % v(X2))
A("v_bfe_u32 %s, v22, 4, 1" % v(X1))
A("v_cndmask_b32 %s, 0, -1, vcc" % v(V_SA))
A("v_lshlrev_b32 %s, 3, %s" % (v(X1), v(X1)))
A("v_lshl_add_u32 %s, %s, 1, %s" % (v(V_SG), v(X2), v(X1)))
A("v_mul_u32_u24 %s, 0xaaaa, %s" % (v(X2), v(X2)))
A("v_add_u32 %s, 0x4444, %s" % (v(V_IDX), v(X2)))
A("v_mov_b32 %s, 0x3f803f80" % v(X0))
A("v_and_b32 %s, %s, %s" % (v(X1), v(X0), v(V_SA)))
for i in range(4):
    A("v_accvgpr_write_b32 %s, %s" % (a(A_ONE + i), v(X0)))
    A("v_accvgpr_write_b32 %s, %s" % (a(A_ONE + 4 + i), v(X1)))
    A("v_mov_b32 %s, 0" % v(V_Z + i))
LN = 24
A("v_bfe_u32 %s, v22, 2, 1" % v(X0))
A("v_lshrrev_b32 %s, 5, v22" % v(X1))
A("v_xor_b32 %s, %s, %s" % (v(X0), v(X0), v(X1)))
A("v_bfe_u32 %s, v22, 3, 2" % v(X1))
A("v_bfe_u32 %s, v22, 1, 1" % v(X2))
A("v_lshl_add_u32 %s, %s, 1, %s" % (v(X1), v(X1), v(X2)))
A("v_lshl_add_u32 %s, %s, 4, %s" % (v(X1), v(X0), v(X1)))
A("v_and_b32 %s, 1, v22" % v(X2))
A("v_lshlrev_b32 %s, 4, %s" % (v(X2), v(X2)))
A("v_mov_b32 %s, 0x3e03" % v(LN + 1))
A("v_mov_b32 %s, 0xb9d8" % v(LN + 2))
A("v_lshlrev_b32 %s, %s, %s" % (v(LN + 1), v(X2), v(LN + 1)))
A("v_lshlrev_b32 %s, %s, %s" % (v(LN + 2), v(X2), v(LN + 2)))
for r in range(8):
    A("v_cmp_eq_u32 vcc, %d, %s" % (r, v(X1)))
    A("s_nop 1")
    A("v_cndmask_b32 %s, 0, %s, vcc" % (v(LN + 3), v(LN + 1)))
    A("v_cndmask_b32 %s, 0, %s, vcc" % (v(LN + 4), v(LN + 2)))
    A("v_accvgpr_write_b32 %s, %s" % (a(A_PS + r), v(LN + 3)))
    A("v_accvgpr_write_b32 %s, %s" % (a(A_PS + 8 + r), v(LN + 4)))
if opt("tls"): tl(A)
for g in (2, 3):
    A("s_cmp_le_u32 %s, %d" % (s(S_NNQ), g)); A("s_cbranch_scc1 L_qdone")
    A.ext(qgroup(g))
A.label("L_qdone")
if opt("tls"): tl(A)
A.ext(task_setup())
MAXT = max(len(x) for x in plan)
for t in range(MAXT): A.ext(onm_ops(t))
A(lzero())
Fs = sorted(needF)
for N in Fs[:-1]:
    A("s_cmp_eq_u32 %s, %d" % (s(S_NQ), N)); A("s_cbranch_scc1 L_f%d" % N)
def qnext_items():
    it = []
    for g in range(4):
        q = qgroup(g)
        for k in range(4):
            pre = []
            if g >= 2 and k == 0:
                pre = ["s_cmp_le_u32 %s, %d" % (s(S_NNQ), g), "s_cselect_b32 %s, 0, %s" % (s(SRD_F + 2), s(SRD_F + 2))]
            it.append(pre + [q[4 * k]]); it.append([q[4 * k + 2], q[4 * k + 3]])
    return it
def weave(va, items, first=0):
    out = []
    step = max(1, (len(va) - first) // (len(items) + 1))
    items = list(items)
    for i, l in enumerate(va):
        out.append(l)
        if i >= first and (i - first) % step == 0 and items: out += items.pop(0)
    assert not items
    return out
def pvalu(b, N, raw):
    va = rowmax(b, N, True) + crossmax(N)
    if raw: va += ["v_mul_f32 %s, %s, %s" % (v(V_T + q), s(S_C), v(V_T + q)) for q in range(N)]
    va += ["v_sub_f32 %s, 0, %s" % (v(CI + 8 * q), v(V_T + q)) for q in range(N)]
    for i in range(8 * N):
        if raw: va.append("v_fma_f32 %s, %s, %s, -%s" % (v(b + i), v(b + i), s(S_C), v(V_T + (i >> 3))))
        else: va.append("v_sub_f32 %s, %s, %s" % (v(b + i), v(b + i), v(V_T + (i >> 3))))
        if 1 <= (i & 7) < 4: va.append("v_mov_b32 %s, %s" % (v(CI + i), v(CI + (i & ~7))))
    va += flat_sm([op for p, op in softmax_ops(b, N) if p < GAPS(N)])
    return va
def pvalu_q(b, N, q):
    r = b + 8 * q; t = V_T + q; u_ = V_U + q
    va = ["v_max3_f32 %s, %s, %s, %s" % (v(t), v(r), v(r + 1), v(r + 2)), "v_max3_f32 %s, %s, %s, %s" % (v(u_), v(r + 3), v(r + 4), v(r + 5)),
          "v_max3_f32 %s, %s, %s, %s" % (v(t), v(t), v(r + 6), v(r + 7)), "v_max_f32 %s, %s, %s" % (v(t), v(t), v(u_))]
    for w in (32, 16):
        va += ["v_mov_b32 %s, %s" % (v(u_), v(t)), "s_nop 1", "v_permlane%d_swap_b32 %s, %s" % (w, v(t), v(u_)), "v_max_f32 %s, %s, %s" % (v(t), v(t), v(u_))]
    va += ["v_sub_f32 %s, %s, %s" % (v(r + i), v(r + i), v(t)) for i in range(8)]
    va += ["v_sub_f32 %s, 0, %s" % (v(CI + 4 * q + i), v(t)) for i in range(4)]
    va += flat_sm([op for p, op in softmax_ops(b, N) if p < GAPS(N) and opq(op, b) == q])
    return va
def qk0(b, i):
    m_ = qk_mfma(b, i)
    return m_[:m_.rindex(",")] + ", 0" if (i & 3) == 0 else m_
def under(A, mm, va):
    per = -(-len(va) // len(mm)) if va else 0
    for m_ in mm:
        A.ext(m_ if isinstance(m_, list) else [m_]); A.ext(va[:per]); va = va[per:]
def first(A, N):
    qr = q_reads()
    b = S_BUF[0]
    S1 = int(optv("s1at", "1"))
    st_ = {"issued": 0}
    def fetch(q):
        if q == max(0, N - S1):
            A.ext(stream_flat(1)); st_["issued"] = 4
        if opt("tls"): tl(A)
        A("s_waitcnt vmcnt(%d)" % (st_["issued"] + 4 * (N - 1 - q)))
        if opt("tls"): tl(A)
        A.ext(qr[4 * q:4 * q + 4])
        if q == N - 1:
            tl(A)
            stamp(A, 1, True)
    fetch(0)
    A("s_barrier")
    for f in range(8): A(k_read(f, HALF))
    for q in range(N):
        last = q == N - 1
        A("s_waitcnt lgkmcnt(%d)" % (8 if q == 0 else 0))
        sg = stream_groups(2) if last else [[]] * 10
        mm = ps_mfmas(2 * q) + ps_mfmas(2 * q + 1)
        va = pvalu_q(b, N, q - 1) if q else []
        A.ext(mm[:2]); A("s_nop 3")
        under(A, [[m_] + sg[i] for i, m_ in enumerate(mm[2:])], va)
        A.ext(sg[6] + ["s_nop 0"] + sg[7] + sg[8] + sg[9] + (["s_nop 6"] if q == 0 else []))
        A.ext(ps_cvts(2 * q)); A(ozero(2 * q))
        A.ext(ps_cvts(2 * q + 1)); A(ozero(2 * q + 1))
        A("s_waitcnt lgkmcnt(0)" if q == 0 else "s_nop 0")
        for i in range(8):
            A(qk0(b, 8 * q + i))
            if last: A(k_read(i, 0))
        if not last: fetch(q + 1)
    A("s_nop 6")
    A.ext(weave(pvalu_q(b, N, N - 1), [[x] for x in aux_ops()] + stream_groups(3)))
    tl_pre(A)
    A("s_waitcnt vmcnt(9) lgkmcnt(0)")
    if (N, True) in needN:
        A("s_cmp_lg_u32 %s, 0" % s(S_NNR))
        A("s_cbranch_scc1 L_itb%dx_1" % N)
    A("s_branch L_itb%d%s_1" % (N, "" if (N, False) in needN else "x"))
first(A, Fs[-1])
for N in Fs[:-1]:
    A.label("L_f%d" % N)
    first(A, N)
def dispatchP(A, u):
    Ns = sorted(N for (p, N) in needP if p == u)
    for N in Ns[:-1]:
        A("s_cmp_eq_u32 %s, %d" % (s(S_NQ), N)); A("s_cbranch_scc1 L_p%d_%d" % (N, u))
    A("s_branch L_p%d_%d" % (Ns[-1], u))

def pphase(A, u, N):
    b = S_BUF[u & 1]
    mv = ["v_accvgpr_mov_b32 %s, %s" % (a(A_ONM + i), a(A_ONM + 8 + i)) for i in range(8 * (MAXT - 1))]
    under(A, [qk0(b, i) for i in range(8)], mv)
    under(A, [qk0(b, 8 + i) for i in range(4)], [])
    A("s_nop 3")
    rest = [[qk0(b, i)] + ([k_read(i - (8 * N - 8), u * SZ)] if i >= 8 * N - 8 else []) for i in range(12, 8 * N)]
    if N == 2: rest[0] += [k_read(i, u * SZ) for i in range(4)]
    for q in range(N):
        mm = rest[:8]; rest = rest[8:]
        if q == N - 1: mm = [lzero()]
        under(A, mm, pvalu_q(b, N, q))
    tl_pre(A)
    A("s_waitcnt lgkmcnt(0)")

for (N, aux) in sorted(needN, reverse=True):
    X = "%d%s" % (N, "x" if aux else "")
    A(".p2align 6")
    phase = int(optv("al", "1"))
    for _ in range(phase): A("s_nop 0")
    for u in (1, 2, 3, 0):
        A.label("L_itb%s_%d" % (X, u))
        tl_post(A)
        A("s_nop 0" if (opt("nobar") or (opt("bar2") and u & 1)) else "s_barrier")
        i0 = len(A.lines)
        iteration(A, u, N, aux)
        def isz(l):
            op = l.split()[0]
            if op.startswith(("v_mfma", "v_smfmac", "ds_", "buffer_", "v_cvt")): return 8
            if op == "s_add_u32" and l.split(",")[-1].strip().isdigit() and int(l.split(",")[-1]) > 64: return 8
            return 4
        phase = (phase + (8 + (20 if TL else 0) + sum(isz(l) for l in A.lines[i0:])) // 4) % 8
        k = {0: 1, 7: 2}.get(phase, 0)
        ex = [i for i in range(i0, len(A.lines)) if A.lines[i].startswith("v_exp_f32 ")]
        for j in range(k):
            i = ex[(2 * j + 1) * len(ex) // (2 * k)]
            A.lines[i] = A.lines[i].replace("v_exp_f32 ", "v_exp_f32_e64 ")
        phase = (phase + k) % 8
        if u != 0: A("s_cbranch_scc1 L_sp%s_%d" % (X, (u + 1) % 4))
        else: A("s_cbranch_scc0 L_itb%s_1" % X)
    for u in (1, 2, 3, 0):
        A.label("L_sp%s_%d" % (X, u))
        mine = [x for x in needE3 if x[:2] == (u, N) and (x[2] > 0) == aux]
        if mine:
            A("s_cmp_eq_u32 %s, 0" % s(S_CNT))
            A("s_cbranch_scc1 L_e%s_%d" % (X, u))
        if aux:
            A("s_cmp_eq_u32 %s, 2" % s(S_CNT))
            A("s_cbranch_scc1 L_sv%s_%d" % (X, u))
            A(smov(SRD_K + 2, S_NNR)); A(smov(S_KOFF, S_NKB))
        A("s_mov_b32 %s, %d" % (s(S_HT), 2 if aux else 0))
        if mine and not opt("norw"):
            A("s_mov_b32 %s, L_e%s_%d-L_pc" % (s(S_T0), X, u))
            if aux:
                for w_, lab in ((1, "L_e%s_%d-L_pc+8192" % (X, u)), (2, "L_e%s_%d-L_pc+16384" % (X, u))):
                    A("s_cmp_eq_u32 %s, %d" % (s(S_W), w_))
                    A("s_cselect_b32 %s, %s, %s" % (s(S_T0), lab, s(S_T0)))
            if aux:
                nxs = sorted({x[2] for x in mine})
                A("s_mov_b32 %s, L_itb%d_1-L_pc" % (s(S_T1), nxs[0]))
                for nx in nxs[1:]:
                    A("s_cmp_eq_u32 %s, %d" % (s(S_NNQ), nx))
                    A("s_cselect_b32 %s, L_itb%d_1-L_pc, %s" % (s(S_T1), nx, s(S_T1)))
                A("s_cmp_eq_u32 %s, 3" % s(S_W))
                A("s_cselect_b32 %s, %s, %s" % (s(S_T0), s(S_T1), s(S_T0)))
            A("v_mbcnt_lo_u32_b32 %s, -1, 0" % v(V_U))
            A("v_mbcnt_hi_u32_b32 %s, -1, %s" % (v(V_U), v(V_U)))
            A("v_lshl_add_u32 %s, %s, 7, %s" % (v(V_U), v(V_U), s(S_T0)))
            A("v_min_u32 %s, L_table-L_pc, %s" % (v(V_U), v(V_U)))
            A("global_load_dword %s, %s, s[74:75]" % (v(V_T4), v(V_U)))
        A("s_branch L_itb%s_%d" % (X, u))
        if aux:
            A.label("L_sv%s_%d" % (X, u))
            A(smov(SRD_V + 2, S_NNR)); A(smov(S_VOFF, S_NKB)); A("s_mov_b32 %s, 0" % s(S_HT))
            A("s_branch L_itb%s_%d" % (X, u))
A.label("L_late")

def norm_q2(q2):
    out = []
    for j in range(8 + 2):
        if j < 8:
            r = oreg(q2, j)
            out += ["v_mul_f32 %s, %s, %s" % (v(r + i), v(V_I + q2), v(r + i)) for i in range(4)]
        if 1 <= j < 9:
            r = oreg(q2, j - 1)
            out.append("v_cvt_pk_bf16_f32 %s, %s, %s" % (v(r), v(r), v(r + 1)))
            out.append("v_cvt_pk_bf16_f32 %s, %s, %s" % (v(r + 1), v(r + 2), v(r + 3)))
        if j >= 2:
            r = oreg(q2, j - 2)
            out.append("ds_write_b64 %s, %s offset:%d" % (v(V_EW), v(r, 2), 16 * 272 * q2 + 32 * (j - 2)))
    return out
def lfinal(N, dense=False):
    if dense: o = ["v_accvgpr_read_b32 %s, %s" % (v(V_T + q), a(A_LS + 4 * q)) for q in range(N)]
    else:
        o = ["v_accvgpr_read_b32 %s, %s" % (v(V_T + q), a(A_LS + 2 * q)) for q in range(N)]
        o += ["v_accvgpr_read_b32 %s, %s" % (v(V_U + q), a(A_LS + 2 * q + 1)) for q in range(N & ~1)]
        o += ["v_add_f32 %s, %s, %s" % (v(V_T + q), v(V_T + q), v(V_U + q)) for q in range(N & ~1)]
    for q in range(N):
        o += ["v_cmp_nge_f32 vcc, 0x44800000, %s" % v(V_T + q), "v_rcp_f32 %s, %s" % (v(V_I + q), v(V_T + q)), "s_nop 0",
              "s_mov_b64 %s, vcc" % s(S_BAD, 2) if q == 0 else "s_or_b64 %s, %s, vcc" % (s(S_BAD, 2), s(S_BAD, 2))]
    o += [smov(S_T2, S_QOFF)]
    return o
def readback(k, reg): return "ds_read_b128 %s, %s offset:%d" % (v(reg, 4), v(V_ER), 4 * 272 * k)
def store(reg, w):
    return ["s_waitcnt lgkmcnt(%s)" % w,
            "buffer_store_dwordx4 %s, %s, %s, %s offen%s" % (v(reg, 4), v(V_SO), s(SRD_O, 4), s(S_T2), STMOD),
            sadd(S_T2, S_T2, 16384)]
def psg(g, dst):
    d = v(dst, 16)
    mm = ["%s %s, %s, %s, %s" % (M32, d, a(A_PS + m, 4), a(A_QR + 8 * g + 4 * fr, 4), "0" if k == 0 else d) for k, (m, fr) in enumerate(((0, 0), (4, 1), (8, 0), (12, 1)))]
    cv = ["v_cvt_pk_bf16_f32 %s, %s, %s" % (v(dst + i), v(dst + 2 * i), v(dst + 2 * i + 1)) for i in range(8)]
    cv += ["v_accvgpr_write_b32 %s, %s" % (a(A_Q + 8 * g + i), v(dst + i)) for i in range(8)]
    return mm, cv
def ephase(A, u, N, NX):
    cur, nxt = S_BUF[1 - (u & 1)], S_BUF[u & 1]
    RB = [CI, CI + 16, CI, CI + 16]
    rd = []
    for db in range(8): rd += [v_read(db, 0, u * SZ), v_read(db, 1, u * SZ)]
    sm = flat_sm([op for p, op in softmax_ops(cur, N) if p >= GAPS(N)])
    lq = min([opq(op, cur) for op in sm if op.startswith("v_")] + [N])
    sums = sum((sums_after(cur, N, q, A_ONM) for q in range(lq)), [])
    while rd or sm:
        if sums: A(sums.pop(0))
        if rd: A(rd.pop(0))
        if sm: A(sm.pop(0))
    A("s_nop 1")
    for q in range(lq, N): A.ext(sums_after(cur, N, q, A_ONM))
    qn = q_reads(NX)
    sg = stream_groups((u + 3) % 4) if NX else [[]] * 10
    if opt("tlx"): tl(A)
    A("s_waitcnt lgkmcnt(8)")
    for db in range(4):
        A(pv_mfma(cur, 0, db)); A.ext(sg[db])
    A("s_waitcnt lgkmcnt(0)")
    for db in range(4, 8):
        A(pv_mfma(cur, 0, db)); A.ext(sg[db]); A.ext(qn[NX * (db - 4):NX * (db - 3)])
    A.ext(sg[8] + sg[9])
    if not NX: A("s_nop 1")
    A.ext(lfinal(N))
    A("s_cbranch_scc1 L_es%d_%d" % (N, u & 1))
    if NX: A("s_waitcnt vmcnt(8) lgkmcnt(0)")
    X = []
    ystart = 0
    for q2 in range(N):
        if opt("tlx"): X.append("#TL")
        nb = norm_q2(q2)
        pv = [pv_mfma(cur, q2 + 1, db) for db in range(8)] if q2 + 1 < N else []
        nw = 0; kst = 0
        for i, l in enumerate(nb):
            if i % 4 == 0 and pv: X.append(pv.pop(0))
            X.append(l)
            if l.startswith("ds_write"):
                nw += 1
                if q2 > 0 and kst < 4 and nw % 2 == 1:
                    X += store(oreg(q2 - 1, 0) + 4 * kst, None); kst += 1
        for k in range(4): X.append(readback(4 * q2 + k, oreg(q2, 0) + 4 * k))
        if q2 == 0 and N == 4: ystart = len(X)
        if 1 <= q2 <= NX:
            X.append(ozero(2 * q2 - 2))
            if not (N == 4 and q2 == 1): X.append(ozero(2 * q2 - 1))
    Y = []
    zlast = []
    if NX:
        DS = [CI + 16, O + 32 * N if N < 4 else O + 16]
        P_ = [psg(g, DS[g & 1]) for g in range(2 * NX)]
        one = lambda l: [[x] for x in l]
        quad = lambda l: [l[i:i + 3] for i in range(0, len(l), 3)]
        def zipm(mm, va):
            o = []
            per = -(-len(va) // len(mm))
            for m_ in mm:
                o.append(m_ if isinstance(m_, list) else [m_]); o += quad(va[:per]); va = va[per:]
            return o
        setup = [smov(S_TASK, S_TASK + 1), "s_mov_b32 %s, 0" % s(S_TASK + 1), sadd(S_TI, S_TI, 1)] + \
                [x for x in task_setup(False) if not x.startswith("s_mov_b32 %s," % s(SRD_O + 2))]
        mv = ["v_accvgpr_mov_b32 %s, %s" % (a(A_ONM + i), a(A_ONM + 8 + i)) for i in range(8)]
        Y += zipm(P_[0][0], setup) + zipm(P_[1][0], mv) + [[lzero()]] + quad(P_[0][1])
        for q in range(1, NX + 1):
            pvq = pvalu_q(nxt, NX, q - 2) if q >= 2 else []
            if q < NX: Y += zipm(P_[2 * q][0], pvq[:12] + P_[2 * q - 1][1])
            else: Y += quad(pvq[:12] + P_[2 * q - 1][1])
            mm = [[qk0(nxt, 8 * (q - 1) + i)] + ([k_read(i, u * SZ)] if q == NX else []) for i in range(8)]
            mm[0] = ["s_nop 1"] + mm[0]
            if q < NX: mm += P_[2 * q + 1][0]
            Y += zipm(mm, pvq[12:]) if pvq[12:] else [m_ if isinstance(m_, list) else [m_] for m_ in mm]
            if q < NX: Y += quad(P_[2 * q][1])
        Y += [["s_nop 6"]] + quad(pvalu_q(nxt, NX, NX - 1))
        zlast = [ozero(g) for g in range(2 * (N - 1), 2 * NX)] + ([ozero(1)] if N == 4 else [])
    X += ["#ST%d" % k for k in range(4)]
    M = []
    acc = 0.
    rate = len(Y) / float(len(X) - ystart)
    for i, l in enumerate(X):
        if l.startswith("#ST"): M += store(oreg(N - 1, 0) + 4 * int(l[3:]), None)
        else: M.append(l)
        if i >= ystart:
            acc += rate
            while acc >= 1 and Y and not M[-1].startswith("s_waitcnt"):
                M += Y.pop(0); acc -= 1
    for y in Y: M += y
    for i, l in enumerate(M):
        if l == "s_waitcnt lgkmcnt(None)":
            reg = M[i + 1].split()[1]
            j = max(k for k in range(i) if M[k].startswith("ds_read_b128 " + reg))
            M[i] = "s_waitcnt lgkmcnt(%d)" % min(15, sum(1 for k in range(j + 1, i) if M[k].startswith("ds_")))
    for l in M:
        if l == "#TL": tl(A)
        else: A(l)
    A.ext(zlast)
    if NX:
        A(smov(SRD_O + 2, S_NR))
        tl(A); tl_pre(A)
        A("s_waitcnt lgkmcnt(0)")
        A("s_branch L_itb%d_%d" % (NX, (u + 1) % 4))
    else:
        A("s_branch L_fin" if STAMPS else "s_endpgm")
for (u, N, aux) in sorted({(x[0], x[1], x[2] > 0) for x in needE3}, key=lambda x: (-x[1], x[0])):
    A.label("L_e%d%s_%d" % (N, "x" if aux else "", u))
    stamp(A, 2, True)
    A("s_mov_b32 %s, %d" % (s(S_PH), u))
    tl_post(A)
    A("s_barrier")
    NXs = sorted(x[2] for x in needE3 if x[:2] == (u, N) and (x[2] > 0) == aux)
    for NX in NXs[1:]:
        A("s_cmp_eq_u32 %s, %d" % (s(S_NNQ), NX)); A("s_cbranch_scc1 L_e%d_%d_%d" % (N, u, NX))
    for NX in NXs:
        A.label("L_e%d_%d_%d" % (N, u, NX))
        ephase(A, u, N, NX)
A.label("L_cold")
for u in range(4):
    A.label("L_adv%d" % u)
    stamp(A, 3, True)
    if any(p == u for (p, N) in needP):
        A("s_cmp_eq_u32 %s, 0" % s(S_TASK + 1))
        A("s_cbranch_scc1 L_fin")
        A(smov(S_TASK, S_TASK + 1)); A(smov(S_TASK + 1, S_TASK + 2)); A("s_mov_b32 %s, 0" % s(S_TASK + 2))
        A(sadd(S_TI, S_TI, 1))
        A.ext(task_setup())
        tl(A)
        dispatchP(A, u)
    else:
        A("s_branch L_fin")
    for N in sorted(N for (p, N) in needP if p == u):
        A.label("L_p%d_%d" % (N, u))
        pphase(A, u, N)
        A("s_branch L_itb%d_%d" % (N, (u + 1) % 4))
A.label("L_fin")
if STAMPS:
    A("s_waitcnt vmcnt(0)")
    stamp(A, 4)
    A("s_memrealtime %s" % s(S_ST + 14, 2))
    A("s_getreg_b32 %s, hwreg(HW_REG_XCC_ID)" % s(S_ST + 10))
    A("s_getreg_b32 %s, hwreg(HW_REG_HW_ID)" % s(S_ST + 11))
    A("s_waitcnt lgkmcnt(0)")
    A("s_cmp_eq_u32 %s, 0" % s(S_W))
    A("s_cbranch_scc0 L_end")
    for i in range(16): A("v_mov_b32 %s, %s" % (v(16 + i), s(S_ST + i)))
    for i in range(16): A("v_mov_b32 v%d, 0" % (32 + i))
    if TL:
        A("s_lshl_b32 %s, s2, 8" % s(S_T0))
        A("s_add_u32 %s, %s, 0x100000" % (s(S_T0), s(S_T0)))
        A("v_mbcnt_lo_u32_b32 v48, -1, 0"); A("v_mbcnt_hi_u32_b32 v48, -1, v48"); A("v_lshlrev_b32 v48, 2, v48")
        A("buffer_store_dword %s, v48, %s, %s offen" % (v(V_TL), s(SRD_W, 4), s(S_T0)))
    A("s_lshl_b32 %s, s2, 7" % s(S_T0))
    A("v_mov_b32 v48, 0")
    A("s_mov_b64 exec, 1")
    for i in range(8):
        A("buffer_store_dwordx4 %s, v48, %s, %s offen offset:%d" % (v(16 + 4 * i, 4), s(SRD_W, 4), s(S_T0), 16 * i))
A("s_endpgm")

for (par, N) in sorted({(u & 1, N) for (u, N) in needE}):
    A.label("L_es%d_%d" % (N, par))
    for q2 in range(1, N):
        for db in range(8): A(pv_mfma(S_BUF[1 - par], q2, db))
    A("s_branch L_slow")
A.label("L_slow")
A("s_waitcnt vmcnt(8) lgkmcnt(0)")
A("s_nop 7")
for q2 in range(4): A.ext(norm_q2(q2))
A("s_cmp_eq_u32 %s, 0" % s(S_FB))
A("s_cbranch_scc0 L_sstore")
A("s_mov_b64 %s, 0" % s(S_BAD, 2))
for q2 in range(4):
    if q2 >= 2:
        A("s_cmp_le_u32 %s, %d" % (s(S_NQ), q2)); A("s_cbranch_scc1 L_sdec")
    for k in range(4): A(readback(4 * q2 + k, 16 + 4 * k))
    A("v_cmp_ngt_f32 vcc, 0x71800000, %s" % v(V_T + q2))
    A("v_mov_b32 %s, 0" % v(V_U))
    A("s_nop 0")
    A("s_or_b64 %s, %s, vcc" % (s(S_BAD, 2), s(S_BAD, 2)))
    A("s_waitcnt lgkmcnt(0)")
    for k in range(8): A("v_pk_maximum3_f16 %s, %s, %s, %s" % (v(V_U), v(V_U), v(16 + 2 * k), v(17 + 2 * k)))
    A("v_and_b32 %s, 0x7c00, %s" % (v(V_U + 1), v(V_U)))
    A("v_and_b32 %s, 0x7c000000, %s" % (v(V_U + 2), v(V_U)))
    for c_ in ("v_cmp_eq_u32 vcc, 0x7c00, %s" % v(V_U + 1), "v_cmp_eq_u32 vcc, 0x7c000000, %s" % v(V_U + 2)):
        A(c_); A("s_nop 1"); A("s_or_b64 %s, %s, vcc" % (s(S_BAD, 2), s(S_BAD, 2)))
A.label("L_sdec")
A("s_cmp_lg_u64 %s, 0" % s(S_BAD, 2))
A("s_cbranch_scc1 L_fb")
A.label("L_sstore")
A(smov(S_T2, S_QOFF))
for q2 in range(4):
    if q2 >= 2:
        A("s_cmp_le_u32 %s, %d" % (s(S_NQ), q2)); A("s_cbranch_scc1 L_sret")
    for k in range(4): A(readback(4 * q2 + k, 16 + 16 * q2 + 4 * k))
    for k in range(4): A.ext(store(16 + 16 * q2 + 4 * k, 3 - k))
A.label("L_sret")
for g in range(8): A.ext(ps_mfmas(g))
A("s_nop 15")
for g in range(8):
    A.ext(ps_cvts(g)); A(ozero(g))
for u in range(3):
    A("s_cmp_eq_u32 %s, %d" % (s(S_PH), u)); A("s_cbranch_scc1 L_adv%d" % u)
A("s_branch L_adv3")
A.label("L_fb")
A("s_mov_b32 %s, 1" % s(S_FB))
FV, FKO, FVO = 48, 49, 50
S_FOFF, S_FCNT = S_L, S_CNT
A("s_sub_u32 %s, %s, %d" % (s(S_T0), s(S_PRIV), HALF))
A("v_add_u32 %s, %s, %s" % (v(FV), s(S_T0), v(V_VA)))
A("s_lshl_b32 %s, %s, 14" % (s(S_T0), s(S_W)))
A("v_subrev_u32 %s, %s, %s" % (v(FKO), s(S_T0), v(V_KVO)))
A("s_lshl_b32 %s, %s, 12" % (s(S_T0), s(S_W)))
A("v_subrev_u32 %s, %s, %s" % (v(FVO), s(S_T0), v(V_VVO)))
A(smov(SRD_F + 2, S_NR))
def fb_load(A, vo, ptr, step):
    A(smov2(SRD_F, ptr)); A(smov(S_T4, S_FOFF))
    for n in range(8):
        A(m0(n * PS, S_PRIV))
        A(sadd(S_T4, S_T4, step) if n else "s_nop 0")
        A(dma(vo, SRD_F, S_T4))
    A("s_waitcnt vmcnt(0)")
def fb_qk(A, tag):
    A("s_cmp_eq_u32 %s, 1" % s(S_FCNT)); A("s_cbranch_scc0 L_fbnm%s" % tag)
    A.ext(mask_ops())
    A.label("L_fbnm%s" % tag)
    fb_load(A, FKO, P_K, 16384)
    for f in range(8): A(k_read(f, 0, V_QA0, a(A_VF + 4 * f, 4)))
    A("s_waitcnt lgkmcnt(0)")
    for i in range(32): A(qk_mfma(S_BUF[0], i, False, A_VF))
    A("s_nop 15")
for i in range(32): A("v_mov_b32 %s, 0" % v(CI + i))
for q in range(4): A("v_mov_b32 %s, 0xff800000" % v(V_T + q))
for g in range(8): A(ozero(g))
A(lzero())
A(smov(S_FOFF, S_KBASE)); A(smov(S_FCNT, S_N))
A.label("L_fb1")
fb_qk(A, "1")
A.ext(rowmax(S_BUF[0], 4, False))
A(sadd(S_FOFF, S_FOFF, BLK))
A("s_sub_u32 %s, %s, 1" % (s(S_FCNT), s(S_FCNT))); A("s_cmp_eq_u32 %s, 0" % s(S_FCNT)); A("s_cbranch_scc0 L_fb1")
A.ext(crossmax(4))
for i in range(32): A("v_sub_f32 %s, 0, %s" % (v(CI + i), v(V_T + (i >> 3))))
A(smov(S_FOFF, S_KBASE)); A(smov(S_FCNT, S_N))
A.label("L_fb2")
fb_qk(A, "2")
A.ext(flat_sm([op for p, op in softmax_ops(S_BUF[0], 4)]))
fb_load(A, FVO, P_V, 4096)
for db in range(8):
    A(v_read(db, 0, 0, FV)); A(v_read(db, 1, 0, FV))
A("s_waitcnt lgkmcnt(0)")
for q2 in range(4):
    for db in range(8): A(pv_mfma(S_BUF[0], q2, db))
    A(sum_mfma(S_BUF[0], q2))
A("s_nop 15")
A(sadd(S_FOFF, S_FOFF, BLK))
A("s_sub_u32 %s, %s, 1" % (s(S_FCNT), s(S_FCNT))); A("s_cmp_eq_u32 %s, 0" % s(S_FCNT)); A("s_cbranch_scc0 L_fb2")
A.ext(lfinal(4, True))
A("s_branch L_slow")
A.label("L_end")
A("s_endpgm")

errs = check_hazards(A.lines)
for e in errs: print(e, file=sys.stderr)
if errs and not opt("force"): sys.exit(1)

hdr = open("standalone__varlen_attn_packed__ragged.s.ref").read().split("\n")
hdr = [l for l in hdr[:10] if l.startswith(";") and "@launch" not in l]
out = "\n".join(hdr) + "\n; @launch grid=(%d,1,1) block=(256,1,1) lds=%d\n" % (GRID, LDS)
out += '.amdgcn_target "amdgcn-amd-amdhsa--gfx950"\n.text\n.globl %s\n.p2align 8\n.type %s,@function\n' % (NAME, NAME)
out += A.text()
out += ".p2align 6\n.type L_table,@object\nL_table:\n"
for j, ent in enumerate(table):
    w = [t[0] | (t[1] << 13) | (t[2] << 23) | (t[3] << 27) | (t[4] << 30) for t in ent] + [0] * (4 - len(ent))
    w[3] = int(late[j >> 1]) * int(optv("ss", "2"))
    out += ".long " + ", ".join("0x%08x" % x for x in w) + "\n"
out += """.section .rodata,"a"
.p2align 6
.amdhsa_kernel %s
  .amdhsa_next_free_vgpr 512
  .amdhsa_next_free_sgpr 102
  .amdhsa_accum_offset 256
  .amdhsa_group_segment_fixed_size 0
  .amdhsa_kernarg_size 56
  .amdhsa_user_sgpr_count 2
  .amdhsa_user_sgpr_kernarg_segment_ptr 1
  .amdhsa_system_sgpr_workgroup_id_x 1
.end_amdhsa_kernel
""" % NAME
sys.stdout.write(out)
```

```python
import sys
CU = [0, 534, 1426, 1714, 2675, 3469, 4036, 4628, 4845]
SEG = {}
for i in range(8):
    L = CU[i + 1] - CU[i]
    SEG[(L + 31) // 32] = (CU[i], L)
PA1 = [[(18, 2), (25, 3)], [(18, 2), (25, 3)], [(28, 3), (7, 4)], [(9, 2), (25, 4)], [(28, 3), (9, 3)], [(18, 2), (19, 4)], [(17, 2), (25, 3)],
       [(31, 4)], [(31, 4)], [(31, 4)], [(31, 4)], [(19, 2), (18, 4)], [(19, 2), (17, 4)], [(28, 4)], [(28, 4)], [(19, 2), (17, 3)]]
def build(plan, check=True):
    table = [None] * 32
    for hb in range(2):
        occ = {}
        for b, bin_ in enumerate(plan):
            for i, (n, N) in enumerate(bin_): occ.setdefault(n, []).append((-N, b, i))
        start = {}
        for n, l in occ.items():
            u = 0
            for mN, b, i in sorted(l):
                start[(b, i)] = u if check else u % max(1, (SEG[n][1] // 64 - 3))
                u += -mN
            if check: assert u * 64 >= SEG[n][1] and (u + mN) * 64 < SEG[n][1], (n, u)
        if check: assert len(occ) == 8
        for b, bin_ in enumerate(plan):
            table[2 * b + hb] = [(SEG[n][0], SEG[n][1], start[(b, i)], N, hb ^ (i & 1)) for i, (n, N) in enumerate(bin_)]
    return table
PA2 = [[(19, 4), (18, 2)], [(25, 3), (18, 2)], [(25, 3), (18, 2)], [(25, 4), (7, 2)], [(25, 4), (7, 2)], [(28, 3), (9, 3)], [(28, 3), (9, 3)], [(19, 3), (17, 3)], [(19, 3), (17, 3)],
       [(31, 4)], [(31, 4)], [(31, 4)], [(31, 4)], [(18, 3), (17, 3)], [(28, 4)], [(28, 4)]]
PS4 = [[(31, 4)]] * 8 + [[(31, 3)]] * 4 + [[(31, 2)]] * 4
PA3 = [[(19, 4, 0), (19, 2)], [(25, 3, 0), (19, 2)], [(25, 3, 0), (19, 2)], [(25, 4, 0), (7, 2)], [(31, 4, 0)], [(31, 4, 0)], [(31, 4, 0)], [(31, 4, 0)], [(18, 3, 1), (17, 3)], [(18, 3, 1), (17, 3)], [(18, 3, 1), (17, 3)], [(25, 3, 1), (9, 3)], [(28, 3, 1), (9, 2)], [(28, 4, 1)], [(28, 4, 1)], [(28, 3, 1), (7, 2)]]
PA4 = [[(19, 3, 0), (28, 2)], [(25, 4, 0), (7, 2)], [(25, 4, 0), (7, 2)], [(19, 3, 0), (17, 3)], [(31, 4, 0)], [(31, 4, 0)], [(31, 4, 0)], [(31, 4, 0)], [(18, 4, 1), (17, 2)], [(18, 3, 1), (25, 2)], [(17, 4, 1), (18, 2)], [(19, 4, 1), (9, 3)], [(28, 4, 1)], [(28, 4, 1)], [(28, 4, 1)], [(25, 3, 1), (9, 2)]]
PA5 = [[(25, 3, 0), (19, 2)], [(25, 3, 0), (19, 2)], [(31, 4, 0)], [(31, 4, 0)], [(31, 4, 0)], [(31, 4, 0)], [(28, 3, 0), (9, 3)], [(25, 3, 0), (7, 4)], [(19, 3, 1), (25, 2)], [(19, 3, 1), (25, 2)], [(18, 3, 1), (17, 3)], [(18, 3, 1), (17, 3)], [(18, 3, 1), (17, 3)], [(28, 3, 1), (9, 2)], [(28, 4, 1)], [(28, 4, 1)]]
PA6 = [[(25, 3, 0), (19, 2)], [(25, 3, 0), (19, 2)], [(31, 4, 0)], [(31, 4, 0)], [(31, 4, 0)], [(31, 4, 0)], [(19, 3, 0), (18, 3)], [(28, 3, 0), (9, 3)], [(19, 3, 0), (17, 3)], [(25, 3, 0), (7, 4)], [(18, 3, 1), (17, 3)], [(18, 3, 1), (17, 3)], [(28, 3, 1), (9, 2)], [(28, 4, 1)], [(28, 4, 1)], [(25, 4, 1)]]
PA7 = [[(28, 3, 0), (9, 3)], [(18, 3, 0), (19, 3)], [(31, 4, 0)], [(31, 4, 0)], [(31, 4, 0)], [(31, 4, 0)], [(17, 3, 0), (19, 3)], [(19, 2, 0), (18, 4)], [(18, 2, 0), (25, 3)], [(25, 3, 0), (7, 4)], [(17, 2, 0), (25, 3)], [(19, 2, 0), (17, 4)], [(28, 3, 1), (9, 2)], [(28, 4, 1)], [(28, 4, 1)], [(25, 4, 1)]]
PA8 = [[(19, 2, 0), (25, 3)], [(19, 2, 0), (25, 3)], [(31, 4, 0)], [(31, 4, 0)], [(31, 4, 0)], [(31, 4, 0)], [(19, 3, 0), (18, 3)], [(28, 3, 0), (9, 3)], [(19, 3, 0), (17, 3)], [(25, 3, 0), (7, 4)], [(18, 3, 0), (17, 3)], [(18, 3, 0), (17, 3)], [(28, 3, 1), (9, 2)], [(28, 4, 1)], [(28, 4, 1)], [(25, 4, 1)]]
PA9 = [[(25, 3, 0), (19, 2)], [(25, 3, 0), (19, 2)], [(31, 4, 1)], [(31, 4, 1)], [(31, 4, 1)], [(31, 4, 1)], [(19, 3, 0), (18, 3)], [(28, 3, 0), (9, 3)], [(19, 3, 1), (17, 3)], [(25, 3, 0), (7, 4)], [(18, 3, 2), (17, 3)], [(18, 3, 2), (17, 3)], [(28, 3, 2), (9, 2)], [(28, 4, 3)], [(28, 4, 3)], [(25, 4, 4)]]
PA10 = [[(25, 3, 0), (19, 2)], [(25, 3, 0), (19, 2)], [(31, 4, 0)], [(31, 4, 0)], [(31, 4, 0)], [(31, 4, 0)], [(19, 3, 0), (18, 3)], [(28, 3, 0), (9, 3)], [(19, 3, 2), (17, 3)], [(25, 3, 1), (7, 4)], [(18, 3, 2), (17, 3)], [(18, 3, 2), (17, 3)], [(28, 3, 3), (9, 2)], [(28, 4, 3)], [(28, 4, 3)], [(25, 4, 4)]]
PS5 = [[(31, 4)]] * 8 + [[(28, 4)]] * 8
def cls(plan, c): return [[b[0][:2] + (k,)] + list(b[1:]) for b, k in zip(plan, c)]
PB0 = cls(PA6, [0] * 16)
PB1 = cls(PA6, [0, 0, 0, 0, 0, 0, 0, 0, 0, 0, 1, 1, 1, 2, 2, 3])
PB2 = cls(PA6, [0, 0, 0, 0, 0, 0, 0, 0, 0, 0, 1, 1, 2, 3, 3, 4])
PB3 = cls(PA6, [0, 0, 1, 1, 1, 1, 0, 0, 1, 1, 2, 2, 2, 3, 3, 4])
PB4 = cls(PA6, [0, 0, 0, 0, 0, 0, 0, 0, 0, 0, 1, 1, 1, 1, 1, 2])
PB5 = cls(PA6, [0, 0, 1, 1, 1, 1, 0, 0, 0, 0, 1, 1, 1, 2, 2, 3])
PS6 = [[(31, 4), (7, 2)]] * 8 + [[(31, 3), (7, 2)]] * 4 + [[(31, 2), (7, 2)]] * 4
PC1 = [[(28, 3), (9, 3)], [(25, 3), (17, 2)], [(25, 3), (17, 2)], [(25, 3), (17, 2)], [(18, 4), (18, 2)], [(19, 3), (25, 2)], [(19, 3), (25, 2)], [(19, 4), (7, 4)], [(18, 3), (17, 3)], [(31, 4)], [(31, 4)], [(31, 4)], [(31, 4)], [(28, 3), (9, 2)], [(28, 4)], [(28, 4)]]
PC2 = [[(28, 3), (9, 3)], [(25, 3), (18, 2)], [(18, 4), (19, 2)], [(25, 3), (17, 2)], [(19, 3), (25, 2)], [(19, 3), (25, 2)], [(25, 3), (7, 4)], [(17, 4), (19, 2)], [(18, 3), (17, 3)], [(31, 4)], [(31, 4)], [(31, 4)], [(31, 4)], [(28, 3), (9, 2)], [(28, 4)], [(28, 4)]]
PD1 = [[(19, 3), (18, 3)], [(25, 3), (17, 2)], [(25, 3), (17, 2)], [(25, 3), (17, 2)], [(18, 3), (18, 3)], [(19, 3), (17, 3)], [(28, 3), (7, 3)], [(25, 4), (7, 1)], [(19, 4), (9, 3)], [(31, 4)], [(31, 4)], [(31, 4)], [(31, 4)], [(28, 3), (9, 2)], [(28, 4)], [(28, 4)]]
PD2 = [[(25, 4), (7, 2)], [(25, 4), (7, 2)], [(19, 4), (17, 2)], [(19, 4), (17, 2)], [(28, 3), (17, 1)], [(18, 4), (18, 2)], [(31, 4)], [(31, 4)], [(31, 4)], [(31, 4)], [(18, 3), (25, 2)], [(17, 4), (19, 2)], [(25, 3), (9, 3)], [(28, 3), (9, 2)], [(28, 4)], [(28, 4)]]
PD3 = [[(25, 4), (7, 2)], [(25, 4), (7, 2)], [(19, 4), (25, 1)], [(19, 4), (17, 2)], [(18, 4), (18, 2)], [(25, 4), (9, 1)], [(18, 3), (17, 3)], [(31, 4)], [(31, 4)], [(31, 4)], [(31, 4)], [(17, 4), (19, 2)], [(28, 3), (9, 2)], [(28, 3), (9, 2)], [(28, 4)], [(28, 4)]]
```

```python
import sys, struct, math
from asmlib import Asm, check_hazards
import schedA

def opt(x): return ("--" + x) in sys.argv
def optv(x, d):
    for a_ in reversed(sys.argv):
        if a_.startswith("--" + x + "="): return a_.split("=")[1]
    return d
DEF = {("sm", 1): "11", ("dw", 1): "0,9", ("vend", 1): "-1", ("kend", 1): "4",
       ("kendx", 3): "8", ("radx", 3): "1", ("dwx", 4): "20,48", ("vendx", 4): "-1", ("kbegx", 4): "7", ("radx", 4): "2", ("saluxx", 4): "0", ("abx", 4): "20", ("aex", 4): "10",
       ("dwx", 2): "8,20", ("vendx", 2): "-1", ("kendx", 2): "5",
       ("dw", 4): "26,48", ("vend", 4): "-1", ("kbeg", 4): "7", ("rad", 4): "2", ("salux", 4): "0", ("kend", 3): "8", ("kend", 2): "5", ("sm", 3): "28", ("dw", 3): "6,20", ("rad", 3): "1", ("tp", 3): "7,5,5,3,3", ("vend", 3): "2",
       ("sm", 2): "19", ("dw", 2): "11,24", ("vend", 2): "0", ("salux", 2): "1"}
def optn(x, N, d): return optv("%s%d" % (x, N), optv(x, DEF.get((x, N), d)))
STAMPS = opt("stamps"); TL = opt("tl")
NAME = "standalone__varlen_attn_packed__ragged_kernel"
HALF = 8704; PS = 1056; SZ = 2 * HALF
PRIV = 4 * SZ
LDS = 8 * SZ
BLK = 32 * 4096
GRID = 256
plan0 = getattr(schedA, optv("plan", "PB0"))
late = [len(b[0]) > 2 and b[0][2] for b in plan0]
plan = [[x[:2] for x in b] for b in plan0]
table = schedA.build(plan, not opt("nocheck"))
STMOD = " " + optv("stmod", "sc0+sc1").replace("+", " ")
needP, needE, needN, needF, needE3 = set(), set(), set(), set(), set()
for bin_ in plan:
    assert len(bin_) <= 2
    for x, y in zip(bin_, bin_[1:]): assert x[0] >= 3 + 4 * y[1], bin_
for bin_ in plan:
    ph = 0
    for ti, (n, N) in enumerate(bin_):
        if ti: needP.add((ph, N))
        else: needF.add(N)
        needN.add((N, ti + 1 < len(bin_)))
        ph = (ph + n) & 3
        needE.add((ph, N))
        needE3.add((ph, N, bin_[ti + 1][1] if ti + 1 < len(bin_) else 0))

V_KA0, V_KA1, V_VA, V_KVO, V_KVO2, V_VVO, V_VVO2, V_G4, V_QA0, V_QA1, V_EW, V_ER, V_SO, V_T4, V_T5 = range(1, 16)
V_TL = 0
S_BUF = [16, 48]
CI = 80
V_T = 112
V_U = 116
V_I = 120
V_Z = 124
V_IDX, V_SG, V_SA = V_T5, 109, 110
O = 128
A_Q, A_QR, A_KF, A_VF, A_PS, A_LS, A_ONE, A_ONM = 0, 64, 128, 160, 192, 208, 224, 232
SRD_F, SRD_K, SRD_V, SRD_O, SRD_W = 4, 8, 12, 16, 20
(S_KOFF, S_VOFF, S_WBASE, S_CNT, S_HT, S_PRIV, S_QOFF, S_NV, S_N, S_L, S_T0, S_T1, S_T2, S_T3,
 S_KBASE, S_NR, S_PH, S_HOFF, S_FB, S_TI) = range(28, 48)
S_ST = 48
P_Q, P_K, P_V, P_O = 64, 66, 68, 70
S_TASK = 80
S_BAD = 84
S_T4, S_W, S_NQ, S_NKB, S_NNR, S_NQB, S_NNQ, S_C, S_QM, S_QME, S_BLK = 86, 87, 88, 89, 90, 91, 93, 98, 99, 100, 101
S_T4E = 96

def v(i, n=1): return "v%d" % i if n == 1 else "v[%d:%d]" % (i, i + n - 1)
def a(i, n=1): return "a%d" % i if n == 1 else "a[%d:%d]" % (i, i + n - 1)
def s(i, n=1): return "s%d" % i if n == 1 else "s[%d:%d]" % (i, i + n - 1)
M16 = "v_mfma_f32_16x16x32_bf16"; M32 = "v_mfma_f32_32x32x16_bf16"

def qk_mfma(buf, i, raw=False, kf=A_KF):
    q2, kb, st = i >> 3, (i >> 2) & 1, i & 3
    d = v(buf + 8 * q2 + 4 * kb, 4)
    c = d if st else ("0" if raw else v(CI + (8 * q2 + 4 * kb if kf != A_KF else 4 * q2), 4))
    return "%s %s, %s, %s, %s" % (M16, d, a(kf + 4 * (4 * kb + st), 4), a((A_QR if raw else A_Q) + 16 * q2 + 4 * st, 4), c)
def preg(buf, q2): return buf + 8 * q2 - (4 if q2 & 1 else 0)
def GAPS(N): return 16 * N + (N + 1) // 2
def oreg(q2, db): return O + 32 * q2 + 4 * db
def pv_mfma(buf, q2, db):
    d = v(oreg(q2, db), 4)
    return "%s %s, %s, %s, %s" % (M16, d, a(A_VF + 4 * db, 4), v(preg(buf, q2), 4), d)
def sum_mfma(buf, q2, one=None, slot=None):
    d = a(A_LS + 4 * (q2 if slot is None else slot), 4)
    return "%s %s, %s, %s, %s" % (M16, d, a(A_ONE if one is None else one, 4), v(preg(buf, q2), 4), d)
def sums_after(buf, N, q2, one=A_ONE):
    if q2 & 1: return ["v_smfmac_f32_16x16x64_bf16 %s, %s, %s, %s" % (a(A_LS + 4 * (q2 >> 1), 4), a(one + 4, 4), v(buf + 8 * (q2 - 1), 8), v(V_IDX))]
    if q2 == N - 1: return [sum_mfma(buf, q2, one, q2 >> 1)]
    return []
def onm_ops(t=0):
    o = ["s_bfe_u32 %s, %s, 0xa000d" % (s(S_T2), s(S_TASK + t)), sadd(S_T2, S_T2, 31), "s_and_b32 %s, %s, 31" % (s(S_T2), s(S_T2)), sadd(S_T2, S_T2, 1),
         "v_mov_b32 %s, 0x3f80" % v(V_I + 1), "v_mov_b32 %s, 0x3f803f80" % v(V_I + 2)]
    for sp in range(2):
        o.append("v_sub_u32 %s, %s, %s" % (v(V_I), s(S_T2), v(V_SG if sp else V_G4)))
        for r in range(4):
            k = (16 * (r & 1) + 4 * (r >> 1)) if sp else (16 * (r >> 1) + 2 * (r & 1))
            o += ["v_cmp_lt_i32 vcc, %d, %s" % (k, v(V_I)), "v_cmp_lt_i32 %s, %d, %s" % (s(S_T0, 2), k + 1, v(V_I)), "s_nop 0",
                  "v_cndmask_b32 %s, 0, %s, vcc" % (v(V_I + 3), v(V_I + 1)),
                  "v_cndmask_b32 %s, %s, %s, %s" % (v(V_I + 3), v(V_I + 3), v(V_I + 2), s(S_T0, 2))]
            if sp: o.append("v_and_b32 %s, %s, %s" % (v(V_I + 3), v(V_I + 3), v(V_SA)))
            o.append("v_accvgpr_write_b32 %s, %s" % (a(A_ONM + 8 * t + 4 * sp + r), v(V_I + 3)))
    return o
def k_read(f, base, areg=V_KA0, dst=None):
    kb, st = f >> 2, f & 3
    return "ds_read_b128 %s, %s offset:%d" % (dst or a(A_KF + 4 * f, 4), v(areg + (st >> 1)), base + 4 * PS * kb + 64 * (st & 1))
def v_read(db, j, base, areg=V_VA):
    return "ds_read_b64_tr_b16 %s, %s offset:%d" % (a(A_VF + 4 * db + 2 * j, 2), v(areg), base + 512 * j + 32 * db)
def q_reads(n=4):
    return [k_read(f, 0, V_QA0, a(A_QR + 4 * f, 4)) for f in range(4 * n)]

def sm_start(N): return int(optn("sm", N, "15"))
def opq(op, buf): return (int(op.split()[-1].strip("v,")) - buf) >> 3
def softmax_ops(buf, N):
    ops = []
    st = sm_start(N)
    G = GAPS(N)
    for e in range(8 * N):
        p = st + (e * G // (8 * N) if N > 1 else e * 3 // 2)
        ops.append((p, 0, "v_exp_f32 %s, %s" % (v(buf + e), v(buf + e))))
        if e & 1:
            pc = p + int(optn("cd", N, "1"))
            if optn("cvt2", N, "0") == "1" and (e & 3) == 1: pc += 4
            ops.append((pc, 1 + (e & 2), "v_cvt_pk_bf16_f32 %s, %s, %s" % (v(preg(buf, e >> 3) + ((e & 7) >> 1)), v(buf + e - 1), v(buf + e))))
    for p, _, op in ops:
        q = opq(op, buf)
        assert 8 * q + 8 <= p < G + 8 * N + 8 * q - 1, (N, p, op)
    ops.sort()
    cv = [o for o in ops if o[1]]
    assert all(opq(x[2], buf) <= opq(y[2], buf) for x, y in zip(cv, cv[1:]))
    return [(o[0], o[2]) for o in ops]
def flat_sm(ops):
    out = []
    pend = []
    for op in ops:
        if op.startswith("v_cvt"):
            pend.append(op)
        else:
            out.append(op)
            out += pend; pend = []
    if pend: out += ["s_nop 0"] + pend
    return out

def dma(vo, srd, so): return "buffer_load_dwordx4 %s, %s, %s offen lds" % (v(vo), s(srd, 4), s(so))
def m0(off, base=None): return "s_add_u32 m0, %s, %d" % (s(S_WBASE if base is None else base), off)
def sadd(d, x, imm): return "s_add_u32 %s, %s, %d" % (s(d), s(x), imm)
def smov(d, x): return "s_mov_b32 %s, %s" % (s(d), s(x))
def smov2(d, x): return "s_mov_b64 %s, %s" % (s(d, 2), s(x, 2))
def stream_groups(slot):
    b = slot * SZ
    return [[m0(b)], [dma(V_KVO, SRD_K, S_KOFF)], [m0(b + 4 * PS)], [dma(V_KVO2, SRD_K, S_KOFF)],
            [m0(b + HALF)], [dma(V_VVO, SRD_V, S_VOFF)], [m0(b + HALF + 4 * PS)], [dma(V_VVO2, SRD_V, S_VOFF)],
            ["s_add_u32 %s, %s, %s" % (s(S_KOFF), s(S_KOFF), s(S_BLK))], ["s_add_u32 %s, %s, %s" % (s(S_VOFF), s(S_VOFF), s(S_BLK))]]
def stream_flat(slot):
    out = []
    for g in stream_groups(slot):
        out += g
        if " m0," in g[0]: out.append("s_nop 0")
    return out
def kblock_flat(ldsoff):
    return [m0(ldsoff), "s_nop 0", dma(V_KVO, SRD_K, S_KOFF), m0(ldsoff + 4 * PS), "s_nop 0", dma(V_KVO2, SRD_K, S_KOFF), sadd(S_KOFF, S_KOFF, BLK)]
def qgroup(g):
    out = []
    for n in range(4 * g, 4 * g + 4):
        out += [m0(n * PS, S_PRIV), "s_nop 0", dma(V_KVO, SRD_F, S_T4), sadd(S_T4, S_T4, 16384)]
    return out

COST = {"ds_read_b128": 12, "ds_read_b64_tr_b16": 8, "buffer_load_dwordx4": 12, "v_exp_f32": 8}
def cost(op): return COST.get(op.split()[0], 4)

def aux_ops():
    return ["s_mov_b32 m0, %s" % s(S_QM), dma(V_KVO, SRD_F, S_T4),
            sadd(S_QM, S_QM, PS), "s_min_u32 %s, %s, %s" % (s(S_QM), s(S_QM), s(S_QME)),
            sadd(S_T4, S_T4, 16384), "s_min_u32 %s, %s, %s" % (s(S_T4), s(S_T4), s(S_T4E))]
def iteration(A, u, N, aux=False):
    nxt, cur = S_BUF[u & 1], S_BUF[1 - (u & 1)]
    opta = (lambda x, n_, d: optn(x + 'x', n_, optn(x, n_, d))) if aux else optn
    G = GAPS(N)
    ms = [qk_mfma(nxt, i) for i in range(8 * N)]
    for q2 in range(N):
        ms += [pv_mfma(cur, q2, db) for db in range(8)] + sums_after(cur, N, q2)
    if opt("pvord"):
        ms = ms[:8 * N] + [pv_mfma(cur, q2, db) for db in range(8) for q2 in range(N)] + sum((sums_after(cur, N, q) for q in range(N)), [])
    if opt("pvord2"):
        ms = ms[:8 * N] + [pv_mfma(cur, 2 * h + q2, db) for h in range(N // 2) for db in range(8) for q2 in range(2)] + sum((sums_after(cur, N, q) for q in range(N)), [])
    if opt("qkord"):
        ms = [qk_mfma(nxt, 16 * h + 8 * q2 + f) for h in range(N // 2) for f in range(8) for q2 in range(2)] + ms[8 * N:]
    if opt("qkord2"):
        ms = [qk_mfma(nxt, 8 * q2 + 4 * kb + st) for q2 in range(N) for st in range(4) for kb in range(2)] + ms[8 * N:]
    va = [[] for _ in range(G)]; nv = [[] for _ in range(G)]
    for p, op in softmax_ops(cur, N):
        if p >= G: va[p - G].append(op)
    for p, op in softmax_ops(nxt, N):
        if p < G: va[p].append(op)
    RAD = int(opta('rad', N, '1'))
    load = lambda g: sum(map(cost, va[g] + nv[g]))
    def place(items, lo, hi, strict=False):
        last = lo - (1 if strict else 0)
        pos = []
        for i, it in enumerate(items):
            t = lo + (i + 0.5) * (hi - lo + 1) / len(items)
            mn = last + (1 if strict else 0)
            mx = hi - ((len(items) - 1 - i) if strict else 0)
            cand = [g for g in range(int(t) - RAD, int(t) + RAD + 1) if mn <= g <= mx] or [min(max(int(t), mn), mx)]
            if it.startswith("s_") and opta("salux", N, "0") == "1":
                g = min(cand, key=lambda g: (len(nv[g]) > 0, not any("exp" in x for x in va[g]), abs(g + 0.5 - t)))
            else:
                g = min(cand, key=lambda g: (load(g), abs(g + 0.5 - t)))
            nv[g].append(it); last = g; pos.append(g)
        return pos
    H = 8 * N
    vpos = place([v_read(i >> 1, i & 1, u * SZ) for i in range(16)], int(opta('vbeg', N, '0')), H + int(opta('vend', N, '-1' if N == 2 else '-3')))
    kpos = place([k_read(f, u * SZ) for f in range(8)], max(H + int(opta('kbeg', N, '0')), vpos[-1]), G - int(opta('kend', N, '7')))
    sg = stream_groups((u + 3) % 4)
    dlo, dhi = [int(x) for x in opta("dw", N, {1: "0,9", 2: "1,15", 3: "24,43", 4: "33,56"}[N]).split(",")]
    ax = aux_ops() if aux else []
    dpos = place(ax[:2] + [g[0] for g in sg[:8]], dlo, dhi, True)
    if aux: place(ax[2:], max(dpos[1] + 1, int(opta('ab', N, '0'))), G - int(opta('ae', N, '8')), True)
    tailp = [int(x) for x in opta("tp", N, "6,5,4,3,2").split(",")]
    nv[G - tailp[0]] += sg[8]; nv[G - tailp[1]] += sg[9]
    nv[G - tailp[2]].append("s_sub_u32 %s, %s, 1" % (s(S_CNT), s(S_CNT)))
    nv[G - tailp[3]].append("s_cmp_le_u32 %s, %s" % (s(S_CNT), s(S_HT)))
    if TL: nv[G - tailp[4]].append("s_memrealtime s[94:95]" if opt("tlrt") else "s_memtime s[94:95]")
    nv[G - tailp[4]].append("s_waitcnt vmcnt(%d) lgkmcnt(0)" % (10 if aux else 8))
    assert dhi < G - tailp[0] and kpos[-1] < G - tailp[4]
    covered = -1
    for g in range(G):
        if H <= g < H + 8 and g - H > covered:
            db = g - H
            while db + 1 < 8 and vpos[2 * db + 3] <= g - int(opta("wd", N, "4")): db += 1
            covered = db
            assert vpos[2 * db + 1] < g
            younger = sum(1 for p in vpos[2 * db + 2:] if p < g) + sum(1 for p in kpos if p < g)
            A("s_waitcnt lgkmcnt(%d)" % younger)
        A(ms[g]); A.ext(nv[g]); A.ext(va[g])

def mask_ops(N=4):
    o = ["v_sub_u32 %s, %s, %s" % (v(V_U), s(S_NV), v(V_G4)), "v_mov_b32 %s, 0xff800000" % v(V_U + 1)]
    prs = ["vcc", s(S_T0, 2)]
    for r in range(8 + 1):
        if r < 8: o.append("v_cmp_lt_i32 %s, %d, %s" % (prs[r % 2], 16 * (r >> 2) + (r & 3), v(V_U)))
        if r == 0: o.append("s_nop 0")
        if r >= 1:
            for q2 in range(N):
                x = CI + 8 * q2 + r - 1
                o.append("v_cndmask_b32 %s, %s, %s, %s" % (v(x), v(V_U + 1), v(x), prs[(r - 1) % 2]))
    o.append("s_nop 1")
    return o
def rowmax(b, N, first):
    o = []
    if first:
        for q2 in range(N): o.append("v_max3_f32 %s, %s, %s, %s" % (v(V_T + q2), v(b + 8 * q2), v(b + 8 * q2 + 1), v(b + 8 * q2 + 2)))
        for i in (3, 5):
            for q2 in range(N): o.append("v_max3_f32 %s, %s, %s, %s" % (v(V_T + q2), v(V_T + q2), v(b + 8 * q2 + i), v(b + 8 * q2 + i + 1)))
        for q2 in range(N): o.append("v_max_f32 %s, %s, %s" % (v(V_T + q2), v(V_T + q2), v(b + 8 * q2 + 7)))
    else:
        for i in range(0, 8, 2):
            for q2 in range(N): o.append("v_max3_f32 %s, %s, %s, %s" % (v(V_T + q2), v(V_T + q2), v(b + 8 * q2 + i), v(b + 8 * q2 + i + 1)))
    return o
def crossmax(N):
    o = []
    for w in (32, 16):
        o += ["v_mov_b32 %s, %s" % (v(V_U + q), v(V_T + q)) for q in range(N)] + (["s_nop 0"] if N == 2 else [])
        o += ["v_permlane%d_swap_b32 %s, %s" % (w, v(V_T + q), v(V_U + q)) for q in range(N)]
        o += ["v_max_f32 %s, %s, %s" % (v(V_T + q), v(V_T + q), v(V_U + q)) for q in range(N)]
    return o
def ps_mfmas(g):
    d = v(O + 16 * g, 16)
    return ["%s %s, %s, %s, %s" % (M32, d, a(A_PS + m, 4), a(A_QR + 8 * g + 4 * fr, 4), "0" if k == 0 else d) for k, (m, fr) in enumerate(((0, 0), (4, 1), (8, 0), (12, 1)))]
def ps_cvts(g):
    b = O + 16 * g
    o = ["v_cvt_pk_bf16_f32 %s, %s, %s" % (v(b + i), v(b + 2 * i), v(b + 2 * i + 1)) for i in range(8)]
    o += ["v_accvgpr_write_b32 %s, %s" % (a(A_Q + 8 * g + i), v(b + i)) for i in range(8)]
    return o
def ozero(g): return "%s %s, %s, %s, 0" % (M32, v(O + 16 * g, 16), v(V_Z, 4), v(V_Z, 4))
def lzero(): return "%s %s, %s, %s, 0" % (M32, a(A_LS, 16), v(V_Z, 4), v(V_Z, 4))

nst = [0]
def stamp(A, idx, first_only=False):
    if STAMPS:
        if first_only:
            nst[0] += 1
            A("s_cmp_eq_u32 %s, 0" % s(S_TI)); A("s_cbranch_scc0 L_st%d" % nst[0])
        A("s_memtime %s" % s(S_ST + 2 * idx, 2))
        if first_only: A.label("L_st%d" % nst[0])
def tl_pre(A):
    if TL: A("s_memrealtime s[94:95]" if opt("tlrt") else "s_memtime s[94:95]")
def tl_post(A):
    if TL:
        A("s_mov_b32 m0, s92"); A("s_add_u32 s92, s92, 1"); A("v_writelane_b32 %s, s94, m0" % v(V_TL))
def tl(A):
    if TL:
        tl_pre(A); A("s_waitcnt lgkmcnt(0)"); tl_post(A)

def decode(word):
    return ["s_and_b32 %s, %s, 0x1fff" % (s(S_T0), s(word)),
            "s_bfe_u32 %s, %s, 0xa000d" % (s(S_T1), s(word)),
            "s_add_u32 %s, %s, %s" % (s(S_T1), s(S_T0), s(S_T1)),
            "s_lshl_b32 %s, %s, 12" % (s(S_NNR), s(S_T1)),
            "s_bfe_u32 %s, %s, 0x1001e" % (s(S_T1), s(word)),
            "s_lshl_b32 %s, %s, 8" % (s(S_T1), s(S_T1)),
            "s_add_u32 %s, %s, %s" % (s(S_T1), s(S_T1), s(S_HOFF)),
            "s_lshl_b32 %s, %s, 12" % (s(S_NKB), s(S_T0)),
            "s_add_u32 %s, %s, %s" % (s(S_NKB), s(S_NKB), s(S_T1)),
            "s_bfe_u32 %s, %s, 0x3001b" % (s(S_NNQ), s(word)),
            "s_bfe_u32 %s, %s, 0x40017" % (s(S_T1), s(word)),
            "s_lshl_b32 %s, %s, 2" % (s(S_T1), s(S_T1)),
            "s_mul_i32 %s, %s, %s" % (s(S_T0), s(S_W), s(S_NNQ)),
            "s_add_u32 %s, %s, %s" % (s(S_T1), s(S_T1), s(S_T0)),
            "s_lshl_b32 %s, %s, 16" % (s(S_NQB), s(S_T1)),
            "s_add_u32 %s, %s, %s" % (s(S_NQB), s(S_NQB), s(S_NKB)),
            "s_lshl_b32 %s, %s, 14" % (s(S_T0), s(S_W)),
            "s_sub_u32 %s, %s, %s" % (s(S_T4), s(S_NQB), s(S_T0)),
            smov2(SRD_F, P_Q), smov(SRD_F + 2, S_NNR)]
def task_setup(more=True):
    base = [smov(S_KBASE, S_NKB), smov(S_NR, S_NNR), smov(SRD_O + 2, S_NNR), smov(S_QOFF, S_NQB), smov(S_NQ, S_NNQ),
            "s_bfe_u32 %s, %s, 0xa000d" % (s(S_L), s(S_TASK)),
            sadd(S_N, S_L, 31), "s_lshr_b32 %s, %s, 5" % (s(S_N), s(S_N)),
            "s_sub_u32 %s, %s, 1" % (s(S_CNT), s(S_N)),
            "s_lshl_b32 %s, %s, 5" % (s(S_T1), s(S_CNT)),
            "s_sub_u32 %s, %s, %s" % (s(S_NV), s(S_L), s(S_T1)),
            "s_mov_b32 %s, 0" % s(S_FB),
            smov(S_QM, S_PRIV)]
    if not more: return base + ["s_mov_b32 %s, 0" % s(S_HT), "s_mov_b32 %s, 0" % s(S_NNQ), "s_mov_b32 %s, 0" % s(S_NNR)]
    return base + decode(S_TASK + 1) + ["s_cmp_eq_u32 %s, 0" % s(S_NNR), "s_cselect_b32 %s, 0, 4" % s(S_HT),
            "s_lshl_b32 %s, %s, 2" % (s(S_T0), s(S_NNQ)), "s_max_u32 %s, %s, 1" % (s(S_T0), s(S_T0)), "s_sub_u32 %s, %s, 1" % (s(S_T0), s(S_T0)),
            "s_mul_i32 %s, %s, %d" % (s(S_QME), s(S_T0), PS), "s_add_u32 %s, %s, %s" % (s(S_QME), s(S_QME), s(S_QM)),
            "s_lshl_b32 %s, %s, 14" % (s(S_T4E), s(S_T0)), "s_add_u32 %s, %s, %s" % (s(S_T4E), s(S_T4E), s(S_T4))]

A = Asm()
A.label(NAME)
A("s_cmp_ge_u32 s2, %d" % GRID)
A("s_cbranch_scc1 L_end")
if STAMPS: A("s_memrealtime %s" % s(S_ST + 12, 2))
stamp(A, 0)
A("s_load_dwordx4 s[64:67], s[0:1], 0")
A("s_load_dwordx2 s[68:69], s[0:1], 16")
A("s_load_dwordx2 s[70:71], s[0:1], 32")
if STAMPS: A("s_load_dwordx2 s[72:73], s[0:1], 48")
A("s_getpc_b64 s[74:75]")
A.label("L_pc")
A("s_lshr_b32 s76, s2, 3")
A("s_lshl_b32 s76, s76, 4")
A("s_add_u32 s78, s74, L_table-L_pc")
A("s_addc_u32 s79, s75, 0")
A("s_load_dwordx4 %s, s[78:79], s76" % s(S_TASK, 4))
A("v_lshrrev_b32 %s, 6, v0" % v(V_U))
A("v_and_b32 v22, 63, v0")
A("s_lshl_b32 s77, s76, 8")
A("v_readfirstlane_b32 %s, %s" % (s(S_W), v(V_U)))
A("v_and_b32 %s, 31, v0" % v(V_T4))
A("v_lshl_add_u32 %s, %s, 7, s77" % (v(V_T4), v(V_T4)))
A("v_min_u32 %s, L_cold-L_pc, %s" % (v(V_T4), v(V_T4)))
A("s_cmp_eq_u32 %s, 0" % s(S_W))
A("s_cbranch_scc0 L_nowarm")
A("global_load_dword %s, %s, s[74:75]" % (v(V_T4), v(V_T4)))
A.label("L_nowarm")
G, P16, R4, X0, X1, X2 = 16, 17, 18, 19, 20, 21
A("v_lshrrev_b32 %s, 4, v22" % v(G))
A("v_and_b32 %s, 15, v22" % v(P16))
A("v_and_b32 %s, 3, v22" % v(R4))
def fswz(dst, src, tmp):
    A("v_and_b32 %s, 2, %s" % (v(tmp), v(src)))
    A("v_and_b32 %s, 1, %s" % (v(dst), v(src)))
    A("v_lshl_add_u32 %s, %s, 2, %s" % (v(dst), v(tmp), v(dst)))
fswz(X0, G, X1)
A("v_xor_b32 %s, %s, %s" % (v(X0), v(X0), v(P16)))
A("s_lshl_b32 %s, %s, 2" % (s(S_T0), s(S_W)))
A("v_add_u32 %s, %s, %s" % (v(X1), s(S_T0), v(G)))
A("v_lshlrev_b32 %s, 12, %s" % (v(X1), v(X1)))
A("v_lshl_add_u32 %s, %s, 4, %s" % (v(V_KVO), v(X0), v(X1)))
A("v_add_u32 %s, %d, %s" % (v(V_KVO2), 16 * 4096, v(V_KVO)))
A("v_lshl_add_u32 %s, %s, 3, %s" % (v(X1), v(G), s(S_W)))
A("v_lshlrev_b32 %s, 12, %s" % (v(X1), v(X1)))
A("v_lshl_add_u32 %s, %s, 4, %s" % (v(V_VVO), v(P16), v(X1)))
A("v_add_u32 %s, %d, %s" % (v(V_VVO2), 4 * 4096, v(V_VVO)))
A("s_mul_i32 %s, %s, %d" % (s(S_WBASE), s(S_W), PS))
A("s_mov_b32 %s, %d" % (s(S_BLK), BLK))
A("s_mul_i32 %s, %s, %d" % (s(S_PRIV), s(S_W), SZ))
A(sadd(S_PRIV, S_PRIV, PRIV))
A("s_and_b32 %s, s2, 7" % s(S_HOFF))
A("s_lshl_b32 %s, %s, 9" % (s(S_HOFF), s(S_HOFF)))
A("s_mov_b32 %s, 0" % s(S_TI))
A("s_mov_b32 %s, 0x%08x" % (s(S_C), struct.unpack("<I", struct.pack("<f", (128 ** -0.5) * math.log2(math.e)))[0]))
for srd in (SRD_K, SRD_F, SRD_V, SRD_O):
    A("s_mov_b32 %s, 0x20000" % s(srd + 3))
if TL:
    A("s_mov_b32 s92, 0"); A("v_mov_b32 %s, 0" % v(V_TL))
A("s_waitcnt lgkmcnt(0)")
if opt("tls"): tl(A)
A.ext(decode(S_TASK))
for srd, src in ((SRD_K, P_K), (SRD_V, P_V), (SRD_O, P_O)):
    A(smov2(srd, src))
for srd in (SRD_K, SRD_V): A(smov(srd + 2, S_NNR))
if STAMPS:
    A("s_mov_b32 %s, s72" % s(SRD_W)); A("s_mov_b32 %s, s73" % s(SRD_W + 1))
    A("s_mov_b32 %s, 0x1000000" % s(SRD_W + 2)); A("s_mov_b32 %s, 0x20000" % s(SRD_W + 3))
A(smov(S_KOFF, S_NKB)); A(smov(S_VOFF, S_NKB))
A.ext(kblock_flat(HALF) + kblock_flat(0))
A.ext(qgroup(0)); A.ext(qgroup(1))
if opt("tls"): tl(A)
fswz(X0, R4, X1)
A("v_xor_b32 %s, %s, %s" % (v(X0), v(X0), v(G)))
A("v_lshrrev_b32 %s, 2, %s" % (v(X2), v(P16)))
A("v_mul_u32_u24 %s, %d, %s" % (v(X1), PS, v(X2)))
A("v_lshl_add_u32 %s, %s, 8, %s" % (v(X1), v(R4), v(X1)))
A("v_lshl_add_u32 %s, %s, 4, %s" % (v(V_KA0), v(X0), v(X1)))
A("v_xor_b32 %s, 8, %s" % (v(X0), v(X0)))
A("v_lshl_add_u32 %s, %s, 4, %s" % (v(V_KA1), v(X0), v(X1)))
A("v_add_u32 %s, %s, %s" % (v(V_QA0), s(S_PRIV), v(V_KA0)))
A("v_add_u32 %s, %s, %s" % (v(V_QA1), s(S_PRIV), v(V_KA1)))
A("v_and_b32 %s, 1, %s" % (v(X0), v(G)))
A("v_lshl_add_u32 %s, %s, 2, %s" % (v(X0), v(X0), v(X2)))
A("v_mul_u32_u24 %s, %d, %s" % (v(X0), PS, v(X0)))
A("v_lshrrev_b32 %s, 1, %s" % (v(X1), v(G)))
A("v_lshl_add_u32 %s, %s, 8, %s" % (v(X0), v(X1), v(X0)))
A("v_lshl_add_u32 %s, %s, 3, %s" % (v(X0), v(R4), v(X0)))
A("v_add_u32 %s, %d, %s" % (v(V_VA), HALF, v(X0)))
A("v_mul_u32_u24 %s, 272, %s" % (v(X0), v(P16)))
A("v_lshl_add_u32 %s, %s, 3, %s" % (v(X0), v(G), v(X0)))
A("v_add_u32 %s, %s, %s" % (v(V_EW), s(S_PRIV), v(X0)))
A("v_mul_u32_u24 %s, 272, %s" % (v(X0), v(G)))
A("v_lshl_add_u32 %s, %s, 4, %s" % (v(X0), v(P16), v(X0)))
A("v_add_u32 %s, %s, %s" % (v(V_ER), s(S_PRIV), v(X0)))
A("v_lshlrev_b32 %s, 12, %s" % (v(X0), v(G)))
A("v_lshl_add_u32 %s, %s, 4, %s" % (v(V_SO), v(P16), v(X0)))
A("v_lshlrev_b32 %s, 2, %s" % (v(V_G4), v(G)))
A("v_bfe_u32 %s, v22, 1, 1" % v(X0))
A("v_lshrrev_b32 %s, 5, v22" % v(X1))
A("v_cmp_eq_u32 vcc, %s, %s" % (v(X0), v(X1)))
A("v_and_b32 %s, 1, v22" % v(X2))
A("v_bfe_u32 %s, v22, 4, 1" % v(X1))
A("v_cndmask_b32 %s, 0, -1, vcc" % v(V_SA))
A("v_lshlrev_b32 %s, 3, %s" % (v(X1), v(X1)))
A("v_lshl_add_u32 %s, %s, 1, %s" % (v(V_SG), v(X2), v(X1)))
A("v_mul_u32_u24 %s, 0xaaaa, %s" % (v(X2), v(X2)))
A("v_add_u32 %s, 0x4444, %s" % (v(V_IDX), v(X2)))
A("v_mov_b32 %s, 0x3f803f80" % v(X0))
A("v_and_b32 %s, %s, %s" % (v(X1), v(X0), v(V_SA)))
for i in range(4):
    A("v_accvgpr_write_b32 %s, %s" % (a(A_ONE + i), v(X0)))
    A("v_accvgpr_write_b32 %s, %s" % (a(A_ONE + 4 + i), v(X1)))
    A("v_mov_b32 %s, 0" % v(V_Z + i))
LN = 24
A("v_bfe_u32 %s, v22, 2, 1" % v(X0))
A("v_lshrrev_b32 %s, 5, v22" % v(X1))
A("v_xor_b32 %s, %s, %s" % (v(X0), v(X0), v(X1)))
A("v_bfe_u32 %s, v22, 3, 2" % v(X1))
A("v_bfe_u32 %s, v22, 1, 1" % v(X2))
A("v_lshl_add_u32 %s, %s, 1, %s" % (v(X1), v(X1), v(X2)))
A("v_lshl_add_u32 %s, %s, 4, %s" % (v(X1), v(X0), v(X1)))
A("v_and_b32 %s, 1, v22" % v(X2))
A("v_lshlrev_b32 %s, 4, %s" % (v(X2), v(X2)))
A("v_mov_b32 %s, 0x3e03" % v(LN + 1))
A("v_mov_b32 %s, 0xb9d8" % v(LN + 2))
A("v_lshlrev_b32 %s, %s, %s" % (v(LN + 1), v(X2), v(LN + 1)))
A("v_lshlrev_b32 %s, %s, %s" % (v(LN + 2), v(X2), v(LN + 2)))
for r in range(8):
    A("v_cmp_eq_u32 vcc, %d, %s" % (r, v(X1)))
    A("s_nop 1")
    A("v_cndmask_b32 %s, 0, %s, vcc" % (v(LN + 3), v(LN + 1)))
    A("v_cndmask_b32 %s, 0, %s, vcc" % (v(LN + 4), v(LN + 2)))
    A("v_accvgpr_write_b32 %s, %s" % (a(A_PS + r), v(LN + 3)))
    A("v_accvgpr_write_b32 %s, %s" % (a(A_PS + 8 + r), v(LN + 4)))
if opt("tls"): tl(A)
for g in (2, 3):
    A("s_cmp_le_u32 %s, %d" % (s(S_NNQ), g)); A("s_cbranch_scc1 L_qdone")
    A.ext(qgroup(g))
A.label("L_qdone")
if opt("tls"): tl(A)
A.ext(task_setup())
MAXT = max(len(x) for x in plan)
for t in range(MAXT): A.ext(onm_ops(t))
A(lzero())
Fs = sorted(needF)
for N in Fs[:-1]:
    A("s_cmp_eq_u32 %s, %d" % (s(S_NQ), N)); A("s_cbranch_scc1 L_f%d" % N)
def qnext_items():
    it = []
    for g in range(4):
        q = qgroup(g)
        for k in range(4):
            pre = []
            if g >= 2 and k == 0:
                pre = ["s_cmp_le_u32 %s, %d" % (s(S_NNQ), g), "s_cselect_b32 %s, 0, %s" % (s(SRD_F + 2), s(SRD_F + 2))]
            it.append(pre + [q[4 * k]]); it.append([q[4 * k + 2], q[4 * k + 3]])
    return it
def weave(va, items, first=0):
    out = []
    step = max(1, (len(va) - first) // (len(items) + 1))
    items = list(items)
    for i, l in enumerate(va):
        out.append(l)
        if i >= first and (i - first) % step == 0 and items: out += items.pop(0)
    assert not items
    return out
def pvalu(b, N, raw):
    va = rowmax(b, N, True) + crossmax(N)
    if raw: va += ["v_mul_f32 %s, %s, %s" % (v(V_T + q), s(S_C), v(V_T + q)) for q in range(N)]
    va += ["v_sub_f32 %s, 0, %s" % (v(CI + 8 * q), v(V_T + q)) for q in range(N)]
    for i in range(8 * N):
        if raw: va.append("v_fma_f32 %s, %s, %s, -%s" % (v(b + i), v(b + i), s(S_C), v(V_T + (i >> 3))))
        else: va.append("v_sub_f32 %s, %s, %s" % (v(b + i), v(b + i), v(V_T + (i >> 3))))
        if 1 <= (i & 7) < 4: va.append("v_mov_b32 %s, %s" % (v(CI + i), v(CI + (i & ~7))))
    va += flat_sm([op for p, op in softmax_ops(b, N) if p < GAPS(N)])
    return va
def pvalu_q(b, N, q):
    r = b + 8 * q; t = V_T + q; u_ = V_U + q
    va = ["v_max3_f32 %s, %s, %s, %s" % (v(t), v(r), v(r + 1), v(r + 2)), "v_max3_f32 %s, %s, %s, %s" % (v(u_), v(r + 3), v(r + 4), v(r + 5)),
          "v_max3_f32 %s, %s, %s, %s" % (v(t), v(t), v(r + 6), v(r + 7)), "v_max_f32 %s, %s, %s" % (v(t), v(t), v(u_))]
    for w in (32, 16):
        va += ["v_mov_b32 %s, %s" % (v(u_), v(t)), "s_nop 1", "v_permlane%d_swap_b32 %s, %s" % (w, v(t), v(u_)), "v_max_f32 %s, %s, %s" % (v(t), v(t), v(u_))]
    va += ["v_sub_f32 %s, %s, %s" % (v(r + i), v(r + i), v(t)) for i in range(8)]
    va += ["v_sub_f32 %s, 0, %s" % (v(CI + 4 * q + i), v(t)) for i in range(4)]
    va += flat_sm([op for p, op in softmax_ops(b, N) if p < GAPS(N) and opq(op, b) == q])
    return va
def qk0(b, i):
    m_ = qk_mfma(b, i)
    return m_[:m_.rindex(",")] + ", 0" if (i & 3) == 0 else m_
def under(A, mm, va):
    per = -(-len(va) // len(mm)) if va else 0
    for m_ in mm:
        A.ext(m_ if isinstance(m_, list) else [m_]); A.ext(va[:per]); va = va[per:]
def first(A, N):
    qr = q_reads()
    b = S_BUF[0]
    S1 = int(optv("s1at", "1"))
    st_ = {"issued": 0}
    def fetch(q):
        if q == max(0, N - S1):
            A.ext(stream_flat(1)); st_["issued"] = 4
        if opt("tls"): tl(A)
        A("s_waitcnt vmcnt(%d)" % (st_["issued"] + 4 * (N - 1 - q)))
        if opt("tls"): tl(A)
        A.ext(qr[4 * q:4 * q + 4])
        if q == N - 1:
            tl(A)
            stamp(A, 1, True)
    fetch(0)
    A("s_barrier")
    for f in range(8): A(k_read(f, HALF))
    for q in range(N):
        last = q == N - 1
        A("s_waitcnt lgkmcnt(%d)" % (8 if q == 0 else 0))
        sg = stream_groups(2) if last else [[]] * 10
        mm = ps_mfmas(2 * q) + ps_mfmas(2 * q + 1)
        va = pvalu_q(b, N, q - 1) if q else []
        A.ext(mm[:2]); A("s_nop 3")
        under(A, [[m_] + sg[i] for i, m_ in enumerate(mm[2:])], va)
        A.ext(sg[6] + ["s_nop 0"] + sg[7] + sg[8] + sg[9] + (["s_nop 6"] if q == 0 else []))
        A.ext(ps_cvts(2 * q)); A(ozero(2 * q))
        A.ext(ps_cvts(2 * q + 1)); A(ozero(2 * q + 1))
        A("s_waitcnt lgkmcnt(0)" if q == 0 else "s_nop 0")
        for i in range(8):
            A(qk0(b, 8 * q + i))
            if last: A(k_read(i, 0))
        if not last: fetch(q + 1)
    A("s_nop 6")
    A.ext(weave(pvalu_q(b, N, N - 1), [[x] for x in aux_ops()] + stream_groups(3)))
    tl_pre(A)
    A("s_waitcnt vmcnt(9) lgkmcnt(0)")
    if (N, True) in needN:
        A("s_cmp_lg_u32 %s, 0" % s(S_NNR))
        A("s_cbranch_scc1 L_itb%dx_1" % N)
    A("s_branch L_itb%d%s_1" % (N, "" if (N, False) in needN else "x"))
first(A, Fs[-1])
for N in Fs[:-1]:
    A.label("L_f%d" % N)
    first(A, N)
def dispatchP(A, u):
    Ns = sorted(N for (p, N) in needP if p == u)
    for N in Ns[:-1]:
        A("s_cmp_eq_u32 %s, %d" % (s(S_NQ), N)); A("s_cbranch_scc1 L_p%d_%d" % (N, u))
    A("s_branch L_p%d_%d" % (Ns[-1], u))

def pphase(A, u, N):
    b = S_BUF[u & 1]
    mv = ["v_accvgpr_mov_b32 %s, %s" % (a(A_ONM + i), a(A_ONM + 8 + i)) for i in range(8 * (MAXT - 1))]
    A.ext(mv)
    for i in range(8 * N): A(qk0(b, i))
    for f in range(8): A(k_read(f, u * SZ))
    A(lzero())
    for q in range(N): A.ext(pvalu_q(b, N, q))
    tl_pre(A)
    A("s_waitcnt lgkmcnt(0)")

for (N, aux) in sorted(needN, reverse=True):
    X = "%d%s" % (N, "x" if aux else "")
    A(".p2align 6")
    phase = int(optv("al", "1"))
    for _ in range(phase): A("s_nop 0")
    for u in (1, 2, 3, 0):
        A.label("L_itb%s_%d" % (X, u))
        tl_post(A)
        A("s_nop 0" if (opt("nobar") or (opt("bar2") and u & 1)) else "s_barrier")
        i0 = len(A.lines)
        iteration(A, u, N, aux)
        def isz(l):
            op = l.split()[0]
            if op.startswith(("v_mfma", "v_smfmac", "ds_", "buffer_", "v_cvt")): return 8
            if op == "s_add_u32" and l.split(",")[-1].strip().isdigit() and int(l.split(",")[-1]) > 64: return 8
            return 4
        phase = (phase + (8 + (20 if TL else 0) + sum(isz(l) for l in A.lines[i0:])) // 4) % 8
        k = {0: 1, 7: 2}.get(phase, 0)
        ex = [i for i in range(i0, len(A.lines)) if A.lines[i].startswith("v_exp_f32 ")]
        for j in range(k):
            i = ex[(2 * j + 1) * len(ex) // (2 * k)]
            A.lines[i] = A.lines[i].replace("v_exp_f32 ", "v_exp_f32_e64 ")
        phase = (phase + k) % 8
        if u != 0: A("s_cbranch_scc1 L_sp%s_%d" % (X, (u + 1) % 4))
        else: A("s_cbranch_scc0 L_itb%s_1" % X)
    for u in (1, 2, 3, 0):
        A.label("L_sp%s_%d" % (X, u))
        mine = [x for x in needE3 if x[:2] == (u, N) and (x[2] > 0) == aux]
        if mine:
            A("s_cmp_eq_u32 %s, 0" % s(S_CNT))
            A("s_cbranch_scc1 L_e%s_%d" % (X, u))
        if aux:
            A("s_cmp_eq_u32 %s, 2" % s(S_CNT))
            A("s_cbranch_scc1 L_sv%s_%d" % (X, u))
            A(smov(SRD_K + 2, S_NNR)); A(smov(S_KOFF, S_NKB))
        A("s_mov_b32 %s, %d" % (s(S_HT), 2 if aux else 0))
        if mine and not opt("norw"):
            A("s_mov_b32 %s, L_e%s_%d-L_pc" % (s(S_T0), X, u))
            if aux:
                for w_, lab in ((1, "L_e%s_%d-L_pc+8192" % (X, u)), (2, "L_e%s_%d-L_pc+16384" % (X, u))):
                    A("s_cmp_eq_u32 %s, %d" % (s(S_W), w_))
                    A("s_cselect_b32 %s, %s, %s" % (s(S_T0), lab, s(S_T0)))
            if aux:
                nxs = sorted({x[2] for x in mine})
                A("s_mov_b32 %s, L_itb%d_1-L_pc" % (s(S_T1), nxs[0]))
                for nx in nxs[1:]:
                    A("s_cmp_eq_u32 %s, %d" % (s(S_NNQ), nx))
                    A("s_cselect_b32 %s, L_itb%d_1-L_pc, %s" % (s(S_T1), nx, s(S_T1)))
                A("s_cmp_eq_u32 %s, 3" % s(S_W))
                A("s_cselect_b32 %s, %s, %s" % (s(S_T0), s(S_T1), s(S_T0)))
            A("v_mbcnt_lo_u32_b32 %s, -1, 0" % v(V_U))
            A("v_mbcnt_hi_u32_b32 %s, -1, %s" % (v(V_U), v(V_U)))
            A("v_lshl_add_u32 %s, %s, 7, %s" % (v(V_U), v(V_U), s(S_T0)))
            A("v_min_u32 %s, L_table-L_pc, %s" % (v(V_U), v(V_U)))
            A("global_load_dword %s, %s, s[74:75]" % (v(V_T4), v(V_U)))
        A("s_branch L_itb%s_%d" % (X, u))
        if aux:
            A.label("L_sv%s_%d" % (X, u))
            A(smov(SRD_V + 2, S_NNR)); A(smov(S_VOFF, S_NKB)); A("s_mov_b32 %s, 0" % s(S_HT))
            A("s_branch L_itb%s_%d" % (X, u))
A.label("L_late")

def norm_q2(q2):
    out = []
    for j in range(8 + 2):
        if j < 8:
            r = oreg(q2, j)
            out += ["v_mul_f32 %s, %s, %s" % (v(r + i), v(V_I + q2), v(r + i)) for i in range(4)]
        if 1 <= j < 9:
            r = oreg(q2, j - 1)
            out.append("v_cvt_pk_bf16_f32 %s, %s, %s" % (v(r), v(r), v(r + 1)))
            out.append("v_cvt_pk_bf16_f32 %s, %s, %s" % (v(r + 1), v(r + 2), v(r + 3)))
        if j >= 2:
            r = oreg(q2, j - 2)
            out.append("ds_write_b64 %s, %s offset:%d" % (v(V_EW), v(r, 2), 16 * 272 * q2 + 32 * (j - 2)))
    return out
def lfinal(N, dense=False):
    if dense: o = ["v_accvgpr_read_b32 %s, %s" % (v(V_T + q), a(A_LS + 4 * q)) for q in range(N)]
    else:
        o = ["v_accvgpr_read_b32 %s, %s" % (v(V_T + q), a(A_LS + 2 * q)) for q in range(N)]
        o += ["v_accvgpr_read_b32 %s, %s" % (v(V_U + q), a(A_LS + 2 * q + 1)) for q in range(N & ~1)]
        o += ["v_add_f32 %s, %s, %s" % (v(V_T + q), v(V_T + q), v(V_U + q)) for q in range(N & ~1)]
    for q in range(N):
        o += ["v_cmp_nge_f32 vcc, 0x44800000, %s" % v(V_T + q), "v_rcp_f32 %s, %s" % (v(V_I + q), v(V_T + q)), "s_nop 0",
              "s_mov_b64 %s, vcc" % s(S_BAD, 2) if q == 0 else "s_or_b64 %s, %s, vcc" % (s(S_BAD, 2), s(S_BAD, 2))]
    if N == 1: o.append("s_cmp_lg_u64 %s, 0" % s(S_BAD, 2))
    o += [smov(S_T2, S_QOFF)]
    return o
def readback(k, reg): return "ds_read_b128 %s, %s offset:%d" % (v(reg, 4), v(V_ER), 4 * 272 * k)
def store(reg, w):
    return ["s_waitcnt lgkmcnt(%s)" % w,
            "buffer_store_dwordx4 %s, %s, %s, %s offen%s" % (v(reg, 4), v(V_SO), s(SRD_O, 4), s(S_T2), STMOD),
            sadd(S_T2, S_T2, 16384)]
def psg(g, dst):
    d = v(dst, 16)
    mm = ["%s %s, %s, %s, %s" % (M32, d, a(A_PS + m, 4), a(A_QR + 8 * g + 4 * fr, 4), "0" if k == 0 else d) for k, (m, fr) in enumerate(((0, 0), (4, 1), (8, 0), (12, 1)))]
    cv = ["v_cvt_pk_bf16_f32 %s, %s, %s" % (v(dst + i), v(dst + 2 * i), v(dst + 2 * i + 1)) for i in range(8)]
    cv += ["v_accvgpr_write_b32 %s, %s" % (a(A_Q + 8 * g + i), v(dst + i)) for i in range(8)]
    return mm, cv
def ephase(A, u, N, NX):
    cur, nxt = S_BUF[1 - (u & 1)], S_BUF[u & 1]
    RB = [CI, CI + 16, CI, CI + 16]
    rd = []
    for db in range(8): rd += [v_read(db, 0, u * SZ), v_read(db, 1, u * SZ)]
    sm = flat_sm([op for p, op in softmax_ops(cur, N) if p >= GAPS(N)])
    lq = min([opq(op, cur) for op in sm if op.startswith("v_")] + [N])
    sums = sum((sums_after(cur, N, q, A_ONM) for q in range(lq)), [])
    while rd or sm:
        if sums: A(sums.pop(0))
        if rd: A(rd.pop(0))
        if sm: A(sm.pop(0))
    A("s_nop 1")
    for q in range(lq, N): A.ext(sums_after(cur, N, q, A_ONM))
    qn = q_reads(NX)
    sg = stream_groups((u + 3) % 4) if NX else [[]] * 10
    if opt("tlx"): tl(A)
    A("s_waitcnt lgkmcnt(8)")
    for db in range(4):
        A(pv_mfma(cur, 0, db)); A.ext(sg[db])
    A("s_waitcnt lgkmcnt(0)")
    for db in range(4, 8):
        A(pv_mfma(cur, 0, db)); A.ext(sg[db]); A.ext(qn[NX * (db - 4):NX * (db - 3)])
    A.ext(sg[8] + sg[9])
    if not NX: A("s_nop 1")
    A.ext(lfinal(N))
    A("s_cbranch_scc1 L_es%d_%d" % (N, u & 1))
    if NX: A("s_waitcnt vmcnt(8) lgkmcnt(0)")
    X = []
    ystart = 0
    for q2 in range(N):
        if opt("tlx"): X.append("#TL")
        nb = norm_q2(q2)
        pv = [pv_mfma(cur, q2 + 1, db) for db in range(8)] if q2 + 1 < N else []
        nw = 0; kst = 0
        for i, l in enumerate(nb):
            if i % int(optv('pvs', '4')) == 0 and pv: X.append(pv.pop(0))
            X.append(l)
            if l.startswith("ds_write"):
                nw += 1
                if q2 > 0 and kst < 4 and str(nw) in optv('stp', '1357'):
                    X += store(oreg(q2 - 1, 0) + 4 * kst, None); kst += 1
        for k in range(4): X.append(readback(4 * q2 + k, oreg(q2, 0) + 4 * k))
        if q2 == 0 and N == 4: ystart = len(X)
        if 1 <= q2 <= NX:
            X.append(ozero(2 * q2 - 2))
            if not (N == 4 and q2 == 1): X.append(ozero(2 * q2 - 1))
    Y = []
    zlast = []
    if NX:
        DS = [CI + 16, O + 32 * N if N < 4 else O + 16]
        P_ = [psg(g, DS[g & 1]) for g in range(2 * NX)]
        one = lambda l: [[x] for x in l]
        quad = lambda l: [l[i:i + 3] for i in range(0, len(l), 3)]
        def zipm(mm, va):
            o = []
            per = -(-len(va) // len(mm))
            for m_ in mm:
                o.append(m_ if isinstance(m_, list) else [m_]); o += quad(va[:per]); va = va[per:]
            return o
        setup = [smov(S_TASK, S_TASK + 1), "s_mov_b32 %s, 0" % s(S_TASK + 1), sadd(S_TI, S_TI, 1)] + \
                [x for x in task_setup(False) if not x.startswith("s_mov_b32 %s," % s(SRD_O + 2))]
        mv = ["v_accvgpr_mov_b32 %s, %s" % (a(A_ONM + i), a(A_ONM + 8 + i)) for i in range(8)]
        Y += zipm(P_[0][0], setup) + zipm(P_[1][0], mv) + [[lzero()]] + quad(P_[0][1])
        for q in range(1, NX + 1):
            pvq = pvalu_q(nxt, NX, q - 2) if q >= 2 else []
            if q < NX: Y += zipm(P_[2 * q][0], pvq[:12] + P_[2 * q - 1][1])
            else: Y += quad(pvq[:12] + P_[2 * q - 1][1])
            mm = [[qk0(nxt, 8 * (q - 1) + i)] + ([k_read(i, u * SZ)] if q == NX else []) for i in range(8)]
            mm[0] = ["s_nop 1"] + mm[0]
            if q < NX: mm += P_[2 * q + 1][0]
            Y += zipm(mm, pvq[12:]) if pvq[12:] else [m_ if isinstance(m_, list) else [m_] for m_ in mm]
            if q < NX: Y += quad(P_[2 * q][1])
        Y += [["s_nop 6"]] + quad(pvalu_q(nxt, NX, NX - 1))
        zlast = [ozero(g) for g in range(2 * (N - 1), 2 * NX)] + ([ozero(1)] if N == 4 else [])
    X += ["#ST%d" % k for k in range(4)]
    M = []
    acc = 0.
    rate = len(Y) / float(len(X) - ystart)
    for i, l in enumerate(X):
        if l.startswith("#ST"): M += store(oreg(N - 1, 0) + 4 * int(l[3:]), None)
        else: M.append(l)
        if i >= ystart:
            acc += rate
            while acc >= 1 and Y and not M[-1].startswith("s_waitcnt"):
                M += Y.pop(0); acc -= 1
    for y in Y: M += y
    for i, l in enumerate(M):
        if l == "s_waitcnt lgkmcnt(None)":
            reg = M[i + 1].split()[1]
            j = max(k for k in range(i) if M[k].startswith("ds_read_b128 " + reg))
            M[i] = "s_waitcnt lgkmcnt(%d)" % min(15, sum(1 for k in range(j + 1, i) if M[k].startswith("ds_")))
    eab = [k for k in optv("eab", "").split(",") if k]
    for l in M:
        if l == "#TL": tl(A)
        elif any(l.startswith(k) for k in eab): pass
        else: A(l)
    A.ext(zlast)
    if NX:
        A(smov(SRD_O + 2, S_NR))
        tl(A); tl_pre(A)
        A("s_waitcnt lgkmcnt(0)")
        A("s_branch L_itb%d_%d" % (NX, (u + 1) % 4))
    else:
        A("s_branch L_fin" if STAMPS else "s_endpgm")
for (u, N, aux) in sorted({(x[0], x[1], x[2] > 0) for x in needE3}, key=lambda x: (-x[1], x[0])):
    A.label("L_e%d%s_%d" % (N, "x" if aux else "", u))
    stamp(A, 2, True)
    A("s_mov_b32 %s, %d" % (s(S_PH), u))
    tl_post(A)
    A("s_barrier")
    NXs = sorted(x[2] for x in needE3 if x[:2] == (u, N) and (x[2] > 0) == aux)
    for NX in NXs[1:]:
        A("s_cmp_eq_u32 %s, %d" % (s(S_NNQ), NX)); A("s_cbranch_scc1 L_e%d_%d_%d" % (N, u, NX))
    for NX in NXs:
        A.label("L_e%d_%d_%d" % (N, u, NX))
        ephase(A, u, N, NX)
A.label("L_cold")
for u in range(4):
    A.label("L_adv%d" % u)
    stamp(A, 3, True)
    if any(p == u for (p, N) in needP):
        A("s_cmp_eq_u32 %s, 0" % s(S_TASK + 1))
        A("s_cbranch_scc1 L_fin")
        A(smov(S_TASK, S_TASK + 1)); A(smov(S_TASK + 1, S_TASK + 2)); A("s_mov_b32 %s, 0" % s(S_TASK + 2))
        A(sadd(S_TI, S_TI, 1))
        A.ext(task_setup())
        tl(A)
        dispatchP(A, u)
    else:
        A("s_branch L_fin")
    for N in sorted(N for (p, N) in needP if p == u):
        A.label("L_p%d_%d" % (N, u))
        pphase(A, u, N)
        A("s_branch L_itb%d_%d" % (N, (u + 1) % 4))
A.label("L_fin")
if STAMPS:
    A("s_waitcnt vmcnt(0)")
    stamp(A, 4)
    A("s_memrealtime %s" % s(S_ST + 14, 2))
    A("s_getreg_b32 %s, hwreg(HW_REG_XCC_ID)" % s(S_ST + 10))
    A("s_getreg_b32 %s, hwreg(HW_REG_HW_ID)" % s(S_ST + 11))
    A("s_waitcnt lgkmcnt(0)")
    A("s_cmp_eq_u32 %s, 0" % s(S_W))
    A("s_cbranch_scc0 L_end")
    for i in range(16): A("v_mov_b32 %s, %s" % (v(16 + i), s(S_ST + i)))
    for i in range(16): A("v_mov_b32 v%d, 0" % (32 + i))
    if TL:
        A("s_lshl_b32 %s, s2, 8" % s(S_T0))
        A("s_add_u32 %s, %s, 0x100000" % (s(S_T0), s(S_T0)))
        A("v_mbcnt_lo_u32_b32 v48, -1, 0"); A("v_mbcnt_hi_u32_b32 v48, -1, v48"); A("v_lshlrev_b32 v48, 2, v48")
        A("buffer_store_dword %s, v48, %s, %s offen" % (v(V_TL), s(SRD_W, 4), s(S_T0)))
    A("s_lshl_b32 %s, s2, 7" % s(S_T0))
    A("v_mov_b32 v48, 0")
    A("s_mov_b64 exec, 1")
    for i in range(8):
        A("buffer_store_dwordx4 %s, v48, %s, %s offen offset:%d" % (v(16 + 4 * i, 4), s(SRD_W, 4), s(S_T0), 16 * i))
A("s_endpgm")

for (par, N) in sorted({(u & 1, N) for (u, N) in needE}):
    A.label("L_es%d_%d" % (N, par))
    for q2 in range(1, N):
        for db in range(8): A(pv_mfma(S_BUF[1 - par], q2, db))
    A("s_branch L_slow")
A.label("L_slow")
A("s_waitcnt vmcnt(8) lgkmcnt(0)")
A("s_nop 7")
for q2 in range(4): A.ext(norm_q2(q2))
A("s_cmp_eq_u32 %s, 0" % s(S_FB))
A("s_cbranch_scc0 L_sstore")
A("s_mov_b64 %s, 0" % s(S_BAD, 2))
for q2 in range(4):
    if q2 >= 1:
        A("s_cmp_le_u32 %s, %d" % (s(S_NQ), q2)); A("s_cbranch_scc1 L_sdec")
    for k in range(4): A(readback(4 * q2 + k, 16 + 4 * k))
    A("v_cmp_ngt_f32 vcc, 0x71800000, %s" % v(V_T + q2))
    A("v_mov_b32 %s, 0" % v(V_U))
    A("s_nop 0")
    A("s_or_b64 %s, %s, vcc" % (s(S_BAD, 2), s(S_BAD, 2)))
    A("s_waitcnt lgkmcnt(0)")
    for k in range(8): A("v_pk_maximum3_f16 %s, %s, %s, %s" % (v(V_U), v(V_U), v(16 + 2 * k), v(17 + 2 * k)))
    A("v_and_b32 %s, 0x7c00, %s" % (v(V_U + 1), v(V_U)))
    A("v_and_b32 %s, 0x7c000000, %s" % (v(V_U + 2), v(V_U)))
    for c_ in ("v_cmp_eq_u32 vcc, 0x7c00, %s" % v(V_U + 1), "v_cmp_eq_u32 vcc, 0x7c000000, %s" % v(V_U + 2)):
        A(c_); A("s_nop 1"); A("s_or_b64 %s, %s, vcc" % (s(S_BAD, 2), s(S_BAD, 2)))
A.label("L_sdec")
A("s_cmp_lg_u64 %s, 0" % s(S_BAD, 2))
A("s_cbranch_scc1 L_fb")
A.label("L_sstore")
A(smov(S_T2, S_QOFF))
for q2 in range(4):
    if q2 >= 1:
        A("s_cmp_le_u32 %s, %d" % (s(S_NQ), q2)); A("s_cbranch_scc1 L_sret")
    for k in range(4): A(readback(4 * q2 + k, 16 + 16 * q2 + 4 * k))
    for k in range(4): A.ext(store(16 + 16 * q2 + 4 * k, 3 - k))
A.label("L_sret")
for g in range(8): A.ext(ps_mfmas(g))
A("s_nop 15")
for g in range(8):
    A.ext(ps_cvts(g)); A(ozero(g))
for u in range(3):
    A("s_cmp_eq_u32 %s, %d" % (s(S_PH), u)); A("s_cbranch_scc1 L_adv%d" % u)
A("s_branch L_adv3")
A.label("L_fb")
A("s_mov_b32 %s, 1" % s(S_FB))
FV, FKO, FVO = 48, 49, 50
S_FOFF, S_FCNT = S_L, S_CNT
A("s_sub_u32 %s, %s, %d" % (s(S_T0), s(S_PRIV), HALF))
A("v_add_u32 %s, %s, %s" % (v(FV), s(S_T0), v(V_VA)))
A("s_lshl_b32 %s, %s, 14" % (s(S_T0), s(S_W)))
A("v_subrev_u32 %s, %s, %s" % (v(FKO), s(S_T0), v(V_KVO)))
A("s_lshl_b32 %s, %s, 12" % (s(S_T0), s(S_W)))
A("v_subrev_u32 %s, %s, %s" % (v(FVO), s(S_T0), v(V_VVO)))
A(smov(SRD_F + 2, S_NR))
def fb_load(A, vo, ptr, step):
    A(smov2(SRD_F, ptr)); A(smov(S_T4, S_FOFF))
    for n in range(8):
        A(m0(n * PS, S_PRIV))
        A(sadd(S_T4, S_T4, step) if n else "s_nop 0")
        A(dma(vo, SRD_F, S_T4))
    A("s_waitcnt vmcnt(0)")
def fb_qk(A, tag):
    A("s_cmp_eq_u32 %s, 1" % s(S_FCNT)); A("s_cbranch_scc0 L_fbnm%s" % tag)
    A.ext(mask_ops())
    A.label("L_fbnm%s" % tag)
    fb_load(A, FKO, P_K, 16384)
    for f in range(8): A(k_read(f, 0, V_QA0, a(A_VF + 4 * f, 4)))
    A("s_waitcnt lgkmcnt(0)")
    for i in range(32): A(qk_mfma(S_BUF[0], i, False, A_VF))
    A("s_nop 15")
for i in range(32): A("v_mov_b32 %s, 0" % v(CI + i))
for q in range(4): A("v_mov_b32 %s, 0xff800000" % v(V_T + q))
for g in range(8): A(ozero(g))
A(lzero())
A(smov(S_FOFF, S_KBASE)); A(smov(S_FCNT, S_N))
A.label("L_fb1")
fb_qk(A, "1")
A.ext(rowmax(S_BUF[0], 4, False))
A(sadd(S_FOFF, S_FOFF, BLK))
A("s_sub_u32 %s, %s, 1" % (s(S_FCNT), s(S_FCNT))); A("s_cmp_eq_u32 %s, 0" % s(S_FCNT)); A("s_cbranch_scc0 L_fb1")
A.ext(crossmax(4))
for i in range(32): A("v_sub_f32 %s, 0, %s" % (v(CI + i), v(V_T + (i >> 3))))
A(smov(S_FOFF, S_KBASE)); A(smov(S_FCNT, S_N))
A.label("L_fb2")
fb_qk(A, "2")
A.ext(flat_sm([op for p, op in softmax_ops(S_BUF[0], 4)]))
fb_load(A, FVO, P_V, 4096)
for db in range(8):
    A(v_read(db, 0, 0, FV)); A(v_read(db, 1, 0, FV))
A("s_waitcnt lgkmcnt(0)")
for q2 in range(4):
    for db in range(8): A(pv_mfma(S_BUF[0], q2, db))
    A(sum_mfma(S_BUF[0], q2))
A("s_nop 15")
A(sadd(S_FOFF, S_FOFF, BLK))
A("s_sub_u32 %s, %s, 1" % (s(S_FCNT), s(S_FCNT))); A("s_cmp_eq_u32 %s, 0" % s(S_FCNT)); A("s_cbranch_scc0 L_fb2")
A.ext(lfinal(4, True))
A("s_branch L_slow")
A.label("L_end")
A("s_endpgm")

errs = check_hazards(A.lines)
for e in errs: print(e, file=sys.stderr)
if errs and not opt("force"): sys.exit(1)

hdr = open("standalone__varlen_attn_packed__ragged.s.ref").read().split("\n")
hdr = [l for l in hdr[:10] if l.startswith(";") and "@launch" not in l]
out = "\n".join(hdr) + "\n; @launch grid=(%d,1,1) block=(256,1,1) lds=%d\n" % (GRID, LDS)
out += '.amdgcn_target "amdgcn-amd-amdhsa--gfx950"\n.text\n.globl %s\n.p2align 8\n.type %s,@function\n' % (NAME, NAME)
out += A.text()
out += ".p2align 6\n.type L_table,@object\nL_table:\n"
for j, ent in enumerate(table):
    w = [t[0] | (t[1] << 13) | (t[2] << 23) | (t[3] << 27) | (t[4] << 30) for t in ent] + [0] * (4 - len(ent))
    out += ".long " + ", ".join("0x%08x" % x for x in w) + "\n"
out += """.section .rodata,"a"
.p2align 6
.amdhsa_kernel %s
  .amdhsa_next_free_vgpr 512
  .amdhsa_next_free_sgpr 102
  .amdhsa_accum_offset 256
  .amdhsa_group_segment_fixed_size 0
  .amdhsa_kernarg_size 56
  .amdhsa_user_sgpr_count 2
  .amdhsa_user_sgpr_kernarg_segment_ptr 1
  .amdhsa_system_sgpr_workgroup_id_x 1
.end_amdhsa_kernel
""" % NAME
sys.stdout.write(out)
```

```python
import sys, struct, math
from asmlib import Asm, check_hazards
import schedA

def opt(x): return ("--" + x) in sys.argv
def optv(x, d):
    for a_ in reversed(sys.argv):
        if a_.startswith("--" + x + "="): return a_.split("=")[1]
    return d
DEF = {("sm", 1): "11", ("dw", 1): "0,9", ("vend", 1): "-1", ("kend", 1): "4",
       ("kendx", 3): "8", ("radx", 3): "1", ("dwx", 4): "20,48", ("vendx", 4): "-1", ("kbegx", 4): "7", ("radx", 4): "2", ("saluxx", 4): "0", ("abx", 4): "20", ("aex", 4): "10",
       ("dwx", 2): "8,20", ("vendx", 2): "-1", ("kendx", 2): "5",
       ("dw", 4): "26,48", ("vend", 4): "-1", ("kbeg", 4): "7", ("rad", 4): "2", ("salux", 4): "0", ("kend", 3): "8", ("kend", 2): "5", ("sm", 3): "28", ("dw", 3): "6,20", ("rad", 3): "1", ("tp", 3): "7,5,5,3,3", ("vend", 3): "2",
       ("sm", 2): "19", ("dw", 2): "11,24", ("vend", 2): "0", ("salux", 2): "1"}
def optn(x, N, d): return optv("%s%d" % (x, N), optv(x, DEF.get((x, N), d)))
STAMPS = opt("stamps"); TL = opt("tl")
NAME = "standalone__varlen_attn_packed__ragged_kernel"
HALF = 8704; PS = 1056; SZ = 2 * HALF
PRIV = 4 * SZ
LDS = 8 * SZ
BLK = 32 * 4096
GRID = 256
plan0 = getattr(schedA, optv("plan", "PD1"))
late = [len(b[0]) > 2 and b[0][2] for b in plan0]
plan = [[x[:2] for x in b] for b in plan0]
table = schedA.build(plan, not opt("nocheck"))
STMOD = " " + optv("stmod", "sc0+sc1").replace("+", " ")
needP, needE, needN, needF, needE3 = set(), set(), set(), set(), set()
for bin_ in plan:
    assert len(bin_) <= 2
    for x, y in zip(bin_, bin_[1:]): assert x[0] >= 3 + 4 * y[1], bin_
for bin_ in plan:
    ph = 0
    for ti, (n, N) in enumerate(bin_):
        if ti: needP.add((ph, N))
        else: needF.add(N)
        needN.add((N, ti + 1 < len(bin_)))
        ph = (ph + n) & 3
        needE.add((ph, N))
        needE3.add((ph, N, bin_[ti + 1][1] if ti + 1 < len(bin_) else 0))

V_KA0, V_KA1, V_VA, V_KVO, V_KVO2, V_VVO, V_VVO2, V_G4, V_QA0, V_QA1, V_EW, V_ER, V_SO, V_T4, V_T5 = range(1, 16)
V_TL = 0
S_BUF = [16, 48]
CI = 80
V_T = 112
V_U = 116
V_I = 120
V_Z = 124
V_IDX, V_SG, V_SA = V_T5, 109, 110
O = 128
A_Q, A_QR, A_KF, A_VF, A_PS, A_LS, A_ONE, A_ONM = 0, 64, 128, 160, 192, 208, 224, 232
SRD_F, SRD_K, SRD_V, SRD_O, SRD_W = 4, 8, 12, 16, 20
(S_KOFF, S_VOFF, S_WBASE, S_CNT, S_HT, S_PRIV, S_QOFF, S_NV, S_N, S_L, S_T0, S_T1, S_T2, S_T3,
 S_KBASE, S_NR, S_PH, S_HOFF, S_FB, S_TI) = range(28, 48)
S_ST = 48
P_Q, P_K, P_V, P_O = 64, 66, 68, 70
S_TASK = 80
S_BAD = 84
S_T4, S_W, S_NQ, S_NKB, S_NNR, S_NQB, S_NNQ, S_C, S_QM, S_QME, S_BLK = 86, 87, 88, 89, 90, 91, 93, 98, 99, 100, 101
S_T4E = 96

def v(i, n=1): return "v%d" % i if n == 1 else "v[%d:%d]" % (i, i + n - 1)
def a(i, n=1): return "a%d" % i if n == 1 else "a[%d:%d]" % (i, i + n - 1)
def s(i, n=1): return "s%d" % i if n == 1 else "s[%d:%d]" % (i, i + n - 1)
M16 = "v_mfma_f32_16x16x32_bf16"; M32 = "v_mfma_f32_32x32x16_bf16"

def qk_mfma(buf, i, raw=False, kf=A_KF):
    q2, kb, st = i >> 3, (i >> 2) & 1, i & 3
    d = v(buf + 8 * q2 + 4 * kb, 4)
    c = d if st else ("0" if raw else v(CI + (8 * q2 + 4 * kb if kf != A_KF else 4 * q2), 4))
    return "%s %s, %s, %s, %s" % (M16, d, a(kf + 4 * (4 * kb + st), 4), a((A_QR if raw else A_Q) + 16 * q2 + 4 * st, 4), c)
def preg(buf, q2): return buf + 8 * q2 - (4 if q2 & 1 else 0)
def GAPS(N): return 16 * N + (N + 1) // 2
def oreg(q2, db): return O + 32 * q2 + 4 * db
def pv_mfma(buf, q2, db):
    d = v(oreg(q2, db), 4)
    return "%s %s, %s, %s, %s" % (M16, d, a(A_VF + 4 * db, 4), v(preg(buf, q2), 4), d)
def sum_mfma(buf, q2, one=None, slot=None):
    d = a(A_LS + 4 * (q2 if slot is None else slot), 4)
    return "%s %s, %s, %s, %s" % (M16, d, a(A_ONE if one is None else one, 4), v(preg(buf, q2), 4), d)
def sums_after(buf, N, q2, one=A_ONE):
    if q2 & 1: return ["v_smfmac_f32_16x16x64_bf16 %s, %s, %s, %s" % (a(A_LS + 4 * (q2 >> 1), 4), a(one + 4, 4), v(buf + 8 * (q2 - 1), 8), v(V_IDX))]
    if q2 == N - 1: return [sum_mfma(buf, q2, one, q2 >> 1)]
    return []
def onm_ops(t=0):
    o = ["s_bfe_u32 %s, %s, 0xa000d" % (s(S_T2), s(S_TASK + t)), sadd(S_T2, S_T2, 31), "s_and_b32 %s, %s, 31" % (s(S_T2), s(S_T2)), sadd(S_T2, S_T2, 1),
         "v_mov_b32 %s, 0x3f80" % v(V_I + 1), "v_mov_b32 %s, 0x3f803f80" % v(V_I + 2)]
    for sp in range(2):
        o.append("v_sub_u32 %s, %s, %s" % (v(V_I), s(S_T2), v(V_SG if sp else V_G4)))
        for r in range(4):
            k = (16 * (r & 1) + 4 * (r >> 1)) if sp else (16 * (r >> 1) + 2 * (r & 1))
            o += ["v_cmp_lt_i32 vcc, %d, %s" % (k, v(V_I)), "v_cmp_lt_i32 %s, %d, %s" % (s(S_T0, 2), k + 1, v(V_I)), "s_nop 0",
                  "v_cndmask_b32 %s, 0, %s, vcc" % (v(V_I + 3), v(V_I + 1)),
                  "v_cndmask_b32 %s, %s, %s, %s" % (v(V_I + 3), v(V_I + 3), v(V_I + 2), s(S_T0, 2))]
            if sp: o.append("v_and_b32 %s, %s, %s" % (v(V_I + 3), v(V_I + 3), v(V_SA)))
            o.append("v_accvgpr_write_b32 %s, %s" % (a(A_ONM + 8 * t + 4 * sp + r), v(V_I + 3)))
    return o
def k_read(f, base, areg=V_KA0, dst=None):
    kb, st = f >> 2, f & 3
    return "ds_read_b128 %s, %s offset:%d" % (dst or a(A_KF + 4 * f, 4), v(areg + (st >> 1)), base + 4 * PS * kb + 64 * (st & 1))
def v_read(db, j, base, areg=V_VA):
    return "ds_read_b64_tr_b16 %s, %s offset:%d" % (a(A_VF + 4 * db + 2 * j, 2), v(areg), base + 512 * j + 32 * db)
def q_reads(n=4):
    return [k_read(f, 0, V_QA0, a(A_QR + 4 * f, 4)) for f in range(4 * n)]

def sm_start(N): return int(optn("sm", N, "15"))
def opq(op, buf): return (int(op.split()[-1].strip("v,")) - buf) >> 3
def softmax_ops(buf, N):
    ops = []
    st = sm_start(N)
    G = GAPS(N)
    for e in range(8 * N):
        p = st + (e * G // (8 * N) if N > 1 else e * 3 // 2)
        ops.append((p, 0, "v_exp_f32 %s, %s" % (v(buf + e), v(buf + e))))
        if e & 1:
            pc = p + int(optn("cd", N, "1"))
            if optn("cvt2", N, "0") == "1" and (e & 3) == 1: pc += 4
            ops.append((pc, 1 + (e & 2), "v_cvt_pk_bf16_f32 %s, %s, %s" % (v(preg(buf, e >> 3) + ((e & 7) >> 1)), v(buf + e - 1), v(buf + e))))
    for p, _, op in ops:
        q = opq(op, buf)
        assert 8 * q + 8 <= p < G + 8 * N + 8 * q - 1, (N, p, op)
    ops.sort()
    cv = [o for o in ops if o[1]]
    assert all(opq(x[2], buf) <= opq(y[2], buf) for x, y in zip(cv, cv[1:]))
    return [(o[0], o[2]) for o in ops]
def flat_sm(ops):
    out = []
    pend = []
    for op in ops:
        if op.startswith("v_cvt"):
            pend.append(op)
        else:
            out.append(op)
            out += pend; pend = []
    if pend: out += ["s_nop 0"] + pend
    return out

def dma(vo, srd, so): return "buffer_load_dwordx4 %s, %s, %s offen lds" % (v(vo), s(srd, 4), s(so))
def m0(off, base=None): return "s_add_u32 m0, %s, %d" % (s(S_WBASE if base is None else base), off)
def sadd(d, x, imm): return "s_add_u32 %s, %s, %d" % (s(d), s(x), imm)
def smov(d, x): return "s_mov_b32 %s, %s" % (s(d), s(x))
def smov2(d, x): return "s_mov_b64 %s, %s" % (s(d, 2), s(x, 2))
def stream_groups(slot):
    b = slot * SZ
    return [[m0(b)], [dma(V_KVO, SRD_K, S_KOFF)], [m0(b + 4 * PS)], [dma(V_KVO2, SRD_K, S_KOFF)],
            [m0(b + HALF)], [dma(V_VVO, SRD_V, S_VOFF)], [m0(b + HALF + 4 * PS)], [dma(V_VVO2, SRD_V, S_VOFF)],
            ["s_add_u32 %s, %s, %s" % (s(S_KOFF), s(S_KOFF), s(S_BLK))], ["s_add_u32 %s, %s, %s" % (s(S_VOFF), s(S_VOFF), s(S_BLK))]]
def stream_flat(slot):
    out = []
    for g in stream_groups(slot):
        out += g
        if " m0," in g[0]: out.append("s_nop 0")
    return out
def kblock_flat(ldsoff):
    return [m0(ldsoff), "s_nop 0", dma(V_KVO, SRD_K, S_KOFF), m0(ldsoff + 4 * PS), "s_nop 0", dma(V_KVO2, SRD_K, S_KOFF), sadd(S_KOFF, S_KOFF, BLK)]
def qgroup(g):
    out = []
    for n in range(4 * g, 4 * g + 4):
        out += [m0(n * PS, S_PRIV), "s_nop 0", dma(V_KVO, SRD_F, S_T4), sadd(S_T4, S_T4, 16384)]
    return out

COST = {"ds_read_b128": 12, "ds_read_b64_tr_b16": 8, "buffer_load_dwordx4": 12, "v_exp_f32": 8}
def cost(op): return COST.get(op.split()[0], 4)

def aux_ops():
    return ["s_mov_b32 m0, %s" % s(S_QM), dma(V_KVO, SRD_F, S_T4),
            sadd(S_QM, S_QM, PS), "s_min_u32 %s, %s, %s" % (s(S_QM), s(S_QM), s(S_QME)),
            sadd(S_T4, S_T4, 16384), "s_min_u32 %s, %s, %s" % (s(S_T4), s(S_T4), s(S_T4E))]
def iteration(A, u, N, aux=False):
    nxt, cur = S_BUF[u & 1], S_BUF[1 - (u & 1)]
    opta = (lambda x, n_, d: optn(x + 'x', n_, optn(x, n_, d))) if aux else optn
    G = GAPS(N)
    ms = [qk_mfma(nxt, i) for i in range(8 * N)]
    for q2 in range(N):
        ms += [pv_mfma(cur, q2, db) for db in range(8)] + sums_after(cur, N, q2)
    if opt("pvord"):
        ms = ms[:8 * N] + [pv_mfma(cur, q2, db) for db in range(8) for q2 in range(N)] + sum((sums_after(cur, N, q) for q in range(N)), [])
    if opt("pvord2"):
        ms = ms[:8 * N] + [pv_mfma(cur, 2 * h + q2, db) for h in range(N // 2) for db in range(8) for q2 in range(2)] + sum((sums_after(cur, N, q) for q in range(N)), [])
    if opt("qkord"):
        ms = [qk_mfma(nxt, 16 * h + 8 * q2 + f) for h in range(N // 2) for f in range(8) for q2 in range(2)] + ms[8 * N:]
    if opt("qkord2"):
        ms = [qk_mfma(nxt, 8 * q2 + 4 * kb + st) for q2 in range(N) for st in range(4) for kb in range(2)] + ms[8 * N:]
    va = [[] for _ in range(G)]; nv = [[] for _ in range(G)]
    for p, op in softmax_ops(cur, N):
        if p >= G: va[p - G].append(op)
    for p, op in softmax_ops(nxt, N):
        if p < G: va[p].append(op)
    RAD = int(opta('rad', N, '1'))
    load = lambda g: sum(map(cost, va[g] + nv[g]))
    def place(items, lo, hi, strict=False):
        last = lo - (1 if strict else 0)
        pos = []
        for i, it in enumerate(items):
            t = lo + (i + 0.5) * (hi - lo + 1) / len(items)
            mn = last + (1 if strict else 0)
            mx = hi - ((len(items) - 1 - i) if strict else 0)
            cand = [g for g in range(int(t) - RAD, int(t) + RAD + 1) if mn <= g <= mx] or [min(max(int(t), mn), mx)]
            if it.startswith("s_") and opta("salux", N, "0") == "1":
                g = min(cand, key=lambda g: (len(nv[g]) > 0, not any("exp" in x for x in va[g]), abs(g + 0.5 - t)))
            else:
                g = min(cand, key=lambda g: (load(g), abs(g + 0.5 - t)))
            nv[g].append(it); last = g; pos.append(g)
        return pos
    H = 8 * N
    vpos = place([v_read(i >> 1, i & 1, u * SZ) for i in range(16)], int(opta('vbeg', N, '0')), H + int(opta('vend', N, '-1' if N == 2 else '-3')))
    kpos = place([k_read(f, u * SZ) for f in range(8)], max(H + int(opta('kbeg', N, '0')), vpos[-1]), G - int(opta('kend', N, '7')))
    sg = stream_groups((u + 3) % 4)
    dlo, dhi = [int(x) for x in opta("dw", N, {1: "0,9", 2: "1,15", 3: "24,43", 4: "33,56"}[N]).split(",")]
    ax = aux_ops() if aux else []
    dpos = place(ax[:2] + [g[0] for g in sg[:8]], dlo, dhi, True)
    if aux: place(ax[2:], max(dpos[1] + 1, int(opta('ab', N, '0'))), G - int(opta('ae', N, '8')), True)
    tailp = [int(x) for x in opta("tp", N, "6,5,4,3,2").split(",")]
    nv[G - tailp[0]] += sg[8]; nv[G - tailp[1]] += sg[9]
    nv[G - tailp[2]].append("s_sub_u32 %s, %s, 1" % (s(S_CNT), s(S_CNT)))
    nv[G - tailp[3]].append("s_cmp_le_u32 %s, %s" % (s(S_CNT), s(S_HT)))
    if TL: nv[G - tailp[4]].append("s_memrealtime s[94:95]" if opt("tlrt") else "s_memtime s[94:95]")
    nv[G - tailp[4]].append("s_waitcnt vmcnt(%d) lgkmcnt(0)" % (10 if aux else 8))
    assert dhi < G - tailp[0] and kpos[-1] < G - tailp[4]
    covered = -1
    for g in range(G):
        if H <= g < H + 8 and g - H > covered:
            db = g - H
            while db + 1 < 8 and vpos[2 * db + 3] <= g - int(opta("wd", N, "4")): db += 1
            covered = db
            assert vpos[2 * db + 1] < g
            younger = sum(1 for p in vpos[2 * db + 2:] if p < g) + sum(1 for p in kpos if p < g)
            A("s_waitcnt lgkmcnt(%d)" % younger)
        A(ms[g]); A.ext(nv[g]); A.ext(va[g])

def mask_ops(N=4):
    o = ["v_sub_u32 %s, %s, %s" % (v(V_U), s(S_NV), v(V_G4)), "v_mov_b32 %s, 0xff800000" % v(V_U + 1)]
    prs = ["vcc", s(S_T0, 2)]
    for r in range(8 + 1):
        if r < 8: o.append("v_cmp_lt_i32 %s, %d, %s" % (prs[r % 2], 16 * (r >> 2) + (r & 3), v(V_U)))
        if r == 0: o.append("s_nop 0")
        if r >= 1:
            for q2 in range(N):
                x = CI + 8 * q2 + r - 1
                o.append("v_cndmask_b32 %s, %s, %s, %s" % (v(x), v(V_U + 1), v(x), prs[(r - 1) % 2]))
    o.append("s_nop 1")
    return o
def rowmax(b, N, first):
    o = []
    if first:
        for q2 in range(N): o.append("v_max3_f32 %s, %s, %s, %s" % (v(V_T + q2), v(b + 8 * q2), v(b + 8 * q2 + 1), v(b + 8 * q2 + 2)))
        for i in (3, 5):
            for q2 in range(N): o.append("v_max3_f32 %s, %s, %s, %s" % (v(V_T + q2), v(V_T + q2), v(b + 8 * q2 + i), v(b + 8 * q2 + i + 1)))
        for q2 in range(N): o.append("v_max_f32 %s, %s, %s" % (v(V_T + q2), v(V_T + q2), v(b + 8 * q2 + 7)))
    else:
        for i in range(0, 8, 2):
            for q2 in range(N): o.append("v_max3_f32 %s, %s, %s, %s" % (v(V_T + q2), v(V_T + q2), v(b + 8 * q2 + i), v(b + 8 * q2 + i + 1)))
    return o
def crossmax(N):
    o = []
    for w in (32, 16):
        o += ["v_mov_b32 %s, %s" % (v(V_U + q), v(V_T + q)) for q in range(N)] + (["s_nop 0"] if N == 2 else [])
        o += ["v_permlane%d_swap_b32 %s, %s" % (w, v(V_T + q), v(V_U + q)) for q in range(N)]
        o += ["v_max_f32 %s, %s, %s" % (v(V_T + q), v(V_T + q), v(V_U + q)) for q in range(N)]
    return o
def ps_mfmas(g):
    d = v(O + 16 * g, 16)
    return ["%s %s, %s, %s, %s" % (M32, d, a(A_PS + m, 4), a(A_QR + 8 * g + 4 * fr, 4), "0" if k == 0 else d) for k, (m, fr) in enumerate(((0, 0), (4, 1), (8, 0), (12, 1)))]
def ps_cvts(g):
    b = O + 16 * g
    o = ["v_cvt_pk_bf16_f32 %s, %s, %s" % (v(b + i), v(b + 2 * i), v(b + 2 * i + 1)) for i in range(8)]
    o += ["v_accvgpr_write_b32 %s, %s" % (a(A_Q + 8 * g + i), v(b + i)) for i in range(8)]
    return o
def ozero(g): return "%s %s, %s, %s, 0" % (M32, v(O + 16 * g, 16), v(V_Z, 4), v(V_Z, 4))
def lzero(): return "%s %s, %s, %s, 0" % (M32, a(A_LS, 16), v(V_Z, 4), v(V_Z, 4))

nst = [0]
def stamp(A, idx, first_only=False):
    if STAMPS:
        if first_only:
            nst[0] += 1
            A("s_cmp_eq_u32 %s, 0" % s(S_TI)); A("s_cbranch_scc0 L_st%d" % nst[0])
        A("s_memtime %s" % s(S_ST + 2 * idx, 2))
        if first_only: A.label("L_st%d" % nst[0])
def tl_pre(A):
    if TL: A("s_memrealtime s[94:95]" if opt("tlrt") else "s_memtime s[94:95]")
def tl_post(A):
    if TL:
        A("s_mov_b32 m0, s92"); A("s_add_u32 s92, s92, 1"); A("v_writelane_b32 %s, s94, m0" % v(V_TL))
def tl(A):
    if TL:
        tl_pre(A); A("s_waitcnt lgkmcnt(0)"); tl_post(A)

def decode(word):
    return ["s_and_b32 %s, %s, 0x1fff" % (s(S_T0), s(word)),
            "s_bfe_u32 %s, %s, 0xa000d" % (s(S_T1), s(word)),
            "s_add_u32 %s, %s, %s" % (s(S_T1), s(S_T0), s(S_T1)),
            "s_lshl_b32 %s, %s, 12" % (s(S_NNR), s(S_T1)),
            "s_bfe_u32 %s, %s, 0x1001e" % (s(S_T1), s(word)),
            "s_lshl_b32 %s, %s, 8" % (s(S_T1), s(S_T1)),
            "s_add_u32 %s, %s, %s" % (s(S_T1), s(S_T1), s(S_HOFF)),
            "s_lshl_b32 %s, %s, 12" % (s(S_NKB), s(S_T0)),
            "s_add_u32 %s, %s, %s" % (s(S_NKB), s(S_NKB), s(S_T1)),
            "s_bfe_u32 %s, %s, 0x3001b" % (s(S_NNQ), s(word)),
            "s_bfe_u32 %s, %s, 0x40017" % (s(S_T1), s(word)),
            "s_lshl_b32 %s, %s, 2" % (s(S_T1), s(S_T1)),
            "s_mul_i32 %s, %s, %s" % (s(S_T0), s(S_W), s(S_NNQ)),
            "s_add_u32 %s, %s, %s" % (s(S_T1), s(S_T1), s(S_T0)),
            "s_lshl_b32 %s, %s, 16" % (s(S_NQB), s(S_T1)),
            "s_add_u32 %s, %s, %s" % (s(S_NQB), s(S_NQB), s(S_NKB)),
            "s_lshl_b32 %s, %s, 14" % (s(S_T0), s(S_W)),
            "s_sub_u32 %s, %s, %s" % (s(S_T4), s(S_NQB), s(S_T0)),
            smov2(SRD_F, P_Q), smov(SRD_F + 2, S_NNR)]
def task_setup(more=True):
    base = [smov(S_KBASE, S_NKB), smov(S_NR, S_NNR), smov(SRD_O + 2, S_NNR), smov(S_QOFF, S_NQB), smov(S_NQ, S_NNQ),
            "s_bfe_u32 %s, %s, 0xa000d" % (s(S_L), s(S_TASK)),
            sadd(S_N, S_L, 31), "s_lshr_b32 %s, %s, 5" % (s(S_N), s(S_N)),
            "s_sub_u32 %s, %s, 1" % (s(S_CNT), s(S_N)),
            "s_lshl_b32 %s, %s, 5" % (s(S_T1), s(S_CNT)),
            "s_sub_u32 %s, %s, %s" % (s(S_NV), s(S_L), s(S_T1)),
            "s_mov_b32 %s, 0" % s(S_FB),
            smov(S_QM, S_PRIV)]
    if not more: return base + ["s_mov_b32 %s, %d" % (s(S_HT), 4 if opt("rwl") else 0), "s_mov_b32 %s, 0" % s(S_NNQ), "s_mov_b32 %s, 0" % s(S_NNR)]
    return base + decode(S_TASK + 1) + ["s_cmp_eq_u32 %s, 0" % s(S_NNR), "s_cselect_b32 %s, %d, 4" % (s(S_HT), 4 if opt("rwl") else 0),
            "s_lshl_b32 %s, %s, 2" % (s(S_T0), s(S_NNQ)), "s_max_u32 %s, %s, 1" % (s(S_T0), s(S_T0)), "s_sub_u32 %s, %s, 1" % (s(S_T0), s(S_T0)),
            "s_mul_i32 %s, %s, %d" % (s(S_QME), s(S_T0), PS), "s_add_u32 %s, %s, %s" % (s(S_QME), s(S_QME), s(S_QM)),
            "s_lshl_b32 %s, %s, 14" % (s(S_T4E), s(S_T0)), "s_add_u32 %s, %s, %s" % (s(S_T4E), s(S_T4E), s(S_T4))]

A = Asm()
A.label(NAME)
A("s_cmp_ge_u32 s2, %d" % GRID)
A("s_cbranch_scc1 L_end")
if STAMPS: A("s_memrealtime %s" % s(S_ST + 12, 2))
stamp(A, 0)
A("s_load_dwordx4 s[64:67], s[0:1], 0")
A("s_load_dwordx2 s[68:69], s[0:1], 16")
A("s_load_dwordx2 s[70:71], s[0:1], 32")
if STAMPS: A("s_load_dwordx2 s[72:73], s[0:1], 48")
A("s_getpc_b64 s[74:75]")
A.label("L_pc")
A("s_lshr_b32 s76, s2, 3")
A("s_lshl_b32 s76, s76, 4")
A("s_add_u32 s78, s74, L_table-L_pc")
A("s_addc_u32 s79, s75, 0")
A("s_load_dwordx4 %s, s[78:79], s76" % s(S_TASK, 4))
A("v_lshrrev_b32 %s, 6, v0" % v(V_U))
A("v_and_b32 v22, 63, v0")
A("s_lshl_b32 s77, s76, 8")
A("v_readfirstlane_b32 %s, %s" % (s(S_W), v(V_U)))
A("v_and_b32 %s, 31, v0" % v(V_T4))
A("v_lshl_add_u32 %s, %s, 7, s77" % (v(V_T4), v(V_T4)))
A("v_min_u32 %s, L_cold-L_pc, %s" % (v(V_T4), v(V_T4)))
A("s_cmp_eq_u32 %s, 0" % s(S_W))
A("s_cbranch_scc0 L_nowarm")
if not opt("nowarm"): A("global_load_dword %s, %s, s[74:75]" % (v(V_T4), v(V_T4)))
A.label("L_nowarm")
G, P16, R4, X0, X1, X2 = 16, 17, 18, 19, 20, 21
A("v_lshrrev_b32 %s, 4, v22" % v(G))
A("v_and_b32 %s, 15, v22" % v(P16))
A("v_and_b32 %s, 3, v22" % v(R4))
def fswz(dst, src, tmp):
    A("v_and_b32 %s, 2, %s" % (v(tmp), v(src)))
    A("v_and_b32 %s, 1, %s" % (v(dst), v(src)))
    A("v_lshl_add_u32 %s, %s, 2, %s" % (v(dst), v(tmp), v(dst)))
fswz(X0, G, X1)
A("v_xor_b32 %s, %s, %s" % (v(X0), v(X0), v(P16)))
A("s_lshl_b32 %s, %s, 2" % (s(S_T0), s(S_W)))
A("v_add_u32 %s, %s, %s" % (v(X1), s(S_T0), v(G)))
A("v_lshlrev_b32 %s, 12, %s" % (v(X1), v(X1)))
A("v_lshl_add_u32 %s, %s, 4, %s" % (v(V_KVO), v(X0), v(X1)))
A("v_add_u32 %s, %d, %s" % (v(V_KVO2), 16 * 4096, v(V_KVO)))
A("v_lshl_add_u32 %s, %s, 3, %s" % (v(X1), v(G), s(S_W)))
A("v_lshlrev_b32 %s, 12, %s" % (v(X1), v(X1)))
A("v_lshl_add_u32 %s, %s, 4, %s" % (v(V_VVO), v(P16), v(X1)))
A("v_add_u32 %s, %d, %s" % (v(V_VVO2), 4 * 4096, v(V_VVO)))
A("s_mul_i32 %s, %s, %d" % (s(S_WBASE), s(S_W), PS))
A("s_mov_b32 %s, %d" % (s(S_BLK), BLK))
A("s_mul_i32 %s, %s, %d" % (s(S_PRIV), s(S_W), SZ))
A(sadd(S_PRIV, S_PRIV, PRIV))
A("s_and_b32 %s, s2, 7" % s(S_HOFF))
A("s_lshl_b32 %s, %s, 9" % (s(S_HOFF), s(S_HOFF)))
A("s_mov_b32 %s, 0" % s(S_TI))
A("s_mov_b32 %s, 0x%08x" % (s(S_C), struct.unpack("<I", struct.pack("<f", (128 ** -0.5) * math.log2(math.e)))[0]))
for srd in (SRD_K, SRD_F, SRD_V, SRD_O):
    A("s_mov_b32 %s, 0x20000" % s(srd + 3))
if TL:
    A("s_mov_b32 s92, 0"); A("v_mov_b32 %s, 0" % v(V_TL))
A("s_waitcnt lgkmcnt(0)")
if opt("tls"): tl(A)
A.ext(decode(S_TASK))
for srd, src in ((SRD_K, P_K), (SRD_V, P_V), (SRD_O, P_O)):
    A(smov2(srd, src))
for srd in (SRD_K, SRD_V): A(smov(srd + 2, S_NNR))
if STAMPS:
    A("s_mov_b32 %s, s72" % s(SRD_W)); A("s_mov_b32 %s, s73" % s(SRD_W + 1))
    A("s_mov_b32 %s, 0x1000000" % s(SRD_W + 2)); A("s_mov_b32 %s, 0x20000" % s(SRD_W + 3))
A(smov(S_KOFF, S_NKB)); A(smov(S_VOFF, S_NKB))
if opt("k1late"):
    A.ext(kblock_flat(HALF)); A.ext(qgroup(0)[:8]); A.ext(kblock_flat(0)); A.ext(qgroup(0)[8:]); A.ext(qgroup(1))
else:
    A.ext(kblock_flat(HALF) + kblock_flat(0))
    A.ext(qgroup(0)); A.ext(qgroup(1))
if opt("tls"): tl(A)
fswz(X0, R4, X1)
A("v_xor_b32 %s, %s, %s" % (v(X0), v(X0), v(G)))
A("v_lshrrev_b32 %s, 2, %s" % (v(X2), v(P16)))
A("v_mul_u32_u24 %s, %d, %s" % (v(X1), PS, v(X2)))
A("v_lshl_add_u32 %s, %s, 8, %s" % (v(X1), v(R4), v(X1)))
A("v_lshl_add_u32 %s, %s, 4, %s" % (v(V_KA0), v(X0), v(X1)))
A("v_xor_b32 %s, 8, %s" % (v(X0), v(X0)))
A("v_lshl_add_u32 %s, %s, 4, %s" % (v(V_KA1), v(X0), v(X1)))
A("v_add_u32 %s, %s, %s" % (v(V_QA0), s(S_PRIV), v(V_KA0)))
A("v_add_u32 %s, %s, %s" % (v(V_QA1), s(S_PRIV), v(V_KA1)))
A("v_and_b32 %s, 1, %s" % (v(X0), v(G)))
A("v_lshl_add_u32 %s, %s, 2, %s" % (v(X0), v(X0), v(X2)))
A("v_mul_u32_u24 %s, %d, %s" % (v(X0), PS, v(X0)))
A("v_lshrrev_b32 %s, 1, %s" % (v(X1), v(G)))
A("v_lshl_add_u32 %s, %s, 8, %s" % (v(X0), v(X1), v(X0)))
A("v_lshl_add_u32 %s, %s, 3, %s" % (v(X0), v(R4), v(X0)))
A("v_add_u32 %s, %d, %s" % (v(V_VA), HALF, v(X0)))
A("v_mul_u32_u24 %s, 272, %s" % (v(X0), v(P16)))
A("v_lshl_add_u32 %s, %s, 3, %s" % (v(X0), v(G), v(X0)))
A("v_add_u32 %s, %s, %s" % (v(V_EW), s(S_PRIV), v(X0)))
A("v_mul_u32_u24 %s, 272, %s" % (v(X0), v(G)))
A("v_lshl_add_u32 %s, %s, 4, %s" % (v(X0), v(P16), v(X0)))
A("v_add_u32 %s, %s, %s" % (v(V_ER), s(S_PRIV), v(X0)))
A("v_lshlrev_b32 %s, 12, %s" % (v(X0), v(G)))
A("v_lshl_add_u32 %s, %s, 4, %s" % (v(V_SO), v(P16), v(X0)))
A("v_lshlrev_b32 %s, 2, %s" % (v(V_G4), v(G)))
A("v_bfe_u32 %s, v22, 1, 1" % v(X0))
A("v_lshrrev_b32 %s, 5, v22" % v(X1))
A("v_cmp_eq_u32 vcc, %s, %s" % (v(X0), v(X1)))
A("v_and_b32 %s, 1, v22" % v(X2))
A("v_bfe_u32 %s, v22, 4, 1" % v(X1))
A("v_cndmask_b32 %s, 0, -1, vcc" % v(V_SA))
A("v_lshlrev_b32 %s, 3, %s" % (v(X1), v(X1)))
A("v_lshl_add_u32 %s, %s, 1, %s" % (v(V_SG), v(X2), v(X1)))
A("v_mul_u32_u24 %s, 0xaaaa, %s" % (v(X2), v(X2)))
A("v_add_u32 %s, 0x4444, %s" % (v(V_IDX), v(X2)))
A("v_mov_b32 %s, 0x3f803f80" % v(X0))
A("v_and_b32 %s, %s, %s" % (v(X1), v(X0), v(V_SA)))
for i in range(4):
    A("v_accvgpr_write_b32 %s, %s" % (a(A_ONE + i), v(X0)))
    A("v_accvgpr_write_b32 %s, %s" % (a(A_ONE + 4 + i), v(X1)))
    A("v_mov_b32 %s, 0" % v(V_Z + i))
LN = 24
A("v_bfe_u32 %s, v22, 2, 1" % v(X0))
A("v_lshrrev_b32 %s, 5, v22" % v(X1))
A("v_xor_b32 %s, %s, %s" % (v(X0), v(X0), v(X1)))
A("v_bfe_u32 %s, v22, 3, 2" % v(X1))
A("v_bfe_u32 %s, v22, 1, 1" % v(X2))
A("v_lshl_add_u32 %s, %s, 1, %s" % (v(X1), v(X1), v(X2)))
A("v_lshl_add_u32 %s, %s, 4, %s" % (v(X1), v(X0), v(X1)))
A("v_and_b32 %s, 1, v22" % v(X2))
A("v_lshlrev_b32 %s, 4, %s" % (v(X2), v(X2)))
A("v_mov_b32 %s, 0x3e03" % v(LN + 1))
A("v_mov_b32 %s, 0xb9d8" % v(LN + 2))
A("v_lshlrev_b32 %s, %s, %s" % (v(LN + 1), v(X2), v(LN + 1)))
A("v_lshlrev_b32 %s, %s, %s" % (v(LN + 2), v(X2), v(LN + 2)))
for r in range(8):
    A("v_cmp_eq_u32 vcc, %d, %s" % (r, v(X1)))
    A("s_nop 1")
    A("v_cndmask_b32 %s, 0, %s, vcc" % (v(LN + 3), v(LN + 1)))
    A("v_cndmask_b32 %s, 0, %s, vcc" % (v(LN + 4), v(LN + 2)))
    A("v_accvgpr_write_b32 %s, %s" % (a(A_PS + r), v(LN + 3)))
    A("v_accvgpr_write_b32 %s, %s" % (a(A_PS + 8 + r), v(LN + 4)))
if opt("tls"): tl(A)
for g in (2, 3):
    A("s_cmp_le_u32 %s, %d" % (s(S_NNQ), g)); A("s_cbranch_scc1 L_qdone")
    A.ext(qgroup(g))
A.label("L_qdone")
if opt("tls"): tl(A)
A.ext(task_setup())
MAXT = max(len(x) for x in plan)
for t in range(MAXT): A.ext(onm_ops(t))
A(lzero())
Fs = sorted(needF)
for N in Fs[:-1]:
    A("s_cmp_eq_u32 %s, %d" % (s(S_NQ), N)); A("s_cbranch_scc1 L_f%d" % N)
def qnext_items():
    it = []
    for g in range(4):
        q = qgroup(g)
        for k in range(4):
            pre = []
            if g >= 2 and k == 0:
                pre = ["s_cmp_le_u32 %s, %d" % (s(S_NNQ), g), "s_cselect_b32 %s, 0, %s" % (s(SRD_F + 2), s(SRD_F + 2))]
            it.append(pre + [q[4 * k]]); it.append([q[4 * k + 2], q[4 * k + 3]])
    return it
def weave(va, items, first=0):
    out = []
    step = max(1, (len(va) - first) // (len(items) + 1))
    items = list(items)
    for i, l in enumerate(va):
        out.append(l)
        if i >= first and (i - first) % step == 0 and items: out += items.pop(0)
    assert not items
    return out
def pvalu(b, N, raw):
    va = rowmax(b, N, True) + crossmax(N)
    if raw: va += ["v_mul_f32 %s, %s, %s" % (v(V_T + q), s(S_C), v(V_T + q)) for q in range(N)]
    va += ["v_sub_f32 %s, 0, %s" % (v(CI + 8 * q), v(V_T + q)) for q in range(N)]
    for i in range(8 * N):
        if raw: va.append("v_fma_f32 %s, %s, %s, -%s" % (v(b + i), v(b + i), s(S_C), v(V_T + (i >> 3))))
        else: va.append("v_sub_f32 %s, %s, %s" % (v(b + i), v(b + i), v(V_T + (i >> 3))))
        if 1 <= (i & 7) < 4: va.append("v_mov_b32 %s, %s" % (v(CI + i), v(CI + (i & ~7))))
    va += flat_sm([op for p, op in softmax_ops(b, N) if p < GAPS(N)])
    return va
def pvalu_q(b, N, q):
    r = b + 8 * q; t = V_T + q; u_ = V_U + q
    va = ["v_max3_f32 %s, %s, %s, %s" % (v(t), v(r), v(r + 1), v(r + 2)), "v_max3_f32 %s, %s, %s, %s" % (v(u_), v(r + 3), v(r + 4), v(r + 5)),
          "v_max3_f32 %s, %s, %s, %s" % (v(t), v(t), v(r + 6), v(r + 7)), "v_max_f32 %s, %s, %s" % (v(t), v(t), v(u_))]
    for w in (32, 16):
        va += ["v_mov_b32 %s, %s" % (v(u_), v(t)), "s_nop 1", "v_permlane%d_swap_b32 %s, %s" % (w, v(t), v(u_)), "v_max_f32 %s, %s, %s" % (v(t), v(t), v(u_))]
    va += ["v_sub_f32 %s, %s, %s" % (v(r + i), v(r + i), v(t)) for i in range(8)]
    va += ["v_sub_f32 %s, 0, %s" % (v(CI + 4 * q + i), v(t)) for i in range(4)]
    va += flat_sm([op for p, op in softmax_ops(b, N) if p < GAPS(N) and opq(op, b) == q])
    return va
def qk0(b, i):
    m_ = qk_mfma(b, i)
    return m_[:m_.rindex(",")] + ", 0" if (i & 3) == 0 else m_
def under(A, mm, va):
    per = -(-len(va) // len(mm)) if va else 0
    for m_ in mm:
        A.ext(m_ if isinstance(m_, list) else [m_]); A.ext(va[:per]); va = va[per:]
def first(A, N):
    qr = q_reads()
    b = S_BUF[0]
    S1 = int(optv("s1at", "1"))
    st_ = {"issued": 0}
    def fetch(q):
        if q == max(0, N - S1):
            A.ext(stream_flat(1)); st_["issued"] = 4
        if opt("tls"): tl(A)
        A("s_waitcnt vmcnt(%d)" % (st_["issued"] + 4 * (N - 1 - q)))
        if opt("tls"): tl(A)
        A.ext(qr[4 * q:4 * q + 4])
        if q == N - 1:
            tl(A)
            stamp(A, 1, True)
    fetch(0)
    A("s_barrier")
    for f in range(8): A(k_read(f, HALF))
    for q in range(N):
        last = q == N - 1
        A("s_waitcnt lgkmcnt(%d)" % (8 if q == 0 else 0))
        sg = stream_groups(2) if last else [[]] * 10
        mm = ps_mfmas(2 * q) + ps_mfmas(2 * q + 1)
        va = pvalu_q(b, N, q - 1) if q else []
        A.ext(mm[:2]); A("s_nop 3")
        under(A, [[m_] + sg[i] for i, m_ in enumerate(mm[2:])], va)
        A.ext(sg[6] + ["s_nop 0"] + sg[7] + sg[8] + sg[9] + (["s_nop 6"] if q == 0 else []))
        A.ext(ps_cvts(2 * q)); A(ozero(2 * q))
        A.ext(ps_cvts(2 * q + 1)); A(ozero(2 * q + 1))
        A("s_waitcnt lgkmcnt(0)" if q == 0 else "s_nop 0")
        for i in range(8):
            A(qk0(b, 8 * q + i))
            if last: A(k_read(i, 0))
        if not last: fetch(q + 1)
    A("s_nop 6")
    A.ext(weave(pvalu_q(b, N, N - 1), [[x] for x in aux_ops()] + stream_groups(3)))
    tl_pre(A)
    A("s_waitcnt vmcnt(9) lgkmcnt(0)")
    if (N, True) in needN:
        A("s_cmp_lg_u32 %s, 0" % s(S_NNR))
        A("s_cbranch_scc1 L_itb%dx_1" % N)
    A("s_branch L_itb%d%s_1" % (N, "" if (N, False) in needN else "x"))
first(A, Fs[-1])
for N in Fs[:-1]:
    A.label("L_f%d" % N)
    first(A, N)
def dispatchP(A, u):
    Ns = sorted(N for (p, N) in needP if p == u)
    for N in Ns[:-1]:
        A("s_cmp_eq_u32 %s, %d" % (s(S_NQ), N)); A("s_cbranch_scc1 L_p%d_%d" % (N, u))
    A("s_branch L_p%d_%d" % (Ns[-1], u))

def pphase(A, u, N):
    b = S_BUF[u & 1]
    mv = ["v_accvgpr_mov_b32 %s, %s" % (a(A_ONM + i), a(A_ONM + 8 + i)) for i in range(8 * (MAXT - 1))]
    A.ext(mv)
    for i in range(8 * N): A(qk0(b, i))
    for f in range(8): A(k_read(f, u * SZ))
    A(lzero())
    for q in range(N): A.ext(pvalu_q(b, N, q))
    tl_pre(A)
    A("s_waitcnt lgkmcnt(0)")

for (N, aux) in sorted(needN, reverse=True):
    X = "%d%s" % (N, "x" if aux else "")
    A(".p2align 6")
    phase = int(optv("al", "1"))
    for _ in range(phase): A("s_nop 0")
    for u in (1, 2, 3, 0):
        A.label("L_itb%s_%d" % (X, u))
        tl_post(A)
        A("s_nop 0" if (opt("nobar") or (opt("bar2") and u & 1)) else "s_barrier")
        i0 = len(A.lines)
        iteration(A, u, N, aux)
        def isz(l):
            op = l.split()[0]
            if op.startswith(("v_mfma", "v_smfmac", "ds_", "buffer_", "v_cvt")): return 8
            if op == "s_add_u32" and l.split(",")[-1].strip().isdigit() and int(l.split(",")[-1]) > 64: return 8
            return 4
        phase = (phase + (8 + (20 if TL else 0) + sum(isz(l) for l in A.lines[i0:])) // 4) % 8
        k = {0: 1, 7: 2}.get(phase, 0)
        ex = [i for i in range(i0, len(A.lines)) if A.lines[i].startswith("v_exp_f32 ")]
        for j in range(k):
            i = ex[(2 * j + 1) * len(ex) // (2 * k)]
            A.lines[i] = A.lines[i].replace("v_exp_f32 ", "v_exp_f32_e64 ")
        phase = (phase + k) % 8
        if u != 0: A("s_cbranch_scc1 L_sp%s_%d" % (X, (u + 1) % 4))
        else: A("s_cbranch_scc0 L_itb%s_1" % X)
    for u in (1, 2, 3, 0):
        A.label("L_sp%s_%d" % (X, u))
        mine = [x for x in needE3 if x[:2] == (u, N) and (x[2] > 0) == aux]
        if mine:
            A("s_cmp_eq_u32 %s, 0" % s(S_CNT))
            A("s_cbranch_scc1 L_e%s_%d" % (X, u))
        if aux:
            A("s_cmp_eq_u32 %s, 2" % s(S_CNT))
            A("s_cbranch_scc1 L_sv%s_%d" % (X, u))
            A(smov(SRD_K + 2, S_NNR)); A(smov(S_KOFF, S_NKB))
        A("s_mov_b32 %s, %d" % (s(S_HT), 2 if aux else 0))
        if mine and not opt("norw"):
            A("s_mov_b32 %s, L_e%s_%d-L_pc" % (s(S_T0), X, u))
            if aux:
                for w_, lab in ((1, "L_e%s_%d-L_pc+8192" % (X, u)), (2, "L_e%s_%d-L_pc+16384" % (X, u))):
                    A("s_cmp_eq_u32 %s, %d" % (s(S_W), w_))
                    A("s_cselect_b32 %s, %s, %s" % (s(S_T0), lab, s(S_T0)))
            if aux:
                nxs = sorted({x[2] for x in mine})
                A("s_mov_b32 %s, L_itb%d_1-L_pc" % (s(S_T1), nxs[0]))
                for nx in nxs[1:]:
                    A("s_cmp_eq_u32 %s, %d" % (s(S_NNQ), nx))
                    A("s_cselect_b32 %s, L_itb%d_1-L_pc, %s" % (s(S_T1), nx, s(S_T1)))
                A("s_cmp_eq_u32 %s, 3" % s(S_W))
                A("s_cselect_b32 %s, %s, %s" % (s(S_T0), s(S_T1), s(S_T0)))
            A("v_mbcnt_lo_u32_b32 %s, -1, 0" % v(V_U))
            A("v_mbcnt_hi_u32_b32 %s, -1, %s" % (v(V_U), v(V_U)))
            A("v_lshl_add_u32 %s, %s, 7, %s" % (v(V_U), v(V_U), s(S_T0)))
            A("v_min_u32 %s, L_table-L_pc, %s" % (v(V_U), v(V_U)))
            A("global_load_dword %s, %s, s[74:75]" % (v(V_T4), v(V_U)))
        A("s_branch L_itb%s_%d" % (X, u))
        if aux:
            A.label("L_sv%s_%d" % (X, u))
            A(smov(SRD_V + 2, S_NNR)); A(smov(S_VOFF, S_NKB)); A("s_mov_b32 %s, 0" % s(S_HT))
            A("s_branch L_itb%s_%d" % (X, u))
A.label("L_late")

def norm_q2(q2):
    out = []
    for j in range(8 + 2):
        if j < 8:
            r = oreg(q2, j)
            out += ["v_mul_f32 %s, %s, %s" % (v(r + i), v(V_I + q2), v(r + i)) for i in range(4)]
        if 1 <= j < 9:
            r = oreg(q2, j - 1)
            out.append("v_cvt_pk_bf16_f32 %s, %s, %s" % (v(r), v(r), v(r + 1)))
            out.append("v_cvt_pk_bf16_f32 %s, %s, %s" % (v(r + 1), v(r + 2), v(r + 3)))
        if j >= 2:
            r = oreg(q2, j - 2)
            out.append("ds_write_b64 %s, %s offset:%d" % (v(V_EW), v(r, 2), 16 * 272 * q2 + 32 * (j - 2)))
    return out
def lfinal(N, dense=False):
    if dense: o = ["v_accvgpr_read_b32 %s, %s" % (v(V_T + q), a(A_LS + 4 * q)) for q in range(N)]
    else:
        o = ["v_accvgpr_read_b32 %s, %s" % (v(V_T + q), a(A_LS + 2 * q)) for q in range(N)]
        o += ["v_accvgpr_read_b32 %s, %s" % (v(V_U + q), a(A_LS + 2 * q + 1)) for q in range(N & ~1)]
        o += ["v_add_f32 %s, %s, %s" % (v(V_T + q), v(V_T + q), v(V_U + q)) for q in range(N & ~1)]
    for q in range(N):
        o += ["v_cmp_nge_f32 vcc, 0x44800000, %s" % v(V_T + q), "v_rcp_f32 %s, %s" % (v(V_I + q), v(V_T + q)), "s_nop 0",
              "s_mov_b64 %s, vcc" % s(S_BAD, 2) if q == 0 else "s_or_b64 %s, %s, vcc" % (s(S_BAD, 2), s(S_BAD, 2))]
    if N == 1: o.append("s_cmp_lg_u64 %s, 0" % s(S_BAD, 2))
    o += [smov(S_T2, S_QOFF)]
    return o
def readback(k, reg): return "ds_read_b128 %s, %s offset:%d" % (v(reg, 4), v(V_ER), 4 * 272 * k)
def store(reg, w):
    return ["s_waitcnt lgkmcnt(%s)" % w,
            "buffer_store_dwordx4 %s, %s, %s, %s offen%s" % (v(reg, 4), v(V_SO), s(SRD_O, 4), s(S_T2), STMOD),
            sadd(S_T2, S_T2, 16384)]
def psg(g, dst):
    d = v(dst, 16)
    mm = ["%s %s, %s, %s, %s" % (M32, d, a(A_PS + m, 4), a(A_QR + 8 * g + 4 * fr, 4), "0" if k == 0 else d) for k, (m, fr) in enumerate(((0, 0), (4, 1), (8, 0), (12, 1)))]
    cv = ["v_cvt_pk_bf16_f32 %s, %s, %s" % (v(dst + i), v(dst + 2 * i), v(dst + 2 * i + 1)) for i in range(8)]
    cv += ["v_accvgpr_write_b32 %s, %s" % (a(A_Q + 8 * g + i), v(dst + i)) for i in range(8)]
    return mm, cv
def ephase(A, u, N, NX):
    cur, nxt = S_BUF[1 - (u & 1)], S_BUF[u & 1]
    RB = [CI, CI + 16, CI, CI + 16]
    rd = []
    for db in range(8): rd += [v_read(db, 0, u * SZ), v_read(db, 1, u * SZ)]
    sm = flat_sm([op for p, op in softmax_ops(cur, N) if p >= GAPS(N)])
    lq = min([opq(op, cur) for op in sm if op.startswith("v_")] + [N])
    sums = sum((sums_after(cur, N, q, A_ONM) for q in range(lq)), [])
    while rd or sm:
        if sums: A(sums.pop(0))
        if rd: A(rd.pop(0))
        if sm: A(sm.pop(0))
    A("s_nop 1")
    for q in range(lq, N): A.ext(sums_after(cur, N, q, A_ONM))
    qn = q_reads(NX)
    sg = stream_groups((u + 3) % 4) if NX else [[]] * 10
    if opt("tlx"): tl(A)
    A("s_waitcnt lgkmcnt(8)")
    for db in range(4):
        A(pv_mfma(cur, 0, db)); A.ext(sg[db])
    A("s_waitcnt lgkmcnt(0)")
    for db in range(4, 8):
        A(pv_mfma(cur, 0, db)); A.ext(sg[db]); A.ext(qn[NX * (db - 4):NX * (db - 3)])
    A.ext(sg[8] + sg[9])
    if not NX: A("s_nop 1")
    A.ext(lfinal(N))
    A("s_cbranch_scc1 L_es%d_%d" % (N, u & 1))
    if NX: A("s_waitcnt vmcnt(8) lgkmcnt(0)")
    X = []
    ystart = 0
    for q2 in range(N):
        if opt("tlx"): X.append("#TL")
        nb = norm_q2(q2)
        pv = [pv_mfma(cur, q2 + 1, db) for db in range(8)] if q2 + 1 < N else []
        nw = 0; kst = 0
        for i, l in enumerate(nb):
            if i % int(optv('pvs', '4')) == 0 and pv: X.append(pv.pop(0))
            X.append(l)
            if l.startswith("ds_write"):
                nw += 1
                if q2 > 0 and kst < 4 and str(nw) in optv('stp', '1357'):
                    X += store(oreg(q2 - 1, 0) + 4 * kst, None); kst += 1
        for k in range(4): X.append(readback(4 * q2 + k, oreg(q2, 0) + 4 * k))
        if q2 == 0 and N == 4: ystart = len(X)
        if 1 <= q2 <= NX:
            X.append(ozero(2 * q2 - 2))
            if not (N == 4 and q2 == 1): X.append(ozero(2 * q2 - 1))
    Y = []
    zlast = []
    if NX:
        DS = [CI + 16, O + 32 * N if N < 4 else O + 16]
        P_ = [psg(g, DS[g & 1]) for g in range(2 * NX)]
        one = lambda l: [[x] for x in l]
        quad = lambda l: [l[i:i + 3] for i in range(0, len(l), 3)]
        def zipm(mm, va):
            o = []
            per = -(-len(va) // len(mm))
            for m_ in mm:
                o.append(m_ if isinstance(m_, list) else [m_]); o += quad(va[:per]); va = va[per:]
            return o
        setup = [smov(S_TASK, S_TASK + 1), "s_mov_b32 %s, 0" % s(S_TASK + 1), sadd(S_TI, S_TI, 1)] + \
                [x for x in task_setup(False) if not x.startswith("s_mov_b32 %s," % s(SRD_O + 2))]
        mv = ["v_accvgpr_mov_b32 %s, %s" % (a(A_ONM + i), a(A_ONM + 8 + i)) for i in range(8)]
        Y += zipm(P_[0][0], setup) + zipm(P_[1][0], mv) + [[lzero()]] + quad(P_[0][1])
        for q in range(1, NX + 1):
            pvq = pvalu_q(nxt, NX, q - 2) if q >= 2 else []
            if q < NX: Y += zipm(P_[2 * q][0], pvq[:12] + P_[2 * q - 1][1])
            else: Y += quad(pvq[:12] + P_[2 * q - 1][1])
            mm = [[qk0(nxt, 8 * (q - 1) + i)] + ([k_read(i, u * SZ)] if q == NX else []) for i in range(8)]
            mm[0] = ["s_nop 1"] + mm[0]
            if q < NX: mm += P_[2 * q + 1][0]
            Y += zipm(mm, pvq[12:]) if pvq[12:] else [m_ if isinstance(m_, list) else [m_] for m_ in mm]
            if q < NX: Y += quad(P_[2 * q][1])
        Y += [["s_nop 6"]] + quad(pvalu_q(nxt, NX, NX - 1))
        zlast = [ozero(g) for g in range(2 * (N - 1), 2 * NX)] + ([ozero(1)] if N == 4 else [])
    X += ["#ST%d" % k for k in range(4)]
    M = []
    acc = 0.
    rate = len(Y) / float(len(X) - ystart)
    for i, l in enumerate(X):
        if l.startswith("#ST"): M += store(oreg(N - 1, 0) + 4 * int(l[3:]), None)
        else: M.append(l)
        if i >= ystart:
            acc += rate
            while acc >= 1 and Y and not M[-1].startswith("s_waitcnt"):
                M += Y.pop(0); acc -= 1
    for y in Y: M += y
    for i, l in enumerate(M):
        if l == "s_waitcnt lgkmcnt(None)":
            reg = M[i + 1].split()[1]
            j = max(k for k in range(i) if M[k].startswith("ds_read_b128 " + reg))
            M[i] = "s_waitcnt lgkmcnt(%d)" % min(15, sum(1 for k in range(j + 1, i) if M[k].startswith("ds_")))
    eab = [k for k in optv("eab", "").split(",") if k]
    for l in M:
        if l == "#TL": tl(A)
        elif any(l.startswith(k) for k in eab): pass
        else: A(l)
    A.ext(zlast)
    if NX:
        A(smov(SRD_O + 2, S_NR))
        tl(A); tl_pre(A)
        A("s_waitcnt lgkmcnt(0)")
        A("s_branch L_itb%d_%d" % (NX, (u + 1) % 4))
    else:
        A("s_branch L_fin" if STAMPS else "s_endpgm")
for (u, N, aux) in sorted({(x[0], x[1], x[2] > 0) for x in needE3}, key=lambda x: (-x[1], x[0])):
    A.label("L_e%d%s_%d" % (N, "x" if aux else "", u))
    stamp(A, 2, True)
    A("s_mov_b32 %s, %d" % (s(S_PH), u))
    tl_post(A)
    A("s_barrier")
    NXs = sorted(x[2] for x in needE3 if x[:2] == (u, N) and (x[2] > 0) == aux)
    for NX in NXs[1:]:
        A("s_cmp_eq_u32 %s, %d" % (s(S_NNQ), NX)); A("s_cbranch_scc1 L_e%d_%d_%d" % (N, u, NX))
    for NX in NXs:
        A.label("L_e%d_%d_%d" % (N, u, NX))
        ephase(A, u, N, NX)
A.label("L_cold")
for u in range(4):
    A.label("L_adv%d" % u)
    stamp(A, 3, True)
    if any(p == u for (p, N) in needP):
        A("s_cmp_eq_u32 %s, 0" % s(S_TASK + 1))
        A("s_cbranch_scc1 L_fin")
        A(smov(S_TASK, S_TASK + 1)); A(smov(S_TASK + 1, S_TASK + 2)); A("s_mov_b32 %s, 0" % s(S_TASK + 2))
        A(sadd(S_TI, S_TI, 1))
        A.ext(task_setup())
        tl(A)
        dispatchP(A, u)
    else:
        A("s_branch L_fin")
    for N in sorted(N for (p, N) in needP if p == u):
        A.label("L_p%d_%d" % (N, u))
        pphase(A, u, N)
        A("s_branch L_itb%d_%d" % (N, (u + 1) % 4))
A.label("L_fin")
if STAMPS:
    A("s_waitcnt vmcnt(0)")
    stamp(A, 4)
    A("s_memrealtime %s" % s(S_ST + 14, 2))
    A("s_getreg_b32 %s, hwreg(HW_REG_XCC_ID)" % s(S_ST + 10))
    A("s_getreg_b32 %s, hwreg(HW_REG_HW_ID)" % s(S_ST + 11))
    A("s_waitcnt lgkmcnt(0)")
    A("s_cmp_eq_u32 %s, 0" % s(S_W))
    A("s_cbranch_scc0 L_end")
    for i in range(16): A("v_mov_b32 %s, %s" % (v(16 + i), s(S_ST + i)))
    for i in range(16): A("v_mov_b32 v%d, 0" % (32 + i))
    if TL:
        A("s_lshl_b32 %s, s2, 8" % s(S_T0))
        A("s_add_u32 %s, %s, 0x100000" % (s(S_T0), s(S_T0)))
        A("v_mbcnt_lo_u32_b32 v48, -1, 0"); A("v_mbcnt_hi_u32_b32 v48, -1, v48"); A("v_lshlrev_b32 v48, 2, v48")
        A("buffer_store_dword %s, v48, %s, %s offen" % (v(V_TL), s(SRD_W, 4), s(S_T0)))
    A("s_lshl_b32 %s, s2, 7" % s(S_T0))
    A("v_mov_b32 v48, 0")
    A("s_mov_b64 exec, 1")
    for i in range(8):
        A("buffer_store_dwordx4 %s, v48, %s, %s offen offset:%d" % (v(16 + 4 * i, 4), s(SRD_W, 4), s(S_T0), 16 * i))
A("s_endpgm")

for (par, N) in sorted({(u & 1, N) for (u, N) in needE}):
    A.label("L_es%d_%d" % (N, par))
    for q2 in range(1, N):
        for db in range(8): A(pv_mfma(S_BUF[1 - par], q2, db))
    A("s_branch L_slow")
A.label("L_slow")
A("s_waitcnt vmcnt(8) lgkmcnt(0)")
A("s_nop 7")
for q2 in range(4): A.ext(norm_q2(q2))
A("s_cmp_eq_u32 %s, 0" % s(S_FB))
A("s_cbranch_scc0 L_sstore")
A("s_mov_b64 %s, 0" % s(S_BAD, 2))
for q2 in range(4):
    if q2 >= 1:
        A("s_cmp_le_u32 %s, %d" % (s(S_NQ), q2)); A("s_cbranch_scc1 L_sdec")
    for k in range(4): A(readback(4 * q2 + k, 16 + 4 * k))
    A("v_cmp_ngt_f32 vcc, 0x71800000, %s" % v(V_T + q2))
    A("v_mov_b32 %s, 0" % v(V_U))
    A("s_nop 0")
    A("s_or_b64 %s, %s, vcc" % (s(S_BAD, 2), s(S_BAD, 2)))
    A("s_waitcnt lgkmcnt(0)")
    for k in range(8): A("v_pk_maximum3_f16 %s, %s, %s, %s" % (v(V_U), v(V_U), v(16 + 2 * k), v(17 + 2 * k)))
    A("v_and_b32 %s, 0x7c00, %s" % (v(V_U + 1), v(V_U)))
    A("v_and_b32 %s, 0x7c000000, %s" % (v(V_U + 2), v(V_U)))
    for c_ in ("v_cmp_eq_u32 vcc, 0x7c00, %s" % v(V_U + 1), "v_cmp_eq_u32 vcc, 0x7c000000, %s" % v(V_U + 2)):
        A(c_); A("s_nop 1"); A("s_or_b64 %s, %s, vcc" % (s(S_BAD, 2), s(S_BAD, 2)))
A.label("L_sdec")
A("s_cmp_lg_u64 %s, 0" % s(S_BAD, 2))
A("s_cbranch_scc1 L_fb")
A.label("L_sstore")
A(smov(S_T2, S_QOFF))
for q2 in range(4):
    if q2 >= 1:
        A("s_cmp_le_u32 %s, %d" % (s(S_NQ), q2)); A("s_cbranch_scc1 L_sret")
    for k in range(4): A(readback(4 * q2 + k, 16 + 16 * q2 + 4 * k))
    for k in range(4): A.ext(store(16 + 16 * q2 + 4 * k, 3 - k))
A.label("L_sret")
for g in range(8): A.ext(ps_mfmas(g))
A("s_nop 15")
for g in range(8):
    A.ext(ps_cvts(g)); A(ozero(g))
for u in range(3):
    A("s_cmp_eq_u32 %s, %d" % (s(S_PH), u)); A("s_cbranch_scc1 L_adv%d" % u)
A("s_branch L_adv3")
A.label("L_fb")
A("s_mov_b32 %s, 1" % s(S_FB))
FV, FKO, FVO = 48, 49, 50
S_FOFF, S_FCNT = S_L, S_CNT
A("s_sub_u32 %s, %s, %d" % (s(S_T0), s(S_PRIV), HALF))
A("v_add_u32 %s, %s, %s" % (v(FV), s(S_T0), v(V_VA)))
A("s_lshl_b32 %s, %s, 14" % (s(S_T0), s(S_W)))
A("v_subrev_u32 %s, %s, %s" % (v(FKO), s(S_T0), v(V_KVO)))
A("s_lshl_b32 %s, %s, 12" % (s(S_T0), s(S_W)))
A("v_subrev_u32 %s, %s, %s" % (v(FVO), s(S_T0), v(V_VVO)))
A(smov(SRD_F + 2, S_NR))
def fb_load(A, vo, ptr, step):
    A(smov2(SRD_F, ptr)); A(smov(S_T4, S_FOFF))
    for n in range(8):
        A(m0(n * PS, S_PRIV))
        A(sadd(S_T4, S_T4, step) if n else "s_nop 0")
        A(dma(vo, SRD_F, S_T4))
    A("s_waitcnt vmcnt(0)")
def fb_qk(A, tag):
    A("s_cmp_eq_u32 %s, 1" % s(S_FCNT)); A("s_cbranch_scc0 L_fbnm%s" % tag)
    A.ext(mask_ops())
    A.label("L_fbnm%s" % tag)
    fb_load(A, FKO, P_K, 16384)
    for f in range(8): A(k_read(f, 0, V_QA0, a(A_VF + 4 * f, 4)))
    A("s_waitcnt lgkmcnt(0)")
    for i in range(32): A(qk_mfma(S_BUF[0], i, False, A_VF))
    A("s_nop 15")
for i in range(32): A("v_mov_b32 %s, 0" % v(CI + i))
for q in range(4): A("v_mov_b32 %s, 0xff800000" % v(V_T + q))
for g in range(8): A(ozero(g))
A(lzero())
A(smov(S_FOFF, S_KBASE)); A(smov(S_FCNT, S_N))
A.label("L_fb1")
fb_qk(A, "1")
A.ext(rowmax(S_BUF[0], 4, False))
A(sadd(S_FOFF, S_FOFF, BLK))
A("s_sub_u32 %s, %s, 1" % (s(S_FCNT), s(S_FCNT))); A("s_cmp_eq_u32 %s, 0" % s(S_FCNT)); A("s_cbranch_scc0 L_fb1")
A.ext(crossmax(4))
for i in range(32): A("v_sub_f32 %s, 0, %s" % (v(CI + i), v(V_T + (i >> 3))))
A(smov(S_FOFF, S_KBASE)); A(smov(S_FCNT, S_N))
A.label("L_fb2")
fb_qk(A, "2")
A.ext(flat_sm([op for p, op in softmax_ops(S_BUF[0], 4)]))
fb_load(A, FVO, P_V, 4096)
for db in range(8):
    A(v_read(db, 0, 0, FV)); A(v_read(db, 1, 0, FV))
A("s_waitcnt lgkmcnt(0)")
for q2 in range(4):
    for db in range(8): A(pv_mfma(S_BUF[0], q2, db))
    A(sum_mfma(S_BUF[0], q2))
A("s_nop 15")
A(sadd(S_FOFF, S_FOFF, BLK))
A("s_sub_u32 %s, %s, 1" % (s(S_FCNT), s(S_FCNT))); A("s_cmp_eq_u32 %s, 0" % s(S_FCNT)); A("s_cbranch_scc0 L_fb2")
A.ext(lfinal(4, True))
A("s_branch L_slow")
A.label("L_end")
A("s_endpgm")

errs = check_hazards(A.lines)
for e in errs: print(e, file=sys.stderr)
if errs and not opt("force"): sys.exit(1)

hdr = open("standalone__varlen_attn_packed__ragged.s.ref").read().split("\n")
hdr = [l for l in hdr[:10] if l.startswith(";") and "@launch" not in l]
out = "\n".join(hdr) + "\n; @launch grid=(%d,1,1) block=(256,1,1) lds=%d\n" % (GRID, LDS)
out += '.amdgcn_target "amdgcn-amd-amdhsa--gfx950"\n.text\n.globl %s\n.p2align 8\n.type %s,@function\n' % (NAME, NAME)
out += A.text()
out += ".p2align 6\n.type L_table,@object\nL_table:\n"
for j, ent in enumerate(table):
    w = [t[0] | (t[1] << 13) | (t[2] << 23) | (t[3] << 27) | (t[4] << 30) for t in ent] + [0] * (4 - len(ent))
    out += ".long " + ", ".join("0x%08x" % x for x in w) + "\n"
out += """.section .rodata,"a"
.p2align 6
.amdhsa_kernel %s
  .amdhsa_next_free_vgpr 512
  .amdhsa_next_free_sgpr 102
  .amdhsa_accum_offset 256
  .amdhsa_group_segment_fixed_size 0
  .amdhsa_kernarg_size 56
  .amdhsa_user_sgpr_count 2
  .amdhsa_user_sgpr_kernarg_segment_ptr 1
  .amdhsa_system_sgpr_workgroup_id_x 1
.end_amdhsa_kernel
""" % NAME
sys.stdout.write(out)
```

```python
import sys, struct, math
from asmlib import Asm, check_hazards
import schedA

def opt(x): return ("--" + x) in sys.argv
def optv(x, d):
    for a_ in reversed(sys.argv):
        if a_.startswith("--" + x + "="): return a_.split("=")[1]
    return d
DEF = {("sm", 1): "11", ("dw", 1): "0,9", ("vend", 1): "-1", ("kend", 1): "4",
       ("kendx", 3): "8", ("radx", 3): "1", ("dwx", 4): "20,48", ("vendx", 4): "-1", ("kbegx", 4): "7", ("radx", 4): "2", ("saluxx", 4): "0", ("abx", 4): "20", ("aex", 4): "10",
       ("dwx", 2): "8,20", ("vendx", 2): "-1", ("kendx", 2): "5",
       ("dw", 4): "26,48", ("vend", 4): "-1", ("kbeg", 4): "7", ("rad", 4): "2", ("salux", 4): "0", ("kend", 3): "8", ("kend", 2): "5", ("sm", 3): "28", ("dw", 3): "6,20", ("rad", 3): "1", ("tp", 3): "7,5,5,3,3", ("vend", 3): "2",
       ("sm", 2): "19", ("dw", 2): "11,24", ("vend", 2): "0", ("salux", 2): "1"}
def optn(x, N, d): return optv("%s%d" % (x, N), optv(x, DEF.get((x, N), d)))
STAMPS = opt("stamps"); TL = opt("tl")
NAME = "standalone__varlen_attn_packed__ragged_kernel"
HALF = 8704; PS = 1056; SZ = 2 * HALF
PRIV = 4 * SZ
LDS = 8 * SZ
BLK = 32 * 4096
GRID = 256
plan0 = getattr(schedA, optv("plan", "PD1"))
late = [len(b[0]) > 2 and b[0][2] for b in plan0]
plan = [[x[:2] for x in b] for b in plan0]
table = schedA.build(plan, not opt("nocheck"))
STMOD = " " + optv("stmod", "sc0+sc1").replace("+", " ")
needP, needE, needN, needF, needE3 = set(), set(), set(), set(), set()
for bin_ in plan:
    assert len(bin_) <= 2
    for x, y in zip(bin_, bin_[1:]): assert x[0] >= 3 + 4 * y[1], bin_
for bin_ in plan:
    ph = 0
    for ti, (n, N) in enumerate(bin_):
        if ti: needP.add((ph, N))
        else: needF.add(N)
        needN.add((N, ti + 1 < len(bin_)))
        ph = (ph + n) & 3
        needE.add((ph, N))
        needE3.add((ph, N, bin_[ti + 1][1] if ti + 1 < len(bin_) else 0))

V_KA0, V_KA1, V_VA, V_KVO, V_KVO2, V_VVO, V_VVO2, V_G4, V_QA0, V_QA1, V_EW, V_ER, V_SO, V_T4, V_T5 = range(1, 16)
V_TL = 0
S_BUF = [16, 48]
CI = 80
V_T = 112
V_U = 116
V_I = 120
V_Z = 124
V_IDX, V_SG, V_SA = V_T5, 109, 110
O = 128
A_Q, A_QR, A_KF, A_VF, A_PS, A_LS, A_ONE, A_ONM = 0, 64, 128, 160, 192, 208, 224, 232
SRD_F, SRD_K, SRD_V, SRD_O, SRD_W = 4, 8, 12, 16, 20
(S_KOFF, S_VOFF, S_WBASE, S_CNT, S_HT, S_PRIV, S_QOFF, S_NV, S_N, S_L, S_T0, S_T1, S_T2, S_T3,
 S_KBASE, S_NR, S_PH, S_HOFF, S_FB, S_TI) = range(28, 48)
S_ST = 48
P_Q, P_K, P_V, P_O = 64, 66, 68, 70
S_TASK = 80
S_BAD = 84
S_T4, S_W, S_NQ, S_NKB, S_NNR, S_NQB, S_NNQ, S_C, S_QM, S_QME, S_BLK = 86, 87, 88, 89, 90, 91, 93, 98, 99, 100, 101
S_T4E = 96

def v(i, n=1): return "v%d" % i if n == 1 else "v[%d:%d]" % (i, i + n - 1)
def a(i, n=1): return "a%d" % i if n == 1 else "a[%d:%d]" % (i, i + n - 1)
def s(i, n=1): return "s%d" % i if n == 1 else "s[%d:%d]" % (i, i + n - 1)
M16 = "v_mfma_f32_16x16x32_bf16"; M32 = "v_mfma_f32_32x32x16_bf16"

def qk_mfma(buf, i, raw=False, kf=A_KF):
    q2, kb, st = i >> 3, (i >> 2) & 1, i & 3
    d = v(buf + 8 * q2 + 4 * kb, 4)
    c = d if st else ("0" if raw else v(CI + (8 * q2 + 4 * kb if kf != A_KF else 4 * q2), 4))
    return "%s %s, %s, %s, %s" % (M16, d, a(kf + 4 * (4 * kb + st), 4), a((A_QR if raw else A_Q) + 16 * q2 + 4 * st, 4), c)
def preg(buf, q2): return buf + 8 * q2 - (4 if q2 & 1 else 0)
def GAPS(N): return 16 * N + (N + 1) // 2
def oreg(q2, db): return O + 32 * q2 + 4 * db
def pv_mfma(buf, q2, db):
    d = v(oreg(q2, db), 4)
    return "%s %s, %s, %s, %s" % (M16, d, a(A_VF + 4 * db, 4), v(preg(buf, q2), 4), d)
def sum_mfma(buf, q2, one=None, slot=None):
    d = a(A_LS + 4 * (q2 if slot is None else slot), 4)
    return "%s %s, %s, %s, %s" % (M16, d, a(A_ONE if one is None else one, 4), v(preg(buf, q2), 4), d)
def sums_after(buf, N, q2, one=A_ONE):
    if q2 & 1: return ["v_smfmac_f32_16x16x64_bf16 %s, %s, %s, %s" % (a(A_LS + 4 * (q2 >> 1), 4), a(one + 4, 4), v(buf + 8 * (q2 - 1), 8), v(V_IDX))]
    if q2 == N - 1: return [sum_mfma(buf, q2, one, q2 >> 1)]
    return []
def onm_ops(t=0):
    o = ["s_bfe_u32 %s, %s, 0xa000d" % (s(S_T2), s(S_TASK + t)), sadd(S_T2, S_T2, 31), "s_and_b32 %s, %s, 31" % (s(S_T2), s(S_T2)), sadd(S_T2, S_T2, 1),
         "v_mov_b32 %s, 0x3f80" % v(V_I + 1), "v_mov_b32 %s, 0x3f803f80" % v(V_I + 2)]
    for sp in range(2):
        o.append("v_sub_u32 %s, %s, %s" % (v(V_I), s(S_T2), v(V_SG if sp else V_G4)))
        for r in range(4):
            k = (16 * (r & 1) + 4 * (r >> 1)) if sp else (16 * (r >> 1) + 2 * (r & 1))
            o += ["v_cmp_lt_i32 vcc, %d, %s" % (k, v(V_I)), "v_cmp_lt_i32 %s, %d, %s" % (s(S_T0, 2), k + 1, v(V_I)), "s_nop 0",
                  "v_cndmask_b32 %s, 0, %s, vcc" % (v(V_I + 3), v(V_I + 1)),
                  "v_cndmask_b32 %s, %s, %s, %s" % (v(V_I + 3), v(V_I + 3), v(V_I + 2), s(S_T0, 2))]
            if sp: o.append("v_and_b32 %s, %s, %s" % (v(V_I + 3), v(V_I + 3), v(V_SA)))
            o.append("v_accvgpr_write_b32 %s, %s" % (a(A_ONM + 8 * t + 4 * sp + r), v(V_I + 3)))
    return o
def k_read(f, base, areg=V_KA0, dst=None):
    kb, st = f >> 2, f & 3
    return "ds_read_b128 %s, %s offset:%d" % (dst or a(A_KF + 4 * f, 4), v(areg + (st >> 1)), base + 4 * PS * kb + 64 * (st & 1))
def v_read(db, j, base, areg=V_VA):
    return "ds_read_b64_tr_b16 %s, %s offset:%d" % (a(A_VF + 4 * db + 2 * j, 2), v(areg), base + 512 * j + 32 * db)
def q_reads(n=4):
    return [k_read(f, 0, V_QA0, a(A_QR + 4 * f, 4)) for f in range(4 * n)]

def sm_start(N): return int(optn("sm", N, "15"))
def opq(op, buf): return (int(op.split()[-1].strip("v,")) - buf) >> 3
def softmax_ops(buf, N):
    ops = []
    st = sm_start(N)
    G = GAPS(N)
    for e in range(8 * N):
        p = st + (e * G // (8 * N) if N > 1 else e * 3 // 2)
        ops.append((p, 0, "v_exp_f32 %s, %s" % (v(buf + e), v(buf + e))))
        if e & 1:
            pc = p + int(optn("cd", N, "1"))
            if optn("cvt2", N, "0") == "1" and (e & 3) == 1: pc += 4
            ops.append((pc, 1 + (e & 2), "v_cvt_pk_bf16_f32 %s, %s, %s" % (v(preg(buf, e >> 3) + ((e & 7) >> 1)), v(buf + e - 1), v(buf + e))))
    for p, _, op in ops:
        q = opq(op, buf)
        assert 8 * q + 8 <= p < G + 8 * N + 8 * q - 1, (N, p, op)
    ops.sort()
    cv = [o for o in ops if o[1]]
    assert all(opq(x[2], buf) <= opq(y[2], buf) for x, y in zip(cv, cv[1:]))
    return [(o[0], o[2]) for o in ops]
def flat_sm(ops):
    out = []
    pend = []
    for op in ops:
        if op.startswith("v_cvt"):
            pend.append(op)
        else:
            out.append(op)
            out += pend; pend = []
    if pend: out += ["s_nop 0"] + pend
    return out

def dma(vo, srd, so): return "buffer_load_dwordx4 %s, %s, %s offen lds" % (v(vo), s(srd, 4), s(so))
def m0(off, base=None): return "s_add_u32 m0, %s, %d" % (s(S_WBASE if base is None else base), off)
def sadd(d, x, imm): return "s_add_u32 %s, %s, %d" % (s(d), s(x), imm)
def smov(d, x): return "s_mov_b32 %s, %s" % (s(d), s(x))
def smov2(d, x): return "s_mov_b64 %s, %s" % (s(d, 2), s(x, 2))
def stream_groups(slot):
    b = slot * SZ
    return [[m0(b)], [dma(V_KVO, SRD_K, S_KOFF)], [m0(b + 4 * PS)], [dma(V_KVO2, SRD_K, S_KOFF)],
            [m0(b + HALF)], [dma(V_VVO, SRD_V, S_VOFF)], [m0(b + HALF + 4 * PS)], [dma(V_VVO2, SRD_V, S_VOFF)],
            ["s_add_u32 %s, %s, %s" % (s(S_KOFF), s(S_KOFF), s(S_BLK))], ["s_add_u32 %s, %s, %s" % (s(S_VOFF), s(S_VOFF), s(S_BLK))]]
def stream_flat(slot):
    out = []
    for g in stream_groups(slot):
        out += g
        if " m0," in g[0]: out.append("s_nop 0")
    return out
def kblock_flat(ldsoff):
    return [m0(ldsoff), "s_nop 0", dma(V_KVO, SRD_K, S_KOFF), m0(ldsoff + 4 * PS), "s_nop 0", dma(V_KVO2, SRD_K, S_KOFF), sadd(S_KOFF, S_KOFF, BLK)]
def qgroup(g):
    out = []
    for n in range(4 * g, 4 * g + 4):
        out += [m0(n * PS, S_PRIV), "s_nop 0", dma(V_KVO, SRD_F, S_T4), sadd(S_T4, S_T4, 16384)]
    return out

COST = {"ds_read_b128": 12, "ds_read_b64_tr_b16": 8, "buffer_load_dwordx4": 12, "v_exp_f32": 8}
def cost(op): return COST.get(op.split()[0], 4)

def aux_ops():
    return ["s_mov_b32 m0, %s" % s(S_QM), dma(V_KVO, SRD_F, S_T4),
            sadd(S_QM, S_QM, PS), "s_min_u32 %s, %s, %s" % (s(S_QM), s(S_QM), s(S_QME)),
            sadd(S_T4, S_T4, 16384), "s_min_u32 %s, %s, %s" % (s(S_T4), s(S_T4), s(S_T4E))]
def iteration(A, u, N, aux=False):
    nxt, cur = S_BUF[u & 1], S_BUF[1 - (u & 1)]
    opta = (lambda x, n_, d: optn(x + 'x', n_, optn(x, n_, d))) if aux else optn
    G = GAPS(N)
    ms = [qk_mfma(nxt, i) for i in range(8 * N)]
    for q2 in range(N):
        ms += [pv_mfma(cur, q2, db) for db in range(8)] + sums_after(cur, N, q2)
    if opt("pvord"):
        ms = ms[:8 * N] + [pv_mfma(cur, q2, db) for db in range(8) for q2 in range(N)] + sum((sums_after(cur, N, q) for q in range(N)), [])
    if opt("pvord2"):
        ms = ms[:8 * N] + [pv_mfma(cur, 2 * h + q2, db) for h in range(N // 2) for db in range(8) for q2 in range(2)] + sum((sums_after(cur, N, q) for q in range(N)), [])
    if opt("qkord"):
        ms = [qk_mfma(nxt, 16 * h + 8 * q2 + f) for h in range(N // 2) for f in range(8) for q2 in range(2)] + ms[8 * N:]
    if opt("qkord2"):
        ms = [qk_mfma(nxt, 8 * q2 + 4 * kb + st) for q2 in range(N) for st in range(4) for kb in range(2)] + ms[8 * N:]
    va = [[] for _ in range(G)]; nv = [[] for _ in range(G)]
    for p, op in softmax_ops(cur, N):
        if p >= G: va[p - G].append(op)
    for p, op in softmax_ops(nxt, N):
        if p < G: va[p].append(op)
    RAD = int(opta('rad', N, '1'))
    load = lambda g: sum(map(cost, va[g] + nv[g]))
    def place(items, lo, hi, strict=False):
        last = lo - (1 if strict else 0)
        pos = []
        for i, it in enumerate(items):
            t = lo + (i + 0.5) * (hi - lo + 1) / len(items)
            mn = last + (1 if strict else 0)
            mx = hi - ((len(items) - 1 - i) if strict else 0)
            cand = [g for g in range(int(t) - RAD, int(t) + RAD + 1) if mn <= g <= mx] or [min(max(int(t), mn), mx)]
            if it.startswith("s_") and opta("salux", N, "0") == "1":
                g = min(cand, key=lambda g: (len(nv[g]) > 0, not any("exp" in x for x in va[g]), abs(g + 0.5 - t)))
            else:
                g = min(cand, key=lambda g: (load(g), abs(g + 0.5 - t)))
            nv[g].append(it); last = g; pos.append(g)
        return pos
    H = 8 * N
    vpos = place([v_read(i >> 1, i & 1, u * SZ) for i in range(16)], int(opta('vbeg', N, '0')), H + int(opta('vend', N, '-1' if N == 2 else '-3')))
    kpos = place([k_read(f, u * SZ) for f in range(8)], max(H + int(opta('kbeg', N, '0')), vpos[-1]), G - int(opta('kend', N, '7')))
    sg = stream_groups((u + 3) % 4)
    dlo, dhi = [int(x) for x in opta("dw", N, {1: "0,9", 2: "1,15", 3: "24,43", 4: "33,56"}[N]).split(",")]
    ax = aux_ops() if aux else []
    dpos = place(ax[:2] + [g[0] for g in sg[:8]], dlo, dhi, True)
    if aux: place(ax[2:], max(dpos[1] + 1, int(opta('ab', N, '0'))), G - int(opta('ae', N, '8')), True)
    tailp = [int(x) for x in opta("tp", N, "6,5,4,3,2").split(",")]
    nv[G - tailp[0]] += sg[8]; nv[G - tailp[1]] += sg[9]
    nv[G - tailp[2]].append("s_sub_u32 %s, %s, 1" % (s(S_CNT), s(S_CNT)))
    nv[G - tailp[3]].append("s_cmp_le_u32 %s, %s" % (s(S_CNT), s(S_HT)))
    if TL: nv[G - tailp[4]].append("s_memrealtime s[94:95]" if opt("tlrt") else "s_memtime s[94:95]")
    nv[G - tailp[4]].append("s_waitcnt vmcnt(%d) lgkmcnt(0)" % (10 if aux else 8))
    assert dhi < G - tailp[0] and kpos[-1] < G - tailp[4]
    covered = -1
    for g in range(G):
        if H <= g < H + 8 and g - H > covered:
            db = g - H
            while db + 1 < 8 and vpos[2 * db + 3] <= g - int(opta("wd", N, "4")): db += 1
            covered = db
            assert vpos[2 * db + 1] < g
            younger = sum(1 for p in vpos[2 * db + 2:] if p < g) + sum(1 for p in kpos if p < g)
            A("s_waitcnt lgkmcnt(%d)" % younger)
        A(ms[g]); A.ext(nv[g]); A.ext(va[g])

def mask_ops(N=4):
    o = ["v_sub_u32 %s, %s, %s" % (v(V_U), s(S_NV), v(V_G4)), "v_mov_b32 %s, 0xff800000" % v(V_U + 1)]
    prs = ["vcc", s(S_T0, 2)]
    for r in range(8 + 1):
        if r < 8: o.append("v_cmp_lt_i32 %s, %d, %s" % (prs[r % 2], 16 * (r >> 2) + (r & 3), v(V_U)))
        if r == 0: o.append("s_nop 0")
        if r >= 1:
            for q2 in range(N):
                x = CI + 8 * q2 + r - 1
                o.append("v_cndmask_b32 %s, %s, %s, %s" % (v(x), v(V_U + 1), v(x), prs[(r - 1) % 2]))
    o.append("s_nop 1")
    return o
def rowmax(b, N, first):
    o = []
    if first:
        for q2 in range(N): o.append("v_max3_f32 %s, %s, %s, %s" % (v(V_T + q2), v(b + 8 * q2), v(b + 8 * q2 + 1), v(b + 8 * q2 + 2)))
        for i in (3, 5):
            for q2 in range(N): o.append("v_max3_f32 %s, %s, %s, %s" % (v(V_T + q2), v(V_T + q2), v(b + 8 * q2 + i), v(b + 8 * q2 + i + 1)))
        for q2 in range(N): o.append("v_max_f32 %s, %s, %s" % (v(V_T + q2), v(V_T + q2), v(b + 8 * q2 + 7)))
    else:
        for i in range(0, 8, 2):
            for q2 in range(N): o.append("v_max3_f32 %s, %s, %s, %s" % (v(V_T + q2), v(V_T + q2), v(b + 8 * q2 + i), v(b + 8 * q2 + i + 1)))
    return o
def crossmax(N):
    o = []
    for w in (32, 16):
        o += ["v_mov_b32 %s, %s" % (v(V_U + q), v(V_T + q)) for q in range(N)] + (["s_nop 0"] if N == 2 else [])
        o += ["v_permlane%d_swap_b32 %s, %s" % (w, v(V_T + q), v(V_U + q)) for q in range(N)]
        o += ["v_max_f32 %s, %s, %s" % (v(V_T + q), v(V_T + q), v(V_U + q)) for q in range(N)]
    return o
def ps_mfmas(g):
    d = v(O + 16 * g, 16)
    return ["%s %s, %s, %s, %s" % (M32, d, a(A_PS + m, 4), a(A_QR + 8 * g + 4 * fr, 4), "0" if k == 0 else d) for k, (m, fr) in enumerate(((0, 0), (4, 1), (8, 0), (12, 1)))]
def ps_cvts(g):
    b = O + 16 * g
    o = ["v_cvt_pk_bf16_f32 %s, %s, %s" % (v(b + i), v(b + 2 * i), v(b + 2 * i + 1)) for i in range(8)]
    o += ["v_accvgpr_write_b32 %s, %s" % (a(A_Q + 8 * g + i), v(b + i)) for i in range(8)]
    return o
def ozero(g): return "%s %s, %s, %s, 0" % (M32, v(O + 16 * g, 16), v(V_Z, 4), v(V_Z, 4))
def lzero(): return "%s %s, %s, %s, 0" % (M32, a(A_LS, 16), v(V_Z, 4), v(V_Z, 4))

nst = [0]
def stamp(A, idx, first_only=False):
    if STAMPS:
        if first_only:
            nst[0] += 1
            A("s_cmp_eq_u32 %s, 0" % s(S_TI)); A("s_cbranch_scc0 L_st%d" % nst[0])
        A("s_memtime %s" % s(S_ST + 2 * idx, 2))
        if first_only: A.label("L_st%d" % nst[0])
def tl_pre(A):
    if TL: A("s_memrealtime s[94:95]" if opt("tlrt") else "s_memtime s[94:95]")
def tl_post(A):
    if TL:
        A("s_mov_b32 m0, s92"); A("s_add_u32 s92, s92, 1"); A("v_writelane_b32 %s, s94, m0" % v(V_TL))
def tl(A):
    if TL:
        tl_pre(A); A("s_waitcnt lgkmcnt(0)"); tl_post(A)

def decode(word):
    return ["s_and_b32 %s, %s, 0x1fff" % (s(S_T0), s(word)),
            "s_bfe_u32 %s, %s, 0xa000d" % (s(S_T1), s(word)),
            "s_add_u32 %s, %s, %s" % (s(S_T1), s(S_T0), s(S_T1)),
            "s_lshl_b32 %s, %s, 12" % (s(S_NNR), s(S_T1)),
            "s_bfe_u32 %s, %s, 0x1001e" % (s(S_T1), s(word)),
            "s_lshl_b32 %s, %s, 8" % (s(S_T1), s(S_T1)),
            "s_add_u32 %s, %s, %s" % (s(S_T1), s(S_T1), s(S_HOFF)),
            "s_lshl_b32 %s, %s, 12" % (s(S_NKB), s(S_T0)),
            "s_add_u32 %s, %s, %s" % (s(S_NKB), s(S_NKB), s(S_T1)),
            "s_bfe_u32 %s, %s, 0x3001b" % (s(S_NNQ), s(word)),
            "s_bfe_u32 %s, %s, 0x40017" % (s(S_T1), s(word)),
            "s_lshl_b32 %s, %s, 2" % (s(S_T1), s(S_T1)),
            "s_mul_i32 %s, %s, %s" % (s(S_T0), s(S_W), s(S_NNQ)),
            "s_add_u32 %s, %s, %s" % (s(S_T1), s(S_T1), s(S_T0)),
            "s_lshl_b32 %s, %s, 16" % (s(S_NQB), s(S_T1)),
            "s_add_u32 %s, %s, %s" % (s(S_NQB), s(S_NQB), s(S_NKB)),
            "s_lshl_b32 %s, %s, 14" % (s(S_T0), s(S_W)),
            "s_sub_u32 %s, %s, %s" % (s(S_T4), s(S_NQB), s(S_T0)),
            smov2(SRD_F, P_Q), smov(SRD_F + 2, S_NNR)]
def task_setup(more=True):
    base = [smov(S_KBASE, S_NKB), smov(S_NR, S_NNR), smov(SRD_O + 2, S_NNR), smov(S_QOFF, S_NQB), smov(S_NQ, S_NNQ),
            "s_bfe_u32 %s, %s, 0xa000d" % (s(S_L), s(S_TASK)),
            sadd(S_N, S_L, 31), "s_lshr_b32 %s, %s, 5" % (s(S_N), s(S_N)),
            "s_sub_u32 %s, %s, 1" % (s(S_CNT), s(S_N)),
            "s_lshl_b32 %s, %s, 5" % (s(S_T1), s(S_CNT)),
            "s_sub_u32 %s, %s, %s" % (s(S_NV), s(S_L), s(S_T1)),
            "s_mov_b32 %s, 0" % s(S_FB),
            smov(S_QM, S_PRIV)]
    if not more: return base + ["s_mov_b32 %s, %d" % (s(S_HT), 0 if opt("norwl") else 4), "s_mov_b32 %s, 0" % s(S_NNQ), "s_mov_b32 %s, 0" % s(S_NNR)]
    return base + decode(S_TASK + 1) + ["s_cmp_eq_u32 %s, 0" % s(S_NNR), "s_cselect_b32 %s, %d, 4" % (s(S_HT), 0 if opt("norwl") else 4),
            "s_lshl_b32 %s, %s, 2" % (s(S_T0), s(S_NNQ)), "s_max_u32 %s, %s, 1" % (s(S_T0), s(S_T0)), "s_sub_u32 %s, %s, 1" % (s(S_T0), s(S_T0)),
            "s_mul_i32 %s, %s, %d" % (s(S_QME), s(S_T0), PS), "s_add_u32 %s, %s, %s" % (s(S_QME), s(S_QME), s(S_QM)),
            "s_lshl_b32 %s, %s, 14" % (s(S_T4E), s(S_T0)), "s_add_u32 %s, %s, %s" % (s(S_T4E), s(S_T4E), s(S_T4))]

A = Asm()
A.label(NAME)
A("s_cmp_ge_u32 s2, %d" % GRID)
A("s_cbranch_scc1 L_end")
if STAMPS: A("s_memrealtime %s" % s(S_ST + 12, 2))
stamp(A, 0)
A("s_getpc_b64 s[74:75]")
A.label("L_pc")
A("s_load_dwordx4 s[64:67], s[0:1], 0")
A("s_and_b32 s76, s2, 0xf8")
A("v_lshrrev_b32 %s, 3, v0" % v(V_T4))
A("v_lshl_add_u32 %s, s76, 2, %s" % (v(V_T4), v(V_T4)))
A("v_lshlrev_b32 %s, 7, %s" % (v(V_T4), v(V_T4)))
A("v_min_u32 %s, L_cold-L_pc, %s" % (v(V_T4), v(V_T4)))
A("global_load_dword %s, %s, s[74:75]" % (v(V_T4), v(V_T4)))
A("s_lshl_b32 s76, s76, 1")
A("s_add_u32 s78, s74, L_table-L_pc")
A("s_addc_u32 s79, s75, 0")
A("s_load_dwordx4 %s, s[78:79], s76" % s(S_TASK, 4))
A("s_load_dwordx2 s[68:69], s[0:1], 16")
A("s_load_dwordx2 s[70:71], s[0:1], 32")
if STAMPS: A("s_load_dwordx2 s[72:73], s[0:1], 48")
A("v_lshrrev_b32 %s, 6, v0" % v(V_U))
A("v_and_b32 v22, 63, v0")
A("v_readfirstlane_b32 %s, %s" % (s(S_W), v(V_U)))
G, P16, R4, X0, X1, X2 = 16, 17, 18, 19, 20, 21
A("v_lshrrev_b32 %s, 4, v22" % v(G))
A("v_and_b32 %s, 15, v22" % v(P16))
A("v_and_b32 %s, 3, v22" % v(R4))
def fswz(dst, src, tmp):
    A("v_and_b32 %s, 2, %s" % (v(tmp), v(src)))
    A("v_and_b32 %s, 1, %s" % (v(dst), v(src)))
    A("v_lshl_add_u32 %s, %s, 2, %s" % (v(dst), v(tmp), v(dst)))
fswz(X0, G, X1)
A("v_xor_b32 %s, %s, %s" % (v(X0), v(X0), v(P16)))
A("s_lshl_b32 %s, %s, 2" % (s(S_T0), s(S_W)))
A("v_add_u32 %s, %s, %s" % (v(X1), s(S_T0), v(G)))
A("v_lshlrev_b32 %s, 12, %s" % (v(X1), v(X1)))
A("v_lshl_add_u32 %s, %s, 4, %s" % (v(V_KVO), v(X0), v(X1)))
A("v_add_u32 %s, %d, %s" % (v(V_KVO2), 16 * 4096, v(V_KVO)))
A("v_lshl_add_u32 %s, %s, 3, %s" % (v(X1), v(G), s(S_W)))
A("v_lshlrev_b32 %s, 12, %s" % (v(X1), v(X1)))
A("v_lshl_add_u32 %s, %s, 4, %s" % (v(V_VVO), v(P16), v(X1)))
A("v_add_u32 %s, %d, %s" % (v(V_VVO2), 4 * 4096, v(V_VVO)))
A("s_mul_i32 %s, %s, %d" % (s(S_WBASE), s(S_W), PS))
A("s_mov_b32 %s, %d" % (s(S_BLK), BLK))
A("s_mul_i32 %s, %s, %d" % (s(S_PRIV), s(S_W), SZ))
A(sadd(S_PRIV, S_PRIV, PRIV))
A("s_and_b32 %s, s2, 7" % s(S_HOFF))
A("s_lshl_b32 %s, %s, 9" % (s(S_HOFF), s(S_HOFF)))
A("s_mov_b32 %s, 0" % s(S_TI))
A("s_mov_b32 %s, 0x%08x" % (s(S_C), struct.unpack("<I", struct.pack("<f", (128 ** -0.5) * math.log2(math.e)))[0]))
for srd in (SRD_K, SRD_F, SRD_V, SRD_O):
    A("s_mov_b32 %s, 0x20000" % s(srd + 3))
if TL:
    A("s_mov_b32 s92, 0"); A("v_mov_b32 %s, 0" % v(V_TL))
A("s_waitcnt lgkmcnt(0)")
if opt("tls"): tl(A)
A.ext(decode(S_TASK))
for srd, src in ((SRD_K, P_K), (SRD_V, P_V), (SRD_O, P_O)):
    A(smov2(srd, src))
for srd in (SRD_K, SRD_V): A(smov(srd + 2, S_NNR))
if STAMPS:
    A("s_mov_b32 %s, s72" % s(SRD_W)); A("s_mov_b32 %s, s73" % s(SRD_W + 1))
    A("s_mov_b32 %s, 0x1000000" % s(SRD_W + 2)); A("s_mov_b32 %s, 0x20000" % s(SRD_W + 3))
A(smov(S_KOFF, S_NKB)); A(smov(S_VOFF, S_NKB))
if opt("k1late"):
    A.ext(kblock_flat(HALF)); A.ext(qgroup(0)[:8]); A.ext(kblock_flat(0)); A.ext(qgroup(0)[8:]); A.ext(qgroup(1))
else:
    A.ext(kblock_flat(HALF) + kblock_flat(0))
    A.ext(qgroup(0)); A.ext(qgroup(1))
if opt("tls"): tl(A)
fswz(X0, R4, X1)
A("v_xor_b32 %s, %s, %s" % (v(X0), v(X0), v(G)))
A("v_lshrrev_b32 %s, 2, %s" % (v(X2), v(P16)))
A("v_mul_u32_u24 %s, %d, %s" % (v(X1), PS, v(X2)))
A("v_lshl_add_u32 %s, %s, 8, %s" % (v(X1), v(R4), v(X1)))
A("v_lshl_add_u32 %s, %s, 4, %s" % (v(V_KA0), v(X0), v(X1)))
A("v_xor_b32 %s, 8, %s" % (v(X0), v(X0)))
A("v_lshl_add_u32 %s, %s, 4, %s" % (v(V_KA1), v(X0), v(X1)))
A("v_add_u32 %s, %s, %s" % (v(V_QA0), s(S_PRIV), v(V_KA0)))
A("v_add_u32 %s, %s, %s" % (v(V_QA1), s(S_PRIV), v(V_KA1)))
A("v_and_b32 %s, 1, %s" % (v(X0), v(G)))
A("v_lshl_add_u32 %s, %s, 2, %s" % (v(X0), v(X0), v(X2)))
A("v_mul_u32_u24 %s, %d, %s" % (v(X0), PS, v(X0)))
A("v_lshrrev_b32 %s, 1, %s" % (v(X1), v(G)))
A("v_lshl_add_u32 %s, %s, 8, %s" % (v(X0), v(X1), v(X0)))
A("v_lshl_add_u32 %s, %s, 3, %s" % (v(X0), v(R4), v(X0)))
A("v_add_u32 %s, %d, %s" % (v(V_VA), HALF, v(X0)))
A("v_mul_u32_u24 %s, 272, %s" % (v(X0), v(P16)))
A("v_lshl_add_u32 %s, %s, 3, %s" % (v(X0), v(G), v(X0)))
A("v_add_u32 %s, %s, %s" % (v(V_EW), s(S_PRIV), v(X0)))
A("v_mul_u32_u24 %s, 272, %s" % (v(X0), v(G)))
A("v_lshl_add_u32 %s, %s, 4, %s" % (v(X0), v(P16), v(X0)))
A("v_add_u32 %s, %s, %s" % (v(V_ER), s(S_PRIV), v(X0)))
A("v_lshlrev_b32 %s, 12, %s" % (v(X0), v(G)))
A("v_lshl_add_u32 %s, %s, 4, %s" % (v(V_SO), v(P16), v(X0)))
A("v_lshlrev_b32 %s, 2, %s" % (v(V_G4), v(G)))
A("v_bfe_u32 %s, v22, 1, 1" % v(X0))
A("v_lshrrev_b32 %s, 5, v22" % v(X1))
A("v_cmp_eq_u32 vcc, %s, %s" % (v(X0), v(X1)))
A("v_and_b32 %s, 1, v22" % v(X2))
A("v_bfe_u32 %s, v22, 4, 1" % v(X1))
A("v_cndmask_b32 %s, 0, -1, vcc" % v(V_SA))
A("v_lshlrev_b32 %s, 3, %s" % (v(X1), v(X1)))
A("v_lshl_add_u32 %s, %s, 1, %s" % (v(V_SG), v(X2), v(X1)))
A("v_mul_u32_u24 %s, 0xaaaa, %s" % (v(X2), v(X2)))
A("v_add_u32 %s, 0x4444, %s" % (v(V_IDX), v(X2)))
A("v_mov_b32 %s, 0x3f803f80" % v(X0))
A("v_and_b32 %s, %s, %s" % (v(X1), v(X0), v(V_SA)))
for i in range(4):
    A("v_accvgpr_write_b32 %s, %s" % (a(A_ONE + i), v(X0)))
    A("v_accvgpr_write_b32 %s, %s" % (a(A_ONE + 4 + i), v(X1)))
    A("v_mov_b32 %s, 0" % v(V_Z + i))
LN = 24
A("v_bfe_u32 %s, v22, 2, 1" % v(X0))
A("v_lshrrev_b32 %s, 5, v22" % v(X1))
A("v_xor_b32 %s, %s, %s" % (v(X0), v(X0), v(X1)))
A("v_bfe_u32 %s, v22, 3, 2" % v(X1))
A("v_bfe_u32 %s, v22, 1, 1" % v(X2))
A("v_lshl_add_u32 %s, %s, 1, %s" % (v(X1), v(X1), v(X2)))
A("v_lshl_add_u32 %s, %s, 4, %s" % (v(X1), v(X0), v(X1)))
A("v_and_b32 %s, 1, v22" % v(X2))
A("v_lshlrev_b32 %s, 4, %s" % (v(X2), v(X2)))
A("v_mov_b32 %s, 0x3e03" % v(LN + 1))
A("v_mov_b32 %s, 0xb9d8" % v(LN + 2))
A("v_lshlrev_b32 %s, %s, %s" % (v(LN + 1), v(X2), v(LN + 1)))
A("v_lshlrev_b32 %s, %s, %s" % (v(LN + 2), v(X2), v(LN + 2)))
for r in range(8):
    A("v_cmp_eq_u32 vcc, %d, %s" % (r, v(X1)))
    A("s_nop 1")
    A("v_cndmask_b32 %s, 0, %s, vcc" % (v(LN + 3), v(LN + 1)))
    A("v_cndmask_b32 %s, 0, %s, vcc" % (v(LN + 4), v(LN + 2)))
    A("v_accvgpr_write_b32 %s, %s" % (a(A_PS + r), v(LN + 3)))
    A("v_accvgpr_write_b32 %s, %s" % (a(A_PS + 8 + r), v(LN + 4)))
if opt("tls"): tl(A)
for g in (2, 3):
    A("s_cmp_le_u32 %s, %d" % (s(S_NNQ), g)); A("s_cbranch_scc1 L_qdone")
    A.ext(qgroup(g))
A.label("L_qdone")
if opt("tls"): tl(A)
A.ext(task_setup())
MAXT = max(len(x) for x in plan)
for t in range(MAXT): A.ext(onm_ops(t))
A(lzero())
Fs = sorted(needF)
for N in Fs[:-1]:
    A("s_cmp_eq_u32 %s, %d" % (s(S_NQ), N)); A("s_cbranch_scc1 L_f%d" % N)
def qnext_items():
    it = []
    for g in range(4):
        q = qgroup(g)
        for k in range(4):
            pre = []
            if g >= 2 and k == 0:
                pre = ["s_cmp_le_u32 %s, %d" % (s(S_NNQ), g), "s_cselect_b32 %s, 0, %s" % (s(SRD_F + 2), s(SRD_F + 2))]
            it.append(pre + [q[4 * k]]); it.append([q[4 * k + 2], q[4 * k + 3]])
    return it
def weave(va, items, first=0):
    out = []
    step = max(1, (len(va) - first) // (len(items) + 1))
    items = list(items)
    for i, l in enumerate(va):
        out.append(l)
        if i >= first and (i - first) % step == 0 and items: out += items.pop(0)
    assert not items
    return out
def pvalu(b, N, raw):
    va = rowmax(b, N, True) + crossmax(N)
    if raw: va += ["v_mul_f32 %s, %s, %s" % (v(V_T + q), s(S_C), v(V_T + q)) for q in range(N)]
    va += ["v_sub_f32 %s, 0, %s" % (v(CI + 8 * q), v(V_T + q)) for q in range(N)]
    for i in range(8 * N):
        if raw: va.append("v_fma_f32 %s, %s, %s, -%s" % (v(b + i), v(b + i), s(S_C), v(V_T + (i >> 3))))
        else: va.append("v_sub_f32 %s, %s, %s" % (v(b + i), v(b + i), v(V_T + (i >> 3))))
        if 1 <= (i & 7) < 4: va.append("v_mov_b32 %s, %s" % (v(CI + i), v(CI + (i & ~7))))
    va += flat_sm([op for p, op in softmax_ops(b, N) if p < GAPS(N)])
    return va
def pvalu_q(b, N, q):
    r = b + 8 * q; t = V_T + q; u_ = V_U + q
    va = ["v_max3_f32 %s, %s, %s, %s" % (v(t), v(r), v(r + 1), v(r + 2)), "v_max3_f32 %s, %s, %s, %s" % (v(u_), v(r + 3), v(r + 4), v(r + 5)),
          "v_max3_f32 %s, %s, %s, %s" % (v(t), v(t), v(r + 6), v(r + 7)), "v_max_f32 %s, %s, %s" % (v(t), v(t), v(u_))]
    for w in (32, 16):
        va += ["v_mov_b32 %s, %s" % (v(u_), v(t)), "s_nop 1", "v_permlane%d_swap_b32 %s, %s" % (w, v(t), v(u_)), "v_max_f32 %s, %s, %s" % (v(t), v(t), v(u_))]
    va += ["v_sub_f32 %s, %s, %s" % (v(r + i), v(r + i), v(t)) for i in range(8)]
    va += ["v_sub_f32 %s, 0, %s" % (v(CI + 4 * q + i), v(t)) for i in range(4)]
    va += flat_sm([op for p, op in softmax_ops(b, N) if p < GAPS(N) and opq(op, b) == q])
    return va
def qk0(b, i):
    m_ = qk_mfma(b, i)
    return m_[:m_.rindex(",")] + ", 0" if (i & 3) == 0 else m_
def under(A, mm, va):
    per = -(-len(va) // len(mm)) if va else 0
    for m_ in mm:
        A.ext(m_ if isinstance(m_, list) else [m_]); A.ext(va[:per]); va = va[per:]
def first(A, N):
    qr = q_reads()
    b = S_BUF[0]
    S1 = int(optv("s1at", "1"))
    st_ = {"issued": 0}
    def fetch(q):
        if q == max(0, N - S1):
            A.ext(stream_flat(1)); st_["issued"] = 4
        if opt("tls"): tl(A)
        A("s_waitcnt vmcnt(%d)" % (st_["issued"] + 4 * (N - 1 - q)))
        if opt("tls"): tl(A)
        A.ext(qr[4 * q:4 * q + 4])
        if q == N - 1:
            tl(A)
            stamp(A, 1, True)
    fetch(0)
    A("s_barrier")
    for f in range(8): A(k_read(f, HALF))
    for q in range(N):
        last = q == N - 1
        A("s_waitcnt lgkmcnt(%d)" % (8 if q == 0 else 0))
        sg = stream_groups(2) if last else [[]] * 10
        mm = ps_mfmas(2 * q) + ps_mfmas(2 * q + 1)
        va = pvalu_q(b, N, q - 1) if q else []
        A.ext(mm[:2]); A("s_nop 3")
        under(A, [[m_] + sg[i] for i, m_ in enumerate(mm[2:])], va)
        A.ext(sg[6] + ["s_nop 0"] + sg[7] + sg[8] + sg[9] + (["s_nop 6"] if q == 0 else []))
        A.ext(ps_cvts(2 * q)); A(ozero(2 * q))
        A.ext(ps_cvts(2 * q + 1)); A(ozero(2 * q + 1))
        A("s_waitcnt lgkmcnt(0)" if q == 0 else "s_nop 0")
        for i in range(8):
            A(qk0(b, 8 * q + i))
            if last: A(k_read(i, 0))
        if not last: fetch(q + 1)
    A("s_nop 6")
    A.ext(weave(pvalu_q(b, N, N - 1), [[x] for x in aux_ops()] + stream_groups(3)))
    tl_pre(A)
    A("s_waitcnt vmcnt(9) lgkmcnt(0)")
    if (N, True) in needN:
        A("s_cmp_lg_u32 %s, 0" % s(S_NNR))
        A("s_cbranch_scc1 L_itb%dx_1" % N)
    A("s_branch L_itb%d%s_1" % (N, "" if (N, False) in needN else "x"))
first(A, Fs[-1])
for N in Fs[:-1]:
    A.label("L_f%d" % N)
    first(A, N)
def dispatchP(A, u):
    Ns = sorted(N for (p, N) in needP if p == u)
    for N in Ns[:-1]:
        A("s_cmp_eq_u32 %s, %d" % (s(S_NQ), N)); A("s_cbranch_scc1 L_p%d_%d" % (N, u))
    A("s_branch L_p%d_%d" % (Ns[-1], u))

def pphase(A, u, N):
    b = S_BUF[u & 1]
    mv = ["v_accvgpr_mov_b32 %s, %s" % (a(A_ONM + i), a(A_ONM + 8 + i)) for i in range(8 * (MAXT - 1))]
    A.ext(mv)
    for i in range(8 * N): A(qk0(b, i))
    for f in range(8): A(k_read(f, u * SZ))
    A(lzero())
    for q in range(N): A.ext(pvalu_q(b, N, q))
    tl_pre(A)
    A("s_waitcnt lgkmcnt(0)")

for (N, aux) in sorted(needN, reverse=True):
    X = "%d%s" % (N, "x" if aux else "")
    A(".p2align 6")
    phase = int(optv("al", "1"))
    for _ in range(phase): A("s_nop 0")
    for u in (1, 2, 3, 0):
        A.label("L_itb%s_%d" % (X, u))
        tl_post(A)
        A("s_nop 0" if (opt("nobar") or (opt("bar2") and u & 1)) else "s_barrier")
        i0 = len(A.lines)
        iteration(A, u, N, aux)
        def isz(l):
            op = l.split()[0]
            if op.startswith(("v_mfma", "v_smfmac", "ds_", "buffer_", "v_cvt")): return 8
            if op == "s_add_u32" and l.split(",")[-1].strip().isdigit() and int(l.split(",")[-1]) > 64: return 8
            return 4
        phase = (phase + (8 + (20 if TL else 0) + sum(isz(l) for l in A.lines[i0:])) // 4) % 8
        k = {0: 1, 7: 2}.get(phase, 0)
        ex = [i for i in range(i0, len(A.lines)) if A.lines[i].startswith("v_exp_f32 ")]
        for j in range(k):
            i = ex[(2 * j + 1) * len(ex) // (2 * k)]
            A.lines[i] = A.lines[i].replace("v_exp_f32 ", "v_exp_f32_e64 ")
        phase = (phase + k) % 8
        if u != 0: A("s_cbranch_scc1 L_sp%s_%d" % (X, (u + 1) % 4))
        else: A("s_cbranch_scc0 L_itb%s_1" % X)
    for u in (1, 2, 3, 0):
        A.label("L_sp%s_%d" % (X, u))
        mine = [x for x in needE3 if x[:2] == (u, N) and (x[2] > 0) == aux]
        if mine:
            A("s_cmp_eq_u32 %s, 0" % s(S_CNT))
            A("s_cbranch_scc1 L_e%s_%d" % (X, u))
        if aux:
            A("s_cmp_eq_u32 %s, 2" % s(S_CNT))
            A("s_cbranch_scc1 L_sv%s_%d" % (X, u))
            A(smov(SRD_K + 2, S_NNR)); A(smov(S_KOFF, S_NKB))
        A("s_mov_b32 %s, %d" % (s(S_HT), 2 if aux else 0))
        if mine and not opt("norw"):
            A("s_mov_b32 %s, L_e%s_%d-L_pc" % (s(S_T0), X, u))
            if aux:
                for w_, lab in ((1, "L_e%s_%d-L_pc+8192" % (X, u)), (2, "L_e%s_%d-L_pc+16384" % (X, u))):
                    A("s_cmp_eq_u32 %s, %d" % (s(S_W), w_))
                    A("s_cselect_b32 %s, %s, %s" % (s(S_T0), lab, s(S_T0)))
            if aux:
                nxs = sorted({x[2] for x in mine})
                A("s_mov_b32 %s, L_itb%d_1-L_pc" % (s(S_T1), nxs[0]))
                for nx in nxs[1:]:
                    A("s_cmp_eq_u32 %s, %d" % (s(S_NNQ), nx))
                    A("s_cselect_b32 %s, L_itb%d_1-L_pc, %s" % (s(S_T1), nx, s(S_T1)))
                A("s_cmp_eq_u32 %s, 3" % s(S_W))
                A("s_cselect_b32 %s, %s, %s" % (s(S_T0), s(S_T1), s(S_T0)))
            A("v_mbcnt_lo_u32_b32 %s, -1, 0" % v(V_U))
            A("v_mbcnt_hi_u32_b32 %s, -1, %s" % (v(V_U), v(V_U)))
            A("v_lshl_add_u32 %s, %s, 7, %s" % (v(V_U), v(V_U), s(S_T0)))
            A("v_min_u32 %s, L_table-L_pc, %s" % (v(V_U), v(V_U)))
            A("global_load_dword %s, %s, s[74:75]" % (v(V_T4), v(V_U)))
        A("s_branch L_itb%s_%d" % (X, u))
        if aux:
            A.label("L_sv%s_%d" % (X, u))
            A(smov(SRD_V + 2, S_NNR)); A(smov(S_VOFF, S_NKB)); A("s_mov_b32 %s, 0" % s(S_HT))
            A("s_branch L_itb%s_%d" % (X, u))
A.label("L_late")

def norm_q2(q2):
    out = []
    for j in range(8 + 2):
        if j < 8:
            r = oreg(q2, j)
            out += ["v_mul_f32 %s, %s, %s" % (v(r + i), v(V_I + q2), v(r + i)) for i in range(4)]
        if 1 <= j < 9:
            r = oreg(q2, j - 1)
            out.append("v_cvt_pk_bf16_f32 %s, %s, %s" % (v(r), v(r), v(r + 1)))
            out.append("v_cvt_pk_bf16_f32 %s, %s, %s" % (v(r + 1), v(r + 2), v(r + 3)))
        if j >= 2:
            r = oreg(q2, j - 2)
            out.append("ds_write_b64 %s, %s offset:%d" % (v(V_EW), v(r, 2), 16 * 272 * q2 + 32 * (j - 2)))
    return out
def lfinal(N, dense=False):
    if dense: o = ["v_accvgpr_read_b32 %s, %s" % (v(V_T + q), a(A_LS + 4 * q)) for q in range(N)]
    else:
        o = ["v_accvgpr_read_b32 %s, %s" % (v(V_T + q), a(A_LS + 2 * q)) for q in range(N)]
        o += ["v_accvgpr_read_b32 %s, %s" % (v(V_U + q), a(A_LS + 2 * q + 1)) for q in range(N & ~1)]
        o += ["v_add_f32 %s, %s, %s" % (v(V_T + q), v(V_T + q), v(V_U + q)) for q in range(N & ~1)]
    for q in range(N):
        o += ["v_cmp_nge_f32 vcc, 0x44800000, %s" % v(V_T + q), "v_rcp_f32 %s, %s" % (v(V_I + q), v(V_T + q)), "s_nop 0",
              "s_mov_b64 %s, vcc" % s(S_BAD, 2) if q == 0 else "s_or_b64 %s, %s, vcc" % (s(S_BAD, 2), s(S_BAD, 2))]
    if N == 1: o.append("s_cmp_lg_u64 %s, 0" % s(S_BAD, 2))
    o += [smov(S_T2, S_QOFF)]
    return o
def readback(k, reg): return "ds_read_b128 %s, %s offset:%d" % (v(reg, 4), v(V_ER), 4 * 272 * k)
def store(reg, w):
    return ["s_waitcnt lgkmcnt(%s)" % w,
            "buffer_store_dwordx4 %s, %s, %s, %s offen%s" % (v(reg, 4), v(V_SO), s(SRD_O, 4), s(S_T2), STMOD),
            sadd(S_T2, S_T2, 16384)]
def psg(g, dst):
    d = v(dst, 16)
    mm = ["%s %s, %s, %s, %s" % (M32, d, a(A_PS + m, 4), a(A_QR + 8 * g + 4 * fr, 4), "0" if k == 0 else d) for k, (m, fr) in enumerate(((0, 0), (4, 1), (8, 0), (12, 1)))]
    cv = ["v_cvt_pk_bf16_f32 %s, %s, %s" % (v(dst + i), v(dst + 2 * i), v(dst + 2 * i + 1)) for i in range(8)]
    cv += ["v_accvgpr_write_b32 %s, %s" % (a(A_Q + 8 * g + i), v(dst + i)) for i in range(8)]
    return mm, cv
def ephase(A, u, N, NX):
    cur, nxt = S_BUF[1 - (u & 1)], S_BUF[u & 1]
    RB = [CI, CI + 16, CI, CI + 16]
    rd = []
    for db in range(8): rd += [v_read(db, 0, u * SZ), v_read(db, 1, u * SZ)]
    sm = flat_sm([op for p, op in softmax_ops(cur, N) if p >= GAPS(N)])
    lq = min([opq(op, cur) for op in sm if op.startswith("v_")] + [N])
    sums = sum((sums_after(cur, N, q, A_ONM) for q in range(lq)), [])
    while rd or sm:
        if sums: A(sums.pop(0))
        if rd: A(rd.pop(0))
        if sm: A(sm.pop(0))
    A("s_nop 1")
    for q in range(lq, N): A.ext(sums_after(cur, N, q, A_ONM))
    qn = q_reads(NX)
    sg = stream_groups((u + 3) % 4) if NX else [[]] * 10
    if opt("tlx"): tl(A)
    A("s_waitcnt lgkmcnt(8)")
    for db in range(4):
        A(pv_mfma(cur, 0, db)); A.ext(sg[db])
    A("s_waitcnt lgkmcnt(0)")
    for db in range(4, 8):
        A(pv_mfma(cur, 0, db)); A.ext(sg[db]); A.ext(qn[NX * (db - 4):NX * (db - 3)])
    A.ext(sg[8] + sg[9])
    if not NX: A("s_nop 1")
    A.ext(lfinal(N))
    A("s_cbranch_scc1 L_es%d_%d" % (N, u & 1))
    if NX: A("s_waitcnt vmcnt(8) lgkmcnt(0)")
    X = []
    ystart = 0
    for q2 in range(N):
        if opt("tlx"): X.append("#TL")
        nb = norm_q2(q2)
        pv = [pv_mfma(cur, q2 + 1, db) for db in range(8)] if q2 + 1 < N else []
        nw = 0; kst = 0
        for i, l in enumerate(nb):
            if i % int(optv('pvs', '4')) == 0 and pv: X.append(pv.pop(0))
            X.append(l)
            if l.startswith("ds_write"):
                nw += 1
                if q2 > 0 and kst < 4 and str(nw) in optv('stp', '1357'):
                    X += store(oreg(q2 - 1, 0) + 4 * kst, None); kst += 1
        for k in range(4): X.append(readback(4 * q2 + k, oreg(q2, 0) + 4 * k))
        if q2 == 0 and N == 4: ystart = len(X)
        if 1 <= q2 <= NX:
            X.append(ozero(2 * q2 - 2))
            if not (N == 4 and q2 == 1): X.append(ozero(2 * q2 - 1))
    Y = []
    zlast = []
    if NX:
        DS = [CI + 16, O + 32 * N if N < 4 else O + 16]
        P_ = [psg(g, DS[g & 1]) for g in range(2 * NX)]
        one = lambda l: [[x] for x in l]
        quad = lambda l: [l[i:i + 3] for i in range(0, len(l), 3)]
        def zipm(mm, va):
            o = []
            per = -(-len(va) // len(mm))
            for m_ in mm:
                o.append(m_ if isinstance(m_, list) else [m_]); o += quad(va[:per]); va = va[per:]
            return o
        setup = [smov(S_TASK, S_TASK + 1), "s_mov_b32 %s, 0" % s(S_TASK + 1), sadd(S_TI, S_TI, 1)] + \
                [x for x in task_setup(False) if not x.startswith("s_mov_b32 %s," % s(SRD_O + 2))]
        mv = ["v_accvgpr_mov_b32 %s, %s" % (a(A_ONM + i), a(A_ONM + 8 + i)) for i in range(8)]
        Y += zipm(P_[0][0], setup) + zipm(P_[1][0], mv) + [[lzero()]] + quad(P_[0][1])
        for q in range(1, NX + 1):
            pvq = pvalu_q(nxt, NX, q - 2) if q >= 2 else []
            if q < NX: Y += zipm(P_[2 * q][0], pvq[:12] + P_[2 * q - 1][1])
            else: Y += quad(pvq[:12] + P_[2 * q - 1][1])
            mm = [[qk0(nxt, 8 * (q - 1) + i)] + ([k_read(i, u * SZ)] if q == NX else []) for i in range(8)]
            mm[0] = ["s_nop 1"] + mm[0]
            if q < NX: mm += P_[2 * q + 1][0]
            Y += zipm(mm, pvq[12:]) if pvq[12:] else [m_ if isinstance(m_, list) else [m_] for m_ in mm]
            if q < NX: Y += quad(P_[2 * q][1])
        Y += [["s_nop 6"]] + quad(pvalu_q(nxt, NX, NX - 1))
        zlast = [ozero(g) for g in range(2 * (N - 1), 2 * NX)] + ([ozero(1)] if N == 4 else [])
    X += ["#ST%d" % k for k in range(4)]
    M = []
    acc = 0.
    rate = len(Y) / float(len(X) - ystart)
    for i, l in enumerate(X):
        if l.startswith("#ST"): M += store(oreg(N - 1, 0) + 4 * int(l[3:]), None)
        else: M.append(l)
        if i >= ystart:
            acc += rate
            while acc >= 1 and Y and not M[-1].startswith("s_waitcnt"):
                M += Y.pop(0); acc -= 1
    for y in Y: M += y
    for i, l in enumerate(M):
        if l == "s_waitcnt lgkmcnt(None)":
            reg = M[i + 1].split()[1]
            j = max(k for k in range(i) if M[k].startswith("ds_read_b128 " + reg))
            M[i] = "s_waitcnt lgkmcnt(%d)" % min(15, sum(1 for k in range(j + 1, i) if M[k].startswith("ds_")))
    eab = [k for k in optv("eab", "").split(",") if k]
    for l in M:
        if l == "#TL": tl(A)
        elif any(l.startswith(k) for k in eab): pass
        else: A(l)
    A.ext(zlast)
    if NX:
        A(smov(SRD_O + 2, S_NR))
        tl(A); tl_pre(A)
        A("s_waitcnt lgkmcnt(0)")
        A("s_branch L_itb%d_%d" % (NX, (u + 1) % 4))
    else:
        A("s_branch L_fin" if STAMPS else "s_endpgm")
for (u, N, aux) in sorted({(x[0], x[1], x[2] > 0) for x in needE3}, key=lambda x: (-x[1], x[0])):
    A.label("L_e%d%s_%d" % (N, "x" if aux else "", u))
    stamp(A, 2, True)
    A("s_mov_b32 %s, %d" % (s(S_PH), u))
    tl_post(A)
    A("s_barrier")
    NXs = sorted(x[2] for x in needE3 if x[:2] == (u, N) and (x[2] > 0) == aux)
    for NX in NXs[1:]:
        A("s_cmp_eq_u32 %s, %d" % (s(S_NNQ), NX)); A("s_cbranch_scc1 L_e%d_%d_%d" % (N, u, NX))
    for NX in NXs:
        A.label("L_e%d_%d_%d" % (N, u, NX))
        ephase(A, u, N, NX)
A.label("L_cold")
for u in range(4):
    A.label("L_adv%d" % u)
    stamp(A, 3, True)
    if any(p == u for (p, N) in needP):
        A("s_cmp_eq_u32 %s, 0" % s(S_TASK + 1))
        A("s_cbranch_scc1 L_fin")
        A(smov(S_TASK, S_TASK + 1)); A(smov(S_TASK + 1, S_TASK + 2)); A("s_mov_b32 %s, 0" % s(S_TASK + 2))
        A(sadd(S_TI, S_TI, 1))
        A.ext(task_setup())
        tl(A)
        dispatchP(A, u)
    else:
        A("s_branch L_fin")
    for N in sorted(N for (p, N) in needP if p == u):
        A.label("L_p%d_%d" % (N, u))
        pphase(A, u, N)
        A("s_branch L_itb%d_%d" % (N, (u + 1) % 4))
A.label("L_fin")
if STAMPS:
    A("s_waitcnt vmcnt(0)")
    stamp(A, 4)
    A("s_memrealtime %s" % s(S_ST + 14, 2))
    A("s_getreg_b32 %s, hwreg(HW_REG_XCC_ID)" % s(S_ST + 10))
    A("s_getreg_b32 %s, hwreg(HW_REG_HW_ID)" % s(S_ST + 11))
    A("s_waitcnt lgkmcnt(0)")
    A("s_cmp_eq_u32 %s, 0" % s(S_W))
    A("s_cbranch_scc0 L_end")
    for i in range(16): A("v_mov_b32 %s, %s" % (v(16 + i), s(S_ST + i)))
    for i in range(16): A("v_mov_b32 v%d, 0" % (32 + i))
    if TL:
        A("s_lshl_b32 %s, s2, 8" % s(S_T0))
        A("s_add_u32 %s, %s, 0x100000" % (s(S_T0), s(S_T0)))
        A("v_mbcnt_lo_u32_b32 v48, -1, 0"); A("v_mbcnt_hi_u32_b32 v48, -1, v48"); A("v_lshlrev_b32 v48, 2, v48")
        A("buffer_store_dword %s, v48, %s, %s offen" % (v(V_TL), s(SRD_W, 4), s(S_T0)))
    A("s_lshl_b32 %s, s2, 7" % s(S_T0))
    A("v_mov_b32 v48, 0")
    A("s_mov_b64 exec, 1")
    for i in range(8):
        A("buffer_store_dwordx4 %s, v48, %s, %s offen offset:%d" % (v(16 + 4 * i, 4), s(SRD_W, 4), s(S_T0), 16 * i))
A("s_endpgm")

for (par, N) in sorted({(u & 1, N) for (u, N) in needE}):
    A.label("L_es%d_%d" % (N, par))
    for q2 in range(1, N):
        for db in range(8): A(pv_mfma(S_BUF[1 - par], q2, db))
    A("s_branch L_slow")
A.label("L_slow")
A("s_waitcnt vmcnt(8) lgkmcnt(0)")
A("s_nop 7")
for q2 in range(4): A.ext(norm_q2(q2))
A("s_cmp_eq_u32 %s, 0" % s(S_FB))
A("s_cbranch_scc0 L_sstore")
A("s_mov_b64 %s, 0" % s(S_BAD, 2))
for q2 in range(4):
    if q2 >= 1:
        A("s_cmp_le_u32 %s, %d" % (s(S_NQ), q2)); A("s_cbranch_scc1 L_sdec")
    for k in range(4): A(readback(4 * q2 + k, 16 + 4 * k))
    A("v_cmp_ngt_f32 vcc, 0x71800000, %s" % v(V_T + q2))
    A("v_mov_b32 %s, 0" % v(V_U))
    A("s_nop 0")
    A("s_or_b64 %s, %s, vcc" % (s(S_BAD, 2), s(S_BAD, 2)))
    A("s_waitcnt lgkmcnt(0)")
    for k in range(8): A("v_pk_maximum3_f16 %s, %s, %s, %s" % (v(V_U), v(V_U), v(16 + 2 * k), v(17 + 2 * k)))
    A("v_and_b32 %s, 0x7c00, %s" % (v(V_U + 1), v(V_U)))
    A("v_and_b32 %s, 0x7c000000, %s" % (v(V_U + 2), v(V_U)))
    for c_ in ("v_cmp_eq_u32 vcc, 0x7c00, %s" % v(V_U + 1), "v_cmp_eq_u32 vcc, 0x7c000000, %s" % v(V_U + 2)):
        A(c_); A("s_nop 1"); A("s_or_b64 %s, %s, vcc" % (s(S_BAD, 2), s(S_BAD, 2)))
A.label("L_sdec")
A("s_cmp_lg_u64 %s, 0" % s(S_BAD, 2))
A("s_cbranch_scc1 L_fb")
A.label("L_sstore")
A(smov(S_T2, S_QOFF))
for q2 in range(4):
    if q2 >= 1:
        A("s_cmp_le_u32 %s, %d" % (s(S_NQ), q2)); A("s_cbranch_scc1 L_sret")
    for k in range(4): A(readback(4 * q2 + k, 16 + 16 * q2 + 4 * k))
    for k in range(4): A.ext(store(16 + 16 * q2 + 4 * k, 3 - k))
A.label("L_sret")
for g in range(8): A.ext(ps_mfmas(g))
A("s_nop 15")
for g in range(8):
    A.ext(ps_cvts(g)); A(ozero(g))
for u in range(3):
    A("s_cmp_eq_u32 %s, %d" % (s(S_PH), u)); A("s_cbranch_scc1 L_adv%d" % u)
A("s_branch L_adv3")
A.label("L_fb")
A("s_mov_b32 %s, 1" % s(S_FB))
FV, FKO, FVO = 48, 49, 50
S_FOFF, S_FCNT = S_L, S_CNT
A("s_sub_u32 %s, %s, %d" % (s(S_T0), s(S_PRIV), HALF))
A("v_add_u32 %s, %s, %s" % (v(FV), s(S_T0), v(V_VA)))
A("s_lshl_b32 %s, %s, 14" % (s(S_T0), s(S_W)))
A("v_subrev_u32 %s, %s, %s" % (v(FKO), s(S_T0), v(V_KVO)))
A("s_lshl_b32 %s, %s, 12" % (s(S_T0), s(S_W)))
A("v_subrev_u32 %s, %s, %s" % (v(FVO), s(S_T0), v(V_VVO)))
A(smov(SRD_F + 2, S_NR))
def fb_load(A, vo, ptr, step):
    A(smov2(SRD_F, ptr)); A(smov(S_T4, S_FOFF))
    for n in range(8):
        A(m0(n * PS, S_PRIV))
        A(sadd(S_T4, S_T4, step) if n else "s_nop 0")
        A(dma(vo, SRD_F, S_T4))
    A("s_waitcnt vmcnt(0)")
def fb_qk(A, tag):
    A("s_cmp_eq_u32 %s, 1" % s(S_FCNT)); A("s_cbranch_scc0 L_fbnm%s" % tag)
    A.ext(mask_ops())
    A.label("L_fbnm%s" % tag)
    fb_load(A, FKO, P_K, 16384)
    for f in range(8): A(k_read(f, 0, V_QA0, a(A_VF + 4 * f, 4)))
    A("s_waitcnt lgkmcnt(0)")
    for i in range(32): A(qk_mfma(S_BUF[0], i, False, A_VF))
    A("s_nop 15")
for i in range(32): A("v_mov_b32 %s, 0" % v(CI + i))
for q in range(4): A("v_mov_b32 %s, 0xff800000" % v(V_T + q))
for g in range(8): A(ozero(g))
A(lzero())
A(smov(S_FOFF, S_KBASE)); A(smov(S_FCNT, S_N))
A.label("L_fb1")
fb_qk(A, "1")
A.ext(rowmax(S_BUF[0], 4, False))
A(sadd(S_FOFF, S_FOFF, BLK))
A("s_sub_u32 %s, %s, 1" % (s(S_FCNT), s(S_FCNT))); A("s_cmp_eq_u32 %s, 0" % s(S_FCNT)); A("s_cbranch_scc0 L_fb1")
A.ext(crossmax(4))
for i in range(32): A("v_sub_f32 %s, 0, %s" % (v(CI + i), v(V_T + (i >> 3))))
A(smov(S_FOFF, S_KBASE)); A(smov(S_FCNT, S_N))
A.label("L_fb2")
fb_qk(A, "2")
A.ext(flat_sm([op for p, op in softmax_ops(S_BUF[0], 4)]))
fb_load(A, FVO, P_V, 4096)
for db in range(8):
    A(v_read(db, 0, 0, FV)); A(v_read(db, 1, 0, FV))
A("s_waitcnt lgkmcnt(0)")
for q2 in range(4):
    for db in range(8): A(pv_mfma(S_BUF[0], q2, db))
    A(sum_mfma(S_BUF[0], q2))
A("s_nop 15")
A(sadd(S_FOFF, S_FOFF, BLK))
A("s_sub_u32 %s, %s, 1" % (s(S_FCNT), s(S_FCNT))); A("s_cmp_eq_u32 %s, 0" % s(S_FCNT)); A("s_cbranch_scc0 L_fb2")
A.ext(lfinal(4, True))
A("s_branch L_slow")
A.label("L_end")
A("s_endpgm")

errs = check_hazards(A.lines)
for e in errs: print(e, file=sys.stderr)
if errs and not opt("force"): sys.exit(1)

hdr = open("standalone__varlen_attn_packed__ragged.s.ref").read().split("\n")
hdr = [l for l in hdr[:10] if l.startswith(";") and "@launch" not in l]
out = "\n".join(hdr) + "\n; @launch grid=(%d,1,1) block=(256,1,1) lds=%d\n" % (GRID, LDS)
out += '.amdgcn_target "amdgcn-amd-amdhsa--gfx950"\n.text\n.globl %s\n.p2align 8\n.type %s,@function\n' % (NAME, NAME)
out += A.text()
out += ".p2align 6\n.type L_table,@object\nL_table:\n"
for j, ent in enumerate(table):
    w = [t[0] | (t[1] << 13) | (t[2] << 23) | (t[3] << 27) | (t[4] << 30) for t in ent] + [0] * (4 - len(ent))
    out += ".long " + ", ".join("0x%08x" % x for x in w) + "\n"
out += """.section .rodata,"a"
.p2align 6
.amdhsa_kernel %s
  .amdhsa_next_free_vgpr 512
  .amdhsa_next_free_sgpr 102
  .amdhsa_accum_offset 256
  .amdhsa_group_segment_fixed_size 0
  .amdhsa_kernarg_size 56
  .amdhsa_user_sgpr_count 2
  .amdhsa_user_sgpr_kernarg_segment_ptr 1
  .amdhsa_system_sgpr_workgroup_id_x 1
.end_amdhsa_kernel
""" % NAME
sys.stdout.write(out)
```

```python
import sys, struct, math
from asmlib import Asm, check_hazards
import schedA

def opt(x): return ("--" + x) in sys.argv
def optv(x, d):
    for a_ in reversed(sys.argv):
        if a_.startswith("--" + x + "="): return a_.split("=")[1]
    return d
DEF = {("sm", 1): "11", ("dw", 1): "0,9", ("vend", 1): "-1", ("kend", 1): "4",
       ("kendx", 3): "8", ("radx", 3): "1", ("dwx", 4): "20,48", ("vendx", 4): "-1", ("kbegx", 4): "7", ("radx", 4): "2", ("saluxx", 4): "0", ("abx", 4): "20", ("aex", 4): "10",
       ("dwx", 2): "8,20", ("vendx", 2): "-1", ("kendx", 2): "5",
       ("dw", 4): "26,48", ("vend", 4): "-1", ("kbeg", 4): "7", ("rad", 4): "2", ("salux", 4): "0", ("kend", 3): "8", ("kend", 2): "5", ("sm", 3): "28", ("dw", 3): "6,20", ("rad", 3): "1", ("tp", 3): "7,5,5,3,3", ("vend", 3): "2",
       ("sm", 2): "19", ("dw", 2): "11,24", ("vend", 2): "0", ("salux", 2): "1"}
def optn(x, N, d): return optv("%s%d" % (x, N), optv(x, DEF.get((x, N), d)))
STAMPS = opt("stamps"); TL = opt("tl")
NAME = "standalone__varlen_attn_packed__ragged_kernel"
HALF = 8704; PS = 1056; SZ = 2 * HALF
PRIV = 4 * SZ
LDS = 8 * SZ
BLK = 32 * 4096
GRID = 256
plan0 = getattr(schedA, optv("plan", "PD1"))
late = [len(b[0]) > 2 and b[0][2] for b in plan0]
plan = [[x[:2] for x in b] for b in plan0]
table = schedA.build(plan, not opt("nocheck"))
STMOD = " " + optv("stmod", "sc0+sc1").replace("+", " ")
needP, needE, needN, needF, needE3 = set(), set(), set(), set(), set()
for bin_ in plan:
    assert len(bin_) <= 2
    for x, y in zip(bin_, bin_[1:]): assert x[0] >= 3 + 4 * y[1], bin_
for bin_ in plan:
    ph = 0
    for ti, (n, N) in enumerate(bin_):
        if ti: needP.add((ph, N))
        else: needF.add(N)
        needN.add((N, ti + 1 < len(bin_)))
        ph = (ph + n) & 3
        needE.add((ph, N))
        needE3.add((ph, N, bin_[ti + 1][1] if ti + 1 < len(bin_) else 0))

V_KA0, V_KA1, V_VA, V_KVO, V_KVO2, V_VVO, V_VVO2, V_G4, V_QA0, V_QA1, V_EW, V_ER, V_SO, V_T4, V_T5 = range(1, 16)
V_TL = 0
S_BUF = [16, 48]
CI = 80
V_T = 112
V_U = 116
V_I = 120
V_Z = 124
V_IDX, V_SG, V_SA = V_T5, 109, 110
O = 128
A_Q, A_QR, A_KF, A_VF, A_PS, A_LS, A_ONE, A_ONM = 0, 64, 128, 160, 192, 208, 224, 232
SRD_F, SRD_K, SRD_V, SRD_O, SRD_W = 4, 8, 12, 16, 20
(S_KOFF, S_VOFF, S_WBASE, S_CNT, S_HT, S_PRIV, S_QOFF, S_NV, S_N, S_L, S_T0, S_T1, S_T2, S_T3,
 S_KBASE, S_NR, S_PH, S_HOFF, S_FB, S_TI) = range(28, 48)
S_ST = 48
P_Q, P_K, P_V, P_O = 64, 66, 68, 70
S_TASK = 80
S_BAD = 84
S_T4, S_W, S_NQ, S_NKB, S_NNR, S_NQB, S_NNQ, S_C, S_QM, S_QME, S_BLK = 86, 87, 88, 89, 90, 91, 93, 98, 99, 100, 101
S_T4E = 96

def v(i, n=1): return "v%d" % i if n == 1 else "v[%d:%d]" % (i, i + n - 1)
def a(i, n=1): return "a%d" % i if n == 1 else "a[%d:%d]" % (i, i + n - 1)
def s(i, n=1): return "s%d" % i if n == 1 else "s[%d:%d]" % (i, i + n - 1)
M16 = "v_mfma_f32_16x16x32_bf16"; M32 = "v_mfma_f32_32x32x16_bf16"

def qk_mfma(buf, i, raw=False, kf=A_KF):
    q2, kb, st = i >> 3, (i >> 2) & 1, i & 3
    d = v(buf + 8 * q2 + 4 * kb, 4)
    c = d if st else ("0" if raw else v(CI + (8 * q2 + 4 * kb if kf != A_KF else 4 * q2), 4))
    return "%s %s, %s, %s, %s" % (M16, d, a(kf + 4 * (4 * kb + st), 4), a((A_QR if raw else A_Q) + 16 * q2 + 4 * st, 4), c)
def preg(buf, q2): return buf + 8 * q2 - (4 if q2 & 1 else 0)
def GAPS(N): return 16 * N + (N + 1) // 2
def oreg(q2, db): return O + 32 * q2 + 4 * db
def pv_mfma(buf, q2, db):
    d = v(oreg(q2, db), 4)
    return "%s %s, %s, %s, %s" % (M16, d, a(A_VF + 4 * db, 4), v(preg(buf, q2), 4), d)
def sum_mfma(buf, q2, one=None, slot=None):
    d = a(A_LS + 4 * (q2 if slot is None else slot), 4)
    return "%s %s, %s, %s, %s" % (M16, d, a(A_ONE if one is None else one, 4), v(preg(buf, q2), 4), d)
def sums_after(buf, N, q2, one=A_ONE):
    if q2 & 1: return ["v_smfmac_f32_16x16x64_bf16 %s, %s, %s, %s" % (a(A_LS + 4 * (q2 >> 1), 4), a(one + 4, 4), v(buf + 8 * (q2 - 1), 8), v(V_IDX))]
    if q2 == N - 1: return [sum_mfma(buf, q2, one, q2 >> 1)]
    return []
def onm_ops(t=0):
    o = ["s_bfe_u32 %s, %s, 0xa000d" % (s(S_T2), s(S_TASK + t)), sadd(S_T2, S_T2, 31), "s_and_b32 %s, %s, 31" % (s(S_T2), s(S_T2)), sadd(S_T2, S_T2, 1),
         "v_mov_b32 %s, 0x3f80" % v(V_I + 1), "v_mov_b32 %s, 0x3f803f80" % v(V_I + 2)]
    for sp in range(2):
        o.append("v_sub_u32 %s, %s, %s" % (v(V_I), s(S_T2), v(V_SG if sp else V_G4)))
        for r in range(4):
            k = (16 * (r & 1) + 4 * (r >> 1)) if sp else (16 * (r >> 1) + 2 * (r & 1))
            o += ["v_cmp_lt_i32 vcc, %d, %s" % (k, v(V_I)), "v_cmp_lt_i32 %s, %d, %s" % (s(S_T0, 2), k + 1, v(V_I)), "s_nop 0",
                  "v_cndmask_b32 %s, 0, %s, vcc" % (v(V_I + 3), v(V_I + 1)),
                  "v_cndmask_b32 %s, %s, %s, %s" % (v(V_I + 3), v(V_I + 3), v(V_I + 2), s(S_T0, 2))]
            if sp: o.append("v_and_b32 %s, %s, %s" % (v(V_I + 3), v(V_I + 3), v(V_SA)))
            o.append("v_accvgpr_write_b32 %s, %s" % (a(A_ONM + 8 * t + 4 * sp + r), v(V_I + 3)))
    return o
def k_read(f, base, areg=V_KA0, dst=None):
    kb, st = f >> 2, f & 3
    return "ds_read_b128 %s, %s offset:%d" % (dst or a(A_KF + 4 * f, 4), v(areg + (st >> 1)), base + 4 * PS * kb + 64 * (st & 1))
def v_read(db, j, base, areg=V_VA):
    return "ds_read_b64_tr_b16 %s, %s offset:%d" % (a(A_VF + 4 * db + 2 * j, 2), v(areg), base + 512 * j + 32 * db)
def q_reads(n=4):
    return [k_read(f, 0, V_QA0, a(A_QR + 4 * f, 4)) for f in range(4 * n)]

def sm_start(N): return int(optn("sm", N, "15"))
def opq(op, buf): return (int(op.split()[-1].strip("v,")) - buf) >> 3
def softmax_ops(buf, N):
    ops = []
    st = sm_start(N)
    G = GAPS(N)
    for e in range(8 * N):
        p = st + (e * G // (8 * N) if N > 1 else e * 3 // 2)
        ops.append((p, 0, "v_exp_f32 %s, %s" % (v(buf + e), v(buf + e))))
        if e & 1:
            pc = p + int(optn("cd", N, "1"))
            if optn("cvt2", N, "0") == "1" and (e & 3) == 1: pc += 4
            ops.append((pc, 1 + (e & 2), "v_cvt_pk_bf16_f32 %s, %s, %s" % (v(preg(buf, e >> 3) + ((e & 7) >> 1)), v(buf + e - 1), v(buf + e))))
    for p, _, op in ops:
        q = opq(op, buf)
        assert 8 * q + 8 <= p < G + 8 * N + 8 * q - 1, (N, p, op)
    ops.sort()
    cv = [o for o in ops if o[1]]
    assert all(opq(x[2], buf) <= opq(y[2], buf) for x, y in zip(cv, cv[1:]))
    return [(o[0], o[2]) for o in ops]
def flat_sm(ops):
    out = []
    pend = []
    for op in ops:
        if op.startswith("v_cvt"):
            pend.append(op)
        else:
            out.append(op)
            out += pend; pend = []
    if pend: out += ["s_nop 0"] + pend
    return out

def dma(vo, srd, so): return "buffer_load_dwordx4 %s, %s, %s offen lds" % (v(vo), s(srd, 4), s(so))
def m0(off, base=None): return "s_add_u32 m0, %s, %d" % (s(S_WBASE if base is None else base), off)
def sadd(d, x, imm): return "s_add_u32 %s, %s, %d" % (s(d), s(x), imm)
def smov(d, x): return "s_mov_b32 %s, %s" % (s(d), s(x))
def smov2(d, x): return "s_mov_b64 %s, %s" % (s(d, 2), s(x, 2))
def stream_groups(slot):
    b = slot * SZ
    return [[m0(b)], [dma(V_KVO, SRD_K, S_KOFF)], [m0(b + 4 * PS)], [dma(V_KVO2, SRD_K, S_KOFF)],
            [m0(b + HALF)], [dma(V_VVO, SRD_V, S_VOFF)], [m0(b + HALF + 4 * PS)], [dma(V_VVO2, SRD_V, S_VOFF)],
            ["s_add_u32 %s, %s, %s" % (s(S_KOFF), s(S_KOFF), s(S_BLK))], ["s_add_u32 %s, %s, %s" % (s(S_VOFF), s(S_VOFF), s(S_BLK))]]
def stream_flat(slot):
    out = []
    for g in stream_groups(slot):
        out += g
        if " m0," in g[0]: out.append("s_nop 0")
    return out
def kblock_flat(ldsoff):
    return [m0(ldsoff), "s_nop 0", dma(V_KVO, SRD_K, S_KOFF), m0(ldsoff + 4 * PS), "s_nop 0", dma(V_KVO2, SRD_K, S_KOFF), sadd(S_KOFF, S_KOFF, BLK)]
def qgroup(g):
    out = []
    for n in range(4 * g, 4 * g + 4):
        out += [m0(n * PS, S_PRIV), "s_nop 0", dma(V_KVO, SRD_F, S_T4), sadd(S_T4, S_T4, 16384)]
    return out

COST = {"ds_read_b128": 12, "ds_read_b64_tr_b16": 8, "buffer_load_dwordx4": 12, "v_exp_f32": 8}
def cost(op): return COST.get(op.split()[0], 4)

def aux_ops():
    return ["s_mov_b32 m0, %s" % s(S_QM), dma(V_KVO, SRD_F, S_T4),
            sadd(S_QM, S_QM, PS), "s_min_u32 %s, %s, %s" % (s(S_QM), s(S_QM), s(S_QME)),
            sadd(S_T4, S_T4, 16384), "s_min_u32 %s, %s, %s" % (s(S_T4), s(S_T4), s(S_T4E))]
def iteration(A, u, N, aux=False):
    nxt, cur = S_BUF[u & 1], S_BUF[1 - (u & 1)]
    opta = (lambda x, n_, d: optn(x + 'x', n_, optn(x, n_, d))) if aux else optn
    G = GAPS(N)
    ms = [qk_mfma(nxt, i) for i in range(8 * N)]
    for q2 in range(N):
        ms += [pv_mfma(cur, q2, db) for db in range(8)] + sums_after(cur, N, q2)
    if opt("pvord"):
        ms = ms[:8 * N] + [pv_mfma(cur, q2, db) for db in range(8) for q2 in range(N)] + sum((sums_after(cur, N, q) for q in range(N)), [])
    if opt("pvord2"):
        ms = ms[:8 * N] + [pv_mfma(cur, 2 * h + q2, db) for h in range(N // 2) for db in range(8) for q2 in range(2)] + sum((sums_after(cur, N, q) for q in range(N)), [])
    if opt("qkord"):
        ms = [qk_mfma(nxt, 16 * h + 8 * q2 + f) for h in range(N // 2) for f in range(8) for q2 in range(2)] + ms[8 * N:]
    if opt("qkord2"):
        ms = [qk_mfma(nxt, 8 * q2 + 4 * kb + st) for q2 in range(N) for st in range(4) for kb in range(2)] + ms[8 * N:]
    va = [[] for _ in range(G)]; nv = [[] for _ in range(G)]
    for p, op in softmax_ops(cur, N):
        if p >= G: va[p - G].append(op)
    for p, op in softmax_ops(nxt, N):
        if p < G: va[p].append(op)
    RAD = int(opta('rad', N, '1'))
    load = lambda g: sum(map(cost, va[g] + nv[g]))
    def place(items, lo, hi, strict=False):
        last = lo - (1 if strict else 0)
        pos = []
        for i, it in enumerate(items):
            t = lo + (i + 0.5) * (hi - lo + 1) / len(items)
            mn = last + (1 if strict else 0)
            mx = hi - ((len(items) - 1 - i) if strict else 0)
            cand = [g for g in range(int(t) - RAD, int(t) + RAD + 1) if mn <= g <= mx] or [min(max(int(t), mn), mx)]
            if it.startswith("s_") and opta("salux", N, "0") == "1":
                g = min(cand, key=lambda g: (len(nv[g]) > 0, not any("exp" in x for x in va[g]), abs(g + 0.5 - t)))
            else:
                g = min(cand, key=lambda g: (load(g), abs(g + 0.5 - t)))
            nv[g].append(it); last = g; pos.append(g)
        return pos
    H = 8 * N
    vpos = place([v_read(i >> 1, i & 1, u * SZ) for i in range(16)], int(opta('vbeg', N, '0')), H + int(opta('vend', N, '-1' if N == 2 else '-3')))
    kpos = place([k_read(f, u * SZ) for f in range(8)], max(H + int(opta('kbeg', N, '0')), vpos[-1]), G - int(opta('kend', N, '7')))
    sg = stream_groups((u + 3) % 4)
    dlo, dhi = [int(x) for x in opta("dw", N, {1: "0,9", 2: "1,15", 3: "24,43", 4: "33,56"}[N]).split(",")]
    ax = aux_ops() if aux else []
    dpos = place(ax[:2] + [g[0] for g in sg[:8]], dlo, dhi, True)
    if aux: place(ax[2:], max(dpos[1] + 1, int(opta('ab', N, '0'))), G - int(opta('ae', N, '8')), True)
    tailp = [int(x) for x in opta("tp", N, "6,5,4,3,2").split(",")]
    nv[G - tailp[0]] += sg[8]; nv[G - tailp[1]] += sg[9]
    nv[G - tailp[2]].append("s_sub_u32 %s, %s, 1" % (s(S_CNT), s(S_CNT)))
    nv[G - tailp[3]].append("s_cmp_le_u32 %s, %s" % (s(S_CNT), s(S_HT)))
    if TL: nv[G - tailp[4]].append("s_memrealtime s[94:95]" if opt("tlrt") else "s_memtime s[94:95]")
    nv[G - tailp[4]].append("s_waitcnt vmcnt(%d) lgkmcnt(0)" % (10 if aux else 8))
    assert dhi < G - tailp[0] and kpos[-1] < G - tailp[4]
    covered = -1
    for g in range(G):
        if H <= g < H + 8 and g - H > covered:
            db = g - H
            while db + 1 < 8 and vpos[2 * db + 3] <= g - int(opta("wd", N, "4")): db += 1
            covered = db
            assert vpos[2 * db + 1] < g
            younger = sum(1 for p in vpos[2 * db + 2:] if p < g) + sum(1 for p in kpos if p < g)
            A("s_waitcnt lgkmcnt(%d)" % younger)
        A(ms[g]); A.ext(nv[g]); A.ext(va[g])

def mask_ops(N=4):
    o = ["v_sub_u32 %s, %s, %s" % (v(V_U), s(S_NV), v(V_G4)), "v_mov_b32 %s, 0xff800000" % v(V_U + 1)]
    prs = ["vcc", s(S_T0, 2)]
    for r in range(8 + 1):
        if r < 8: o.append("v_cmp_lt_i32 %s, %d, %s" % (prs[r % 2], 16 * (r >> 2) + (r & 3), v(V_U)))
        if r == 0: o.append("s_nop 0")
        if r >= 1:
            for q2 in range(N):
                x = CI + 8 * q2 + r - 1
                o.append("v_cndmask_b32 %s, %s, %s, %s" % (v(x), v(V_U + 1), v(x), prs[(r - 1) % 2]))
    o.append("s_nop 1")
    return o
def rowmax(b, N, first):
    o = []
    if first:
        for q2 in range(N): o.append("v_max3_f32 %s, %s, %s, %s" % (v(V_T + q2), v(b + 8 * q2), v(b + 8 * q2 + 1), v(b + 8 * q2 + 2)))
        for i in (3, 5):
            for q2 in range(N): o.append("v_max3_f32 %s, %s, %s, %s" % (v(V_T + q2), v(V_T + q2), v(b + 8 * q2 + i), v(b + 8 * q2 + i + 1)))
        for q2 in range(N): o.append("v_max_f32 %s, %s, %s" % (v(V_T + q2), v(V_T + q2), v(b + 8 * q2 + 7)))
    else:
        for i in range(0, 8, 2):
            for q2 in range(N): o.append("v_max3_f32 %s, %s, %s, %s" % (v(V_T + q2), v(V_T + q2), v(b + 8 * q2 + i), v(b + 8 * q2 + i + 1)))
    return o
def crossmax(N):
    o = []
    for w in (32, 16):
        o += ["v_mov_b32 %s, %s" % (v(V_U + q), v(V_T + q)) for q in range(N)] + (["s_nop 0"] if N == 2 else [])
        o += ["v_permlane%d_swap_b32 %s, %s" % (w, v(V_T + q), v(V_U + q)) for q in range(N)]
        o += ["v_max_f32 %s, %s, %s" % (v(V_T + q), v(V_T + q), v(V_U + q)) for q in range(N)]
    return o
def ps_mfmas(g):
    d = v(O + 16 * g, 16)
    return ["%s %s, %s, %s, %s" % (M32, d, a(A_PS + m, 4), a(A_QR + 8 * g + 4 * fr, 4), "0" if k == 0 else d) for k, (m, fr) in enumerate(((0, 0), (4, 1), (8, 0), (12, 1)))]
def ps_cvts(g):
    b = O + 16 * g
    o = ["v_cvt_pk_bf16_f32 %s, %s, %s" % (v(b + i), v(b + 2 * i), v(b + 2 * i + 1)) for i in range(8)]
    o += ["v_accvgpr_write_b32 %s, %s" % (a(A_Q + 8 * g + i), v(b + i)) for i in range(8)]
    return o
def ozero(g): return "%s %s, %s, %s, 0" % (M32, v(O + 16 * g, 16), v(V_Z, 4), v(V_Z, 4))
def lzero(): return "%s %s, %s, %s, 0" % (M32, a(A_LS, 16), v(V_Z, 4), v(V_Z, 4))

nst = [0]
def stamp(A, idx, first_only=False):
    if STAMPS:
        if first_only:
            nst[0] += 1
            A("s_cmp_eq_u32 %s, 0" % s(S_TI)); A("s_cbranch_scc0 L_st%d" % nst[0])
        A("s_memtime %s" % s(S_ST + 2 * idx, 2))
        if first_only: A.label("L_st%d" % nst[0])
def tl_pre(A):
    if TL: A("s_memrealtime s[94:95]" if opt("tlrt") else "s_memtime s[94:95]")
def tl_post(A):
    if TL:
        A("s_mov_b32 m0, s92"); A("s_add_u32 s92, s92, 1"); A("v_writelane_b32 %s, s94, m0" % v(V_TL))
def tl(A):
    if TL:
        tl_pre(A); A("s_waitcnt lgkmcnt(0)"); tl_post(A)

def decode(word):
    return ["s_and_b32 %s, %s, 0x1fff" % (s(S_T0), s(word)),
            "s_bfe_u32 %s, %s, 0xa000d" % (s(S_T1), s(word)),
            "s_add_u32 %s, %s, %s" % (s(S_T1), s(S_T0), s(S_T1)),
            "s_lshl_b32 %s, %s, 12" % (s(S_NNR), s(S_T1)),
            "s_bfe_u32 %s, %s, 0x1001e" % (s(S_T1), s(word)),
            "s_lshl_b32 %s, %s, 8" % (s(S_T1), s(S_T1)),
            "s_add_u32 %s, %s, %s" % (s(S_T1), s(S_T1), s(S_HOFF)),
            "s_lshl_b32 %s, %s, 12" % (s(S_NKB), s(S_T0)),
            "s_add_u32 %s, %s, %s" % (s(S_NKB), s(S_NKB), s(S_T1)),
            "s_bfe_u32 %s, %s, 0x3001b" % (s(S_NNQ), s(word)),
            "s_bfe_u32 %s, %s, 0x40017" % (s(S_T1), s(word)),
            "s_lshl_b32 %s, %s, 2" % (s(S_T1), s(S_T1)),
            "s_mul_i32 %s, %s, %s" % (s(S_T0), s(S_W), s(S_NNQ)),
            "s_add_u32 %s, %s, %s" % (s(S_T1), s(S_T1), s(S_T0)),
            "s_lshl_b32 %s, %s, 16" % (s(S_NQB), s(S_T1)),
            "s_add_u32 %s, %s, %s" % (s(S_NQB), s(S_NQB), s(S_NKB)),
            "s_lshl_b32 %s, %s, 14" % (s(S_T0), s(S_W)),
            "s_sub_u32 %s, %s, %s" % (s(S_T4), s(S_NQB), s(S_T0)),
            smov2(SRD_F, P_Q), smov(SRD_F + 2, S_NNR)]
def task_setup(more=True):
    base = [smov(S_KBASE, S_NKB), smov(S_NR, S_NNR), smov(SRD_O + 2, S_NNR), smov(S_QOFF, S_NQB), smov(S_NQ, S_NNQ),
            "s_bfe_u32 %s, %s, 0xa000d" % (s(S_L), s(S_TASK)),
            sadd(S_N, S_L, 31), "s_lshr_b32 %s, %s, 5" % (s(S_N), s(S_N)),
            "s_sub_u32 %s, %s, 1" % (s(S_CNT), s(S_N)),
            "s_lshl_b32 %s, %s, 5" % (s(S_T1), s(S_CNT)),
            "s_sub_u32 %s, %s, %s" % (s(S_NV), s(S_L), s(S_T1)),
            "s_mov_b32 %s, 0" % s(S_FB),
            smov(S_QM, S_PRIV)]
    if not more: return base + ["s_mov_b32 %s, %d" % (s(S_HT), 0 if opt("norwl") else 4), "s_mov_b32 %s, 0" % s(S_NNQ), "s_mov_b32 %s, 0" % s(S_NNR)]
    return base + decode(S_TASK + 1) + ["s_cmp_eq_u32 %s, 0" % s(S_NNR), "s_cselect_b32 %s, %d, 4" % (s(S_HT), 0 if opt("norwl") else 4),
            "s_lshl_b32 %s, %s, 2" % (s(S_T0), s(S_NNQ)), "s_max_u32 %s, %s, 1" % (s(S_T0), s(S_T0)), "s_sub_u32 %s, %s, 1" % (s(S_T0), s(S_T0)),
            "s_mul_i32 %s, %s, %d" % (s(S_QME), s(S_T0), PS), "s_add_u32 %s, %s, %s" % (s(S_QME), s(S_QME), s(S_QM)),
            "s_lshl_b32 %s, %s, 14" % (s(S_T4E), s(S_T0)), "s_add_u32 %s, %s, %s" % (s(S_T4E), s(S_T4E), s(S_T4))]

A = Asm()
A.label(NAME)
A("s_cmp_ge_u32 s2, %d" % GRID)
A("s_cbranch_scc1 L_end")
if STAMPS: A("s_memrealtime s[26:27]")
stamp(A, 0)
A("s_getpc_b64 s[74:75]")
A.label("L_pc")
A("s_load_dwordx4 s[64:67], s[0:1], 0")
A("s_and_b32 s76, s2, 0xf8")
A("v_lshrrev_b32 %s, 3, v0" % v(V_T4))
A("v_lshl_add_u32 %s, s76, 2, %s" % (v(V_T4), v(V_T4)))
A("v_lshlrev_b32 %s, 7, %s" % (v(V_T4), v(V_T4)))
A("v_min_u32 %s, L_cold-L_pc, %s" % (v(V_T4), v(V_T4)))
A("global_load_dword %s, %s, s[74:75]" % (v(V_T4), v(V_T4)))
A("s_lshl_b32 s76, s76, 2")
A("s_add_u32 s76, s76, L_table-L_pc")
A("s_load_dwordx8 s[56:63], s[74:75], s76")
A("v_lshrrev_b32 %s, 6, v0" % v(V_U))
A("v_bfe_u32 v16, v0, 4, 2")
A("v_readfirstlane_b32 %s, %s" % (s(S_W), v(V_U)))
G, P16, R4, X0, X1, X2 = 16, 17, 18, 19, 20, 21
def fswz(dst, src, tmp):
    A("v_and_b32 %s, 2, %s" % (v(tmp), v(src)))
    A("v_and_b32 %s, 1, %s" % (v(dst), v(src)))
    A("v_lshl_add_u32 %s, %s, 2, %s" % (v(dst), v(tmp), v(dst)))
A("v_and_b32 %s, 15, v0" % v(P16))
A("v_mul_u32_u24 %s, 5, %s" % (v(X0), v(G)))
A("v_and_b32 %s, 9, %s" % (v(X0), v(X0)))
A("v_xor_b32 %s, %s, %s" % (v(X0), v(X0), v(P16)))
A("v_lshrrev_b32 %s, 4, v0" % v(X1))
A("v_lshlrev_b32 %s, 12, %s" % (v(X1), v(X1)))
A("v_lshl_add_u32 %s, %s, 4, %s" % (v(V_KVO), v(X0), v(X1)))
A("v_add_u32 %s, %d, %s" % (v(V_KVO2), 16 * 4096, v(V_KVO)))
A("s_mul_i32 %s, %s, %d" % (s(S_WBASE), s(S_W), PS))
A("s_mul_i32 %s, %s, %d" % (s(S_PRIV), s(S_W), SZ))
A(sadd(S_PRIV, S_PRIV, PRIV))
A("s_and_b32 %s, s2, 7" % s(S_HOFF))
A("s_lshl_b32 %s, %s, 9" % (s(S_HOFF), s(S_HOFF)))
A("s_mov_b32 %s, 0x20000" % s(SRD_K + 3))
A("s_mov_b32 %s, %s" % (s(SRD_F + 3), s(SRD_K + 3)))
A(m0(HALF))
if TL:
    A("s_mov_b32 s92, 0")
A("s_waitcnt lgkmcnt(0)")
A(smov2(SRD_K, P_K)); A(smov(SRD_K + 2, 61))
A("s_add_u32 %s, s60, %s" % (s(S_KOFF), s(S_HOFF)))
kb = kblock_flat(HALF) + kblock_flat(0)
A(kb[2])
A("s_load_dwordx2 s[68:69], s[0:1], 16")
A("s_load_dwordx2 s[70:71], s[0:1], 32")
if STAMPS: A("s_load_dwordx2 s[72:73], s[0:1], 48")
A(kb[3]); A(smov(S_NKB, S_KOFF)); A(kb[5]); A(kb[6])
A(kb[7]); A(smov2(SRD_F, P_Q)); A(kb[9])
A(kb[10]); A(smov(SRD_F + 2, 61)); A(kb[12]); A(kb[13])
A("s_mul_i32 %s, %s, s63" % (s(S_T4), s(S_W)))
A("s_add_u32 %s, %s, s62" % (s(S_T4), s(S_T4)))
A("s_add_u32 %s, %s, %s" % (s(S_T4), s(S_T4), s(S_HOFF)))
A("s_lshl_b32 %s, %s, 14" % (s(S_NQB), s(S_W)))
A("s_add_u32 %s, %s, %s" % (s(S_NQB), s(S_NQB), s(S_T4)))
A.ext(qgroup(0)); A.ext(qgroup(1))
A("s_mov_b64 %s, s[56:57]" % s(S_TASK, 2)); A("s_mov_b64 %s, s[58:59]" % s(S_TASK + 2, 2))
A(smov(S_NNR, 61)); A("s_bfe_u32 %s, s56, 0x3001b" % s(S_NNQ))
A(smov(S_VOFF, S_NKB)); A(smov(SRD_V + 2, 61))
A("s_mov_b32 %s, %d" % (s(S_BLK), BLK))
A("s_mov_b32 %s, 0" % s(S_TI))
for srd in (SRD_V, SRD_O): A("s_mov_b32 %s, 0x20000" % s(srd + 3))
A("v_and_b32 v22, 63, v0")
A("v_and_b32 %s, 3, v22" % v(R4))
A("v_lshl_add_u32 %s, %s, 3, %s" % (v(X1), v(G), s(S_W)))
A("v_lshlrev_b32 %s, 12, %s" % (v(X1), v(X1)))
A("v_lshl_add_u32 %s, %s, 4, %s" % (v(V_VVO), v(P16), v(X1)))
A("v_add_u32 %s, %d, %s" % (v(V_VVO2), 4 * 4096, v(V_VVO)))
if TL: A("v_mov_b32 %s, 0" % v(V_TL))
A("s_waitcnt lgkmcnt(0)")
A(smov2(SRD_V, P_V)); A(smov2(SRD_O, P_O))
if STAMPS:
    A("s_mov_b32 %s, s72" % s(SRD_W)); A("s_mov_b32 %s, s73" % s(SRD_W + 1))
    A("s_mov_b32 %s, 0x1000000" % s(SRD_W + 2)); A("s_mov_b32 %s, 0x20000" % s(SRD_W + 3))
if opt("tls"): tl(A)
fswz(X0, R4, X1)
A("v_xor_b32 %s, %s, %s" % (v(X0), v(X0), v(G)))
A("v_lshrrev_b32 %s, 2, %s" % (v(X2), v(P16)))
A("v_mul_u32_u24 %s, %d, %s" % (v(X1), PS, v(X2)))
A("v_lshl_add_u32 %s, %s, 8, %s" % (v(X1), v(R4), v(X1)))
A("v_lshl_add_u32 %s, %s, 4, %s" % (v(V_KA0), v(X0), v(X1)))
A("v_xor_b32 %s, 8, %s" % (v(X0), v(X0)))
A("v_lshl_add_u32 %s, %s, 4, %s" % (v(V_KA1), v(X0), v(X1)))
A("v_add_u32 %s, %s, %s" % (v(V_QA0), s(S_PRIV), v(V_KA0)))
A("v_add_u32 %s, %s, %s" % (v(V_QA1), s(S_PRIV), v(V_KA1)))
A("v_and_b32 %s, 1, %s" % (v(X0), v(G)))
A("v_lshl_add_u32 %s, %s, 2, %s" % (v(X0), v(X0), v(X2)))
A("v_mul_u32_u24 %s, %d, %s" % (v(X0), PS, v(X0)))
A("v_lshrrev_b32 %s, 1, %s" % (v(X1), v(G)))
A("v_lshl_add_u32 %s, %s, 8, %s" % (v(X0), v(X1), v(X0)))
A("v_lshl_add_u32 %s, %s, 3, %s" % (v(X0), v(R4), v(X0)))
A("v_add_u32 %s, %d, %s" % (v(V_VA), HALF, v(X0)))
A("v_mul_u32_u24 %s, 272, %s" % (v(X0), v(P16)))
A("v_lshl_add_u32 %s, %s, 3, %s" % (v(X0), v(G), v(X0)))
A("v_add_u32 %s, %s, %s" % (v(V_EW), s(S_PRIV), v(X0)))
A("v_mul_u32_u24 %s, 272, %s" % (v(X0), v(G)))
A("v_lshl_add_u32 %s, %s, 4, %s" % (v(X0), v(P16), v(X0)))
A("v_add_u32 %s, %s, %s" % (v(V_ER), s(S_PRIV), v(X0)))
A("v_lshlrev_b32 %s, 12, %s" % (v(X0), v(G)))
A("v_lshl_add_u32 %s, %s, 4, %s" % (v(V_SO), v(P16), v(X0)))
A("v_lshlrev_b32 %s, 2, %s" % (v(V_G4), v(G)))
A("v_bfe_u32 %s, v22, 1, 1" % v(X0))
A("v_lshrrev_b32 %s, 5, v22" % v(X1))
A("v_cmp_eq_u32 vcc, %s, %s" % (v(X0), v(X1)))
A("v_and_b32 %s, 1, v22" % v(X2))
A("v_bfe_u32 %s, v22, 4, 1" % v(X1))
A("v_cndmask_b32 %s, 0, -1, vcc" % v(V_SA))
A("v_lshlrev_b32 %s, 3, %s" % (v(X1), v(X1)))
A("v_lshl_add_u32 %s, %s, 1, %s" % (v(V_SG), v(X2), v(X1)))
A("v_mul_u32_u24 %s, 0xaaaa, %s" % (v(X2), v(X2)))
A("v_add_u32 %s, 0x4444, %s" % (v(V_IDX), v(X2)))
A("v_mov_b32 %s, 0x3f803f80" % v(X0))
A("v_and_b32 %s, %s, %s" % (v(X1), v(X0), v(V_SA)))
for i in range(4):
    A("v_accvgpr_write_b32 %s, %s" % (a(A_ONE + i), v(X0)))
    A("v_accvgpr_write_b32 %s, %s" % (a(A_ONE + 4 + i), v(X1)))
    A("v_mov_b32 %s, 0" % v(V_Z + i))
LN = 24
A("v_bfe_u32 %s, v22, 2, 1" % v(X0))
A("v_lshrrev_b32 %s, 5, v22" % v(X1))
A("v_xor_b32 %s, %s, %s" % (v(X0), v(X0), v(X1)))
A("v_bfe_u32 %s, v22, 3, 2" % v(X1))
A("v_bfe_u32 %s, v22, 1, 1" % v(X2))
A("v_lshl_add_u32 %s, %s, 1, %s" % (v(X1), v(X1), v(X2)))
A("v_lshl_add_u32 %s, %s, 4, %s" % (v(X1), v(X0), v(X1)))
A("v_and_b32 %s, 1, v22" % v(X2))
A("v_lshlrev_b32 %s, 4, %s" % (v(X2), v(X2)))
A("v_mov_b32 %s, 0x3e03" % v(LN + 1))
A("v_mov_b32 %s, 0xb9d8" % v(LN + 2))
A("v_lshlrev_b32 %s, %s, %s" % (v(LN + 1), v(X2), v(LN + 1)))
A("v_lshlrev_b32 %s, %s, %s" % (v(LN + 2), v(X2), v(LN + 2)))
for r in range(8):
    A("v_cmp_eq_u32 vcc, %d, %s" % (r, v(X1)))
    A("s_nop 1")
    A("v_cndmask_b32 %s, 0, %s, vcc" % (v(LN + 3), v(LN + 1)))
    A("v_cndmask_b32 %s, 0, %s, vcc" % (v(LN + 4), v(LN + 2)))
    A("v_accvgpr_write_b32 %s, %s" % (a(A_PS + r), v(LN + 3)))
    A("v_accvgpr_write_b32 %s, %s" % (a(A_PS + 8 + r), v(LN + 4)))
if opt("tls"): tl(A)
for g in (2, 3):
    A("s_cmp_le_u32 %s, %d" % (s(S_NNQ), g)); A("s_cbranch_scc1 L_qdone")
    A.ext(qgroup(g))
A.label("L_qdone")
if opt("tls"): tl(A)
A.ext(task_setup())
MAXT = max(len(x) for x in plan)
for t in range(MAXT): A.ext(onm_ops(t))
A(lzero())
Fs = sorted(needF)
for N in Fs[:-1]:
    A("s_cmp_eq_u32 %s, %d" % (s(S_NQ), N)); A("s_cbranch_scc1 L_f%d" % N)
def qnext_items():
    it = []
    for g in range(4):
        q = qgroup(g)
        for k in range(4):
            pre = []
            if g >= 2 and k == 0:
                pre = ["s_cmp_le_u32 %s, %d" % (s(S_NNQ), g), "s_cselect_b32 %s, 0, %s" % (s(SRD_F + 2), s(SRD_F + 2))]
            it.append(pre + [q[4 * k]]); it.append([q[4 * k + 2], q[4 * k + 3]])
    return it
def weave(va, items, first=0):
    out = []
    step = max(1, (len(va) - first) // (len(items) + 1))
    items = list(items)
    for i, l in enumerate(va):
        out.append(l)
        if i >= first and (i - first) % step == 0 and items: out += items.pop(0)
    assert not items
    return out
def pvalu(b, N, raw):
    va = rowmax(b, N, True) + crossmax(N)
    if raw: va += ["v_mul_f32 %s, %s, %s" % (v(V_T + q), s(S_C), v(V_T + q)) for q in range(N)]
    va += ["v_sub_f32 %s, 0, %s" % (v(CI + 8 * q), v(V_T + q)) for q in range(N)]
    for i in range(8 * N):
        if raw: va.append("v_fma_f32 %s, %s, %s, -%s" % (v(b + i), v(b + i), s(S_C), v(V_T + (i >> 3))))
        else: va.append("v_sub_f32 %s, %s, %s" % (v(b + i), v(b + i), v(V_T + (i >> 3))))
        if 1 <= (i & 7) < 4: va.append("v_mov_b32 %s, %s" % (v(CI + i), v(CI + (i & ~7))))
    va += flat_sm([op for p, op in softmax_ops(b, N) if p < GAPS(N)])
    return va
def pvalu_q(b, N, q):
    r = b + 8 * q; t = V_T + q; u_ = V_U + q
    va = ["v_max3_f32 %s, %s, %s, %s" % (v(t), v(r), v(r + 1), v(r + 2)), "v_max3_f32 %s, %s, %s, %s" % (v(u_), v(r + 3), v(r + 4), v(r + 5)),
          "v_max3_f32 %s, %s, %s, %s" % (v(t), v(t), v(r + 6), v(r + 7)), "v_max_f32 %s, %s, %s" % (v(t), v(t), v(u_))]
    for w in (32, 16):
        va += ["v_mov_b32 %s, %s" % (v(u_), v(t)), "s_nop 1", "v_permlane%d_swap_b32 %s, %s" % (w, v(t), v(u_)), "v_max_f32 %s, %s, %s" % (v(t), v(t), v(u_))]
    va += ["v_sub_f32 %s, %s, %s" % (v(r + i), v(r + i), v(t)) for i in range(8)]
    va += ["v_sub_f32 %s, 0, %s" % (v(CI + 4 * q + i), v(t)) for i in range(4)]
    va += flat_sm([op for p, op in softmax_ops(b, N) if p < GAPS(N) and opq(op, b) == q])
    return va
def qk0(b, i):
    m_ = qk_mfma(b, i)
    return m_[:m_.rindex(",")] + ", 0" if (i & 3) == 0 else m_
def under(A, mm, va):
    per = -(-len(va) // len(mm)) if va else 0
    for m_ in mm:
        A.ext(m_ if isinstance(m_, list) else [m_]); A.ext(va[:per]); va = va[per:]
def first(A, N):
    qr = q_reads()
    b = S_BUF[0]
    S1 = int(optv("s1at", "1"))
    st_ = {"issued": 0}
    def fetch(q):
        if q == max(0, N - S1):
            A.ext(stream_flat(1)); st_["issued"] = 4
        if opt("tls"): tl(A)
        A("s_waitcnt vmcnt(%d)" % (st_["issued"] + 4 * (N - 1 - q)))
        if opt("tls"): tl(A)
        A.ext(qr[4 * q:4 * q + 4])
        if q == N - 1:
            tl(A)
            stamp(A, 1, True)
    fetch(0)
    A("s_barrier")
    for f in range(8): A(k_read(f, HALF))
    for q in range(N):
        last = q == N - 1
        A("s_waitcnt lgkmcnt(%d)" % (8 if q == 0 else 0))
        sg = stream_groups(2) if last else [[]] * 10
        mm = ps_mfmas(2 * q) + ps_mfmas(2 * q + 1)
        va = pvalu_q(b, N, q - 1) if q else []
        A.ext(mm[:2]); A("s_nop 3")
        under(A, [[m_] + sg[i] for i, m_ in enumerate(mm[2:])], va)
        A.ext(sg[6] + ["s_nop 0"] + sg[7] + sg[8] + sg[9] + (["s_nop 6"] if q == 0 else []))
        A.ext(ps_cvts(2 * q)); A(ozero(2 * q))
        A.ext(ps_cvts(2 * q + 1)); A(ozero(2 * q + 1))
        A("s_waitcnt lgkmcnt(0)" if q == 0 else "s_nop 0")
        for i in range(8):
            A(qk0(b, 8 * q + i))
            if last: A(k_read(i, 0))
        if not last: fetch(q + 1)
    A("s_nop 6")
    A.ext(weave(pvalu_q(b, N, N - 1), [[x] for x in aux_ops()] + stream_groups(3)))
    tl_pre(A)
    A("s_waitcnt vmcnt(9) lgkmcnt(0)")
    if (N, True) in needN:
        A("s_cmp_lg_u32 %s, 0" % s(S_NNR))
        A("s_cbranch_scc1 L_itb%dx_1" % N)
    A("s_branch L_itb%d%s_1" % (N, "" if (N, False) in needN else "x"))
first(A, Fs[-1])
for N in Fs[:-1]:
    A.label("L_f%d" % N)
    first(A, N)
def dispatchP(A, u):
    Ns = sorted(N for (p, N) in needP if p == u)
    for N in Ns[:-1]:
        A("s_cmp_eq_u32 %s, %d" % (s(S_NQ), N)); A("s_cbranch_scc1 L_p%d_%d" % (N, u))
    A("s_branch L_p%d_%d" % (Ns[-1], u))

def pphase(A, u, N):
    b = S_BUF[u & 1]
    mv = ["v_accvgpr_mov_b32 %s, %s" % (a(A_ONM + i), a(A_ONM + 8 + i)) for i in range(8 * (MAXT - 1))]
    A.ext(mv)
    for i in range(8 * N): A(qk0(b, i))
    for f in range(8): A(k_read(f, u * SZ))
    A(lzero())
    for q in range(N): A.ext(pvalu_q(b, N, q))
    tl_pre(A)
    A("s_waitcnt lgkmcnt(0)")

for (N, aux) in sorted(needN, reverse=True):
    X = "%d%s" % (N, "x" if aux else "")
    A(".p2align 6")
    phase = int(optv("al", "1"))
    for _ in range(phase): A("s_nop 0")
    for u in (1, 2, 3, 0):
        A.label("L_itb%s_%d" % (X, u))
        tl_post(A)
        A("s_nop 0" if (opt("nobar") or (opt("bar2") and u & 1)) else "s_barrier")
        i0 = len(A.lines)
        iteration(A, u, N, aux)
        def isz(l):
            op = l.split()[0]
            if op.startswith(("v_mfma", "v_smfmac", "ds_", "buffer_", "v_cvt")): return 8
            if op == "s_add_u32" and l.split(",")[-1].strip().isdigit() and int(l.split(",")[-1]) > 64: return 8
            return 4
        phase = (phase + (8 + (20 if TL else 0) + sum(isz(l) for l in A.lines[i0:])) // 4) % 8
        k = {0: 1, 7: 2}.get(phase, 0)
        ex = [i for i in range(i0, len(A.lines)) if A.lines[i].startswith("v_exp_f32 ")]
        for j in range(k):
            i = ex[(2 * j + 1) * len(ex) // (2 * k)]
            A.lines[i] = A.lines[i].replace("v_exp_f32 ", "v_exp_f32_e64 ")
        phase = (phase + k) % 8
        if u != 0: A("s_cbranch_scc1 L_sp%s_%d" % (X, (u + 1) % 4))
        else: A("s_cbranch_scc0 L_itb%s_1" % X)
    for u in (1, 2, 3, 0):
        A.label("L_sp%s_%d" % (X, u))
        mine = [x for x in needE3 if x[:2] == (u, N) and (x[2] > 0) == aux]
        if mine:
            A("s_cmp_eq_u32 %s, 0" % s(S_CNT))
            A("s_cbranch_scc1 L_e%s_%d" % (X, u))
        if aux:
            A("s_cmp_eq_u32 %s, 2" % s(S_CNT))
            A("s_cbranch_scc1 L_sv%s_%d" % (X, u))
            A(smov(SRD_K + 2, S_NNR)); A(smov(S_KOFF, S_NKB))
        A("s_mov_b32 %s, %d" % (s(S_HT), 2 if aux else 0))
        if mine and not opt("norw"):
            A("s_mov_b32 %s, L_e%s_%d-L_pc" % (s(S_T0), X, u))
            if aux:
                for w_, lab in ((1, "L_e%s_%d-L_pc+8192" % (X, u)), (2, "L_e%s_%d-L_pc+16384" % (X, u))):
                    A("s_cmp_eq_u32 %s, %d" % (s(S_W), w_))
                    A("s_cselect_b32 %s, %s, %s" % (s(S_T0), lab, s(S_T0)))
            if aux:
                nxs = sorted({x[2] for x in mine})
                A("s_mov_b32 %s, L_itb%d_1-L_pc" % (s(S_T1), nxs[0]))
                for nx in nxs[1:]:
                    A("s_cmp_eq_u32 %s, %d" % (s(S_NNQ), nx))
                    A("s_cselect_b32 %s, L_itb%d_1-L_pc, %s" % (s(S_T1), nx, s(S_T1)))
                A("s_cmp_eq_u32 %s, 3" % s(S_W))
                A("s_cselect_b32 %s, %s, %s" % (s(S_T0), s(S_T1), s(S_T0)))
            A("v_mbcnt_lo_u32_b32 %s, -1, 0" % v(V_U))
            A("v_mbcnt_hi_u32_b32 %s, -1, %s" % (v(V_U), v(V_U)))
            A("v_lshl_add_u32 %s, %s, 7, %s" % (v(V_U), v(V_U), s(S_T0)))
            A("v_min_u32 %s, L_table-L_pc, %s" % (v(V_U), v(V_U)))
            A("global_load_dword %s, %s, s[74:75]" % (v(V_T4), v(V_U)))
        A("s_branch L_itb%s_%d" % (X, u))
        if aux:
            A.label("L_sv%s_%d" % (X, u))
            A(smov(SRD_V + 2, S_NNR)); A(smov(S_VOFF, S_NKB)); A("s_mov_b32 %s, 0" % s(S_HT))
            A("s_branch L_itb%s_%d" % (X, u))
A.label("L_late")

def norm_q2(q2):
    out = []
    for j in range(8 + 2):
        if j < 8:
            r = oreg(q2, j)
            out += ["v_mul_f32 %s, %s, %s" % (v(r + i), v(V_I + q2), v(r + i)) for i in range(4)]
        if 1 <= j < 9:
            r = oreg(q2, j - 1)
            out.append("v_cvt_pk_bf16_f32 %s, %s, %s" % (v(r), v(r), v(r + 1)))
            out.append("v_cvt_pk_bf16_f32 %s, %s, %s" % (v(r + 1), v(r + 2), v(r + 3)))
        if j >= 2:
            r = oreg(q2, j - 2)
            out.append("ds_write_b64 %s, %s offset:%d" % (v(V_EW), v(r, 2), 16 * 272 * q2 + 32 * (j - 2)))
    return out
def lfinal(N, dense=False):
    if dense: o = ["v_accvgpr_read_b32 %s, %s" % (v(V_T + q), a(A_LS + 4 * q)) for q in range(N)]
    else:
        o = ["v_accvgpr_read_b32 %s, %s" % (v(V_T + q), a(A_LS + 2 * q)) for q in range(N)]
        o += ["v_accvgpr_read_b32 %s, %s" % (v(V_U + q), a(A_LS + 2 * q + 1)) for q in range(N & ~1)]
        o += ["v_add_f32 %s, %s, %s" % (v(V_T + q), v(V_T + q), v(V_U + q)) for q in range(N & ~1)]
    for q in range(N):
        o += ["v_cmp_nge_f32 vcc, 0x44800000, %s" % v(V_T + q), "v_rcp_f32 %s, %s" % (v(V_I + q), v(V_T + q)), "s_nop 0",
              "s_mov_b64 %s, vcc" % s(S_BAD, 2) if q == 0 else "s_or_b64 %s, %s, vcc" % (s(S_BAD, 2), s(S_BAD, 2))]
    if N == 1: o.append("s_cmp_lg_u64 %s, 0" % s(S_BAD, 2))
    o += [smov(S_T2, S_QOFF)]
    return o
def readback(k, reg): return "ds_read_b128 %s, %s offset:%d" % (v(reg, 4), v(V_ER), 4 * 272 * k)
def store(reg, w):
    return ["s_waitcnt lgkmcnt(%s)" % w,
            "buffer_store_dwordx4 %s, %s, %s, %s offen%s" % (v(reg, 4), v(V_SO), s(SRD_O, 4), s(S_T2), STMOD),
            sadd(S_T2, S_T2, 16384)]
def psg(g, dst):
    d = v(dst, 16)
    mm = ["%s %s, %s, %s, %s" % (M32, d, a(A_PS + m, 4), a(A_QR + 8 * g + 4 * fr, 4), "0" if k == 0 else d) for k, (m, fr) in enumerate(((0, 0), (4, 1), (8, 0), (12, 1)))]
    cv = ["v_cvt_pk_bf16_f32 %s, %s, %s" % (v(dst + i), v(dst + 2 * i), v(dst + 2 * i + 1)) for i in range(8)]
    cv += ["v_accvgpr_write_b32 %s, %s" % (a(A_Q + 8 * g + i), v(dst + i)) for i in range(8)]
    return mm, cv
def ephase(A, u, N, NX):
    cur, nxt = S_BUF[1 - (u & 1)], S_BUF[u & 1]
    RB = [CI, CI + 16, CI, CI + 16]
    rd = []
    for db in range(8): rd += [v_read(db, 0, u * SZ), v_read(db, 1, u * SZ)]
    sm = flat_sm([op for p, op in softmax_ops(cur, N) if p >= GAPS(N)])
    lq = min([opq(op, cur) for op in sm if op.startswith("v_")] + [N])
    sums = sum((sums_after(cur, N, q, A_ONM) for q in range(lq)), [])
    while rd or sm:
        if sums: A(sums.pop(0))
        if rd: A(rd.pop(0))
        if sm: A(sm.pop(0))
    A("s_nop 1")
    for q in range(lq, N): A.ext(sums_after(cur, N, q, A_ONM))
    qn = q_reads(NX)
    sg = stream_groups((u + 3) % 4) if NX else [[]] * 10
    if opt("tlx"): tl(A)
    A("s_waitcnt lgkmcnt(8)")
    for db in range(4):
        A(pv_mfma(cur, 0, db)); A.ext(sg[db])
    A("s_waitcnt lgkmcnt(0)")
    for db in range(4, 8):
        A(pv_mfma(cur, 0, db)); A.ext(sg[db]); A.ext(qn[NX * (db - 4):NX * (db - 3)])
    A.ext(sg[8] + sg[9])
    if not NX: A("s_nop 1")
    A.ext(lfinal(N))
    A("s_cbranch_scc1 L_es%d_%d" % (N, u & 1))
    if NX: A("s_waitcnt vmcnt(8) lgkmcnt(0)")
    X = []
    ystart = 0
    for q2 in range(N):
        if opt("tlx"): X.append("#TL")
        nb = norm_q2(q2)
        pv = [pv_mfma(cur, q2 + 1, db) for db in range(8)] if q2 + 1 < N else []
        nw = 0; kst = 0
        for i, l in enumerate(nb):
            if i % int(optv('pvs', '4')) == 0 and pv: X.append(pv.pop(0))
            X.append(l)
            if l.startswith("ds_write"):
                nw += 1
                if q2 > 0 and kst < 4 and str(nw) in optv('stp', '1357'):
                    X += store(oreg(q2 - 1, 0) + 4 * kst, None); kst += 1
        for k in range(4): X.append(readback(4 * q2 + k, oreg(q2, 0) + 4 * k))
        if q2 == 0 and N == 4: ystart = len(X)
        if 1 <= q2 <= NX:
            X.append(ozero(2 * q2 - 2))
            if not (N == 4 and q2 == 1): X.append(ozero(2 * q2 - 1))
    Y = []
    zlast = []
    if NX:
        DS = [CI + 16, O + 32 * N if N < 4 else O + 16]
        P_ = [psg(g, DS[g & 1]) for g in range(2 * NX)]
        one = lambda l: [[x] for x in l]
        quad = lambda l: [l[i:i + 3] for i in range(0, len(l), 3)]
        def zipm(mm, va):
            o = []
            per = -(-len(va) // len(mm))
            for m_ in mm:
                o.append(m_ if isinstance(m_, list) else [m_]); o += quad(va[:per]); va = va[per:]
            return o
        setup = [smov(S_TASK, S_TASK + 1), "s_mov_b32 %s, 0" % s(S_TASK + 1), sadd(S_TI, S_TI, 1)] + \
                [x for x in task_setup(False) if not x.startswith("s_mov_b32 %s," % s(SRD_O + 2))]
        mv = ["v_accvgpr_mov_b32 %s, %s" % (a(A_ONM + i), a(A_ONM + 8 + i)) for i in range(8)]
        Y += zipm(P_[0][0], setup) + zipm(P_[1][0], mv) + [[lzero()]] + quad(P_[0][1])
        for q in range(1, NX + 1):
            pvq = pvalu_q(nxt, NX, q - 2) if q >= 2 else []
            if q < NX: Y += zipm(P_[2 * q][0], pvq[:12] + P_[2 * q - 1][1])
            else: Y += quad(pvq[:12] + P_[2 * q - 1][1])
            mm = [[qk0(nxt, 8 * (q - 1) + i)] + ([k_read(i, u * SZ)] if q == NX else []) for i in range(8)]
            mm[0] = ["s_nop 1"] + mm[0]
            if q < NX: mm += P_[2 * q + 1][0]
            Y += zipm(mm, pvq[12:]) if pvq[12:] else [m_ if isinstance(m_, list) else [m_] for m_ in mm]
            if q < NX: Y += quad(P_[2 * q][1])
        Y += [["s_nop 6"]] + quad(pvalu_q(nxt, NX, NX - 1))
        zlast = [ozero(g) for g in range(2 * (N - 1), 2 * NX)] + ([ozero(1)] if N == 4 else [])
    X += ["#ST%d" % k for k in range(4)]
    M = []
    acc = 0.
    rate = len(Y) / float(len(X) - ystart)
    for i, l in enumerate(X):
        if l.startswith("#ST"): M += store(oreg(N - 1, 0) + 4 * int(l[3:]), None)
        else: M.append(l)
        if i >= ystart:
            acc += rate
            while acc >= 1 and Y and not M[-1].startswith("s_waitcnt"):
                M += Y.pop(0); acc -= 1
    for y in Y: M += y
    for i, l in enumerate(M):
        if l == "s_waitcnt lgkmcnt(None)":
            reg = M[i + 1].split()[1]
            j = max(k for k in range(i) if M[k].startswith("ds_read_b128 " + reg))
            M[i] = "s_waitcnt lgkmcnt(%d)" % min(15, sum(1 for k in range(j + 1, i) if M[k].startswith("ds_")))
    eab = [k for k in optv("eab", "").split(",") if k]
    for l in M:
        if l == "#TL": tl(A)
        elif any(l.startswith(k) for k in eab): pass
        else: A(l)
    A.ext(zlast)
    if NX:
        A(smov(SRD_O + 2, S_NR))
        tl(A); tl_pre(A)
        A("s_waitcnt lgkmcnt(0)")
        A("s_branch L_itb%d_%d" % (NX, (u + 1) % 4))
    else:
        A("s_branch L_fin" if STAMPS else "s_endpgm")
for (u, N, aux) in sorted({(x[0], x[1], x[2] > 0) for x in needE3}, key=lambda x: (-x[1], x[0])):
    A.label("L_e%d%s_%d" % (N, "x" if aux else "", u))
    stamp(A, 2, True)
    A("s_mov_b32 %s, %d" % (s(S_PH), u))
    tl_post(A)
    A("s_barrier")
    NXs = sorted(x[2] for x in needE3 if x[:2] == (u, N) and (x[2] > 0) == aux)
    for NX in NXs[1:]:
        A("s_cmp_eq_u32 %s, %d" % (s(S_NNQ), NX)); A("s_cbranch_scc1 L_e%d_%d_%d" % (N, u, NX))
    for NX in NXs:
        A.label("L_e%d_%d_%d" % (N, u, NX))
        ephase(A, u, N, NX)
A.label("L_cold")
for u in range(4):
    A.label("L_adv%d" % u)
    stamp(A, 3, True)
    if any(p == u for (p, N) in needP):
        A("s_cmp_eq_u32 %s, 0" % s(S_TASK + 1))
        A("s_cbranch_scc1 L_fin")
        A(smov(S_TASK, S_TASK + 1)); A(smov(S_TASK + 1, S_TASK + 2)); A("s_mov_b32 %s, 0" % s(S_TASK + 2))
        A(sadd(S_TI, S_TI, 1))
        A.ext(task_setup())
        tl(A)
        dispatchP(A, u)
    else:
        A("s_branch L_fin")
    for N in sorted(N for (p, N) in needP if p == u):
        A.label("L_p%d_%d" % (N, u))
        pphase(A, u, N)
        A("s_branch L_itb%d_%d" % (N, (u + 1) % 4))
A.label("L_fin")
if STAMPS:
    A("s_waitcnt vmcnt(0)")
    stamp(A, 4)
    A("s_mov_b64 %s, s[26:27]" % s(S_ST + 12, 2))
    A("s_memrealtime %s" % s(S_ST + 14, 2))
    A("s_getreg_b32 %s, hwreg(HW_REG_XCC_ID)" % s(S_ST + 10))
    A("s_getreg_b32 %s, hwreg(HW_REG_HW_ID)" % s(S_ST + 11))
    A("s_waitcnt lgkmcnt(0)")
    A("s_cmp_eq_u32 %s, 0" % s(S_W))
    A("s_cbranch_scc0 L_end")
    for i in range(16): A("v_mov_b32 %s, %s" % (v(16 + i), s(S_ST + i)))
    for i in range(16): A("v_mov_b32 v%d, 0" % (32 + i))
    if TL:
        A("s_lshl_b32 %s, s2, 8" % s(S_T0))
        A("s_add_u32 %s, %s, 0x100000" % (s(S_T0), s(S_T0)))
        A("v_mbcnt_lo_u32_b32 v48, -1, 0"); A("v_mbcnt_hi_u32_b32 v48, -1, v48"); A("v_lshlrev_b32 v48, 2, v48")
        A("buffer_store_dword %s, v48, %s, %s offen" % (v(V_TL), s(SRD_W, 4), s(S_T0)))
    A("s_lshl_b32 %s, s2, 7" % s(S_T0))
    A("v_mov_b32 v48, 0")
    A("s_mov_b64 exec, 1")
    for i in range(8):
        A("buffer_store_dwordx4 %s, v48, %s, %s offen offset:%d" % (v(16 + 4 * i, 4), s(SRD_W, 4), s(S_T0), 16 * i))
A("s_endpgm")

for (par, N) in sorted({(u & 1, N) for (u, N) in needE}):
    A.label("L_es%d_%d" % (N, par))
    for q2 in range(1, N):
        for db in range(8): A(pv_mfma(S_BUF[1 - par], q2, db))
    A("s_branch L_slow")
A.label("L_slow")
A("s_waitcnt vmcnt(8) lgkmcnt(0)")
A("s_nop 7")
for q2 in range(4): A.ext(norm_q2(q2))
A("s_cmp_eq_u32 %s, 0" % s(S_FB))
A("s_cbranch_scc0 L_sstore")
A("s_mov_b64 %s, 0" % s(S_BAD, 2))
for q2 in range(4):
    if q2 >= 1:
        A("s_cmp_le_u32 %s, %d" % (s(S_NQ), q2)); A("s_cbranch_scc1 L_sdec")
    for k in range(4): A(readback(4 * q2 + k, 16 + 4 * k))
    A("v_cmp_ngt_f32 vcc, 0x71800000, %s" % v(V_T + q2))
    A("v_mov_b32 %s, 0" % v(V_U))
    A("s_nop 0")
    A("s_or_b64 %s, %s, vcc" % (s(S_BAD, 2), s(S_BAD, 2)))
    A("s_waitcnt lgkmcnt(0)")
    for k in range(8): A("v_pk_maximum3_f16 %s, %s, %s, %s" % (v(V_U), v(V_U), v(16 + 2 * k), v(17 + 2 * k)))
    A("v_and_b32 %s, 0x7c00, %s" % (v(V_U + 1), v(V_U)))
    A("v_and_b32 %s, 0x7c000000, %s" % (v(V_U + 2), v(V_U)))
    for c_ in ("v_cmp_eq_u32 vcc, 0x7c00, %s" % v(V_U + 1), "v_cmp_eq_u32 vcc, 0x7c000000, %s" % v(V_U + 2)):
        A(c_); A("s_nop 1"); A("s_or_b64 %s, %s, vcc" % (s(S_BAD, 2), s(S_BAD, 2)))
A.label("L_sdec")
A("s_cmp_lg_u64 %s, 0" % s(S_BAD, 2))
A("s_cbranch_scc1 L_fb")
A.label("L_sstore")
A(smov(S_T2, S_QOFF))
for q2 in range(4):
    if q2 >= 1:
        A("s_cmp_le_u32 %s, %d" % (s(S_NQ), q2)); A("s_cbranch_scc1 L_sret")
    for k in range(4): A(readback(4 * q2 + k, 16 + 16 * q2 + 4 * k))
    for k in range(4): A.ext(store(16 + 16 * q2 + 4 * k, 3 - k))
A.label("L_sret")
for g in range(8): A.ext(ps_mfmas(g))
A("s_nop 15")
for g in range(8):
    A.ext(ps_cvts(g)); A(ozero(g))
for u in range(3):
    A("s_cmp_eq_u32 %s, %d" % (s(S_PH), u)); A("s_cbranch_scc1 L_adv%d" % u)
A("s_branch L_adv3")
A.label("L_fb")
A("s_mov_b32 %s, 1" % s(S_FB))
FV, FKO, FVO = 48, 49, 50
S_FOFF, S_FCNT = S_L, S_CNT
A("s_sub_u32 %s, %s, %d" % (s(S_T0), s(S_PRIV), HALF))
A("v_add_u32 %s, %s, %s" % (v(FV), s(S_T0), v(V_VA)))
A("s_lshl_b32 %s, %s, 14" % (s(S_T0), s(S_W)))
A("v_subrev_u32 %s, %s, %s" % (v(FKO), s(S_T0), v(V_KVO)))
A("s_lshl_b32 %s, %s, 12" % (s(S_T0), s(S_W)))
A("v_subrev_u32 %s, %s, %s" % (v(FVO), s(S_T0), v(V_VVO)))
A(smov(SRD_F + 2, S_NR))
def fb_load(A, vo, ptr, step):
    A(smov2(SRD_F, ptr)); A(smov(S_T4, S_FOFF))
    for n in range(8):
        A(m0(n * PS, S_PRIV))
        A(sadd(S_T4, S_T4, step) if n else "s_nop 0")
        A(dma(vo, SRD_F, S_T4))
    A("s_waitcnt vmcnt(0)")
def fb_qk(A, tag):
    A("s_cmp_eq_u32 %s, 1" % s(S_FCNT)); A("s_cbranch_scc0 L_fbnm%s" % tag)
    A.ext(mask_ops())
    A.label("L_fbnm%s" % tag)
    fb_load(A, FKO, P_K, 16384)
    for f in range(8): A(k_read(f, 0, V_QA0, a(A_VF + 4 * f, 4)))
    A("s_waitcnt lgkmcnt(0)")
    for i in range(32): A(qk_mfma(S_BUF[0], i, False, A_VF))
    A("s_nop 15")
for i in range(32): A("v_mov_b32 %s, 0" % v(CI + i))
for q in range(4): A("v_mov_b32 %s, 0xff800000" % v(V_T + q))
for g in range(8): A(ozero(g))
A(lzero())
A(smov(S_FOFF, S_KBASE)); A(smov(S_FCNT, S_N))
A.label("L_fb1")
fb_qk(A, "1")
A.ext(rowmax(S_BUF[0], 4, False))
A(sadd(S_FOFF, S_FOFF, BLK))
A("s_sub_u32 %s, %s, 1" % (s(S_FCNT), s(S_FCNT))); A("s_cmp_eq_u32 %s, 0" % s(S_FCNT)); A("s_cbranch_scc0 L_fb1")
A.ext(crossmax(4))
for i in range(32): A("v_sub_f32 %s, 0, %s" % (v(CI + i), v(V_T + (i >> 3))))
A(smov(S_FOFF, S_KBASE)); A(smov(S_FCNT, S_N))
A.label("L_fb2")
fb_qk(A, "2")
A.ext(flat_sm([op for p, op in softmax_ops(S_BUF[0], 4)]))
fb_load(A, FVO, P_V, 4096)
for db in range(8):
    A(v_read(db, 0, 0, FV)); A(v_read(db, 1, 0, FV))
A("s_waitcnt lgkmcnt(0)")
for q2 in range(4):
    for db in range(8): A(pv_mfma(S_BUF[0], q2, db))
    A(sum_mfma(S_BUF[0], q2))
A("s_nop 15")
A(sadd(S_FOFF, S_FOFF, BLK))
A("s_sub_u32 %s, %s, 1" % (s(S_FCNT), s(S_FCNT))); A("s_cmp_eq_u32 %s, 0" % s(S_FCNT)); A("s_cbranch_scc0 L_fb2")
A.ext(lfinal(4, True))
A("s_branch L_slow")
A.label("L_end")
A("s_endpgm")

errs = check_hazards(A.lines)
for e in errs: print(e, file=sys.stderr)
if errs and not opt("force"): sys.exit(1)

hdr = open("standalone__varlen_attn_packed__ragged.s.ref").read().split("\n")
hdr = [l for l in hdr[:10] if l.startswith(";") and "@launch" not in l]
out = "\n".join(hdr) + "\n; @launch grid=(%d,1,1) block=(256,1,1) lds=%d\n" % (GRID, LDS)
out += """;
"""
out += '.amdgcn_target "amdgcn-amd-amdhsa--gfx950"\n.text\n.globl %s\n.p2align 8\n.type %s,@function\n' % (NAME, NAME)
out += A.text()
out += ".p2align 6\n.type L_table,@object\nL_table:\n"
for j, ent in enumerate(table):
    w = [t[0] | (t[1] << 13) | (t[2] << 23) | (t[3] << 27) | (t[4] << 30) for t in ent] + [0] * (4 - len(ent))
    t = ent[0]
    kb_ = (t[0] << 12) + (t[4] << 8)
    w += [kb_, (t[0] + t[1]) << 12, kb_ + (t[2] << 18), (16 * t[3] - 4) << 12]
    out += ".long " + ", ".join("0x%08x" % x for x in w) + "\n"
out += """.section .rodata,"a"
.p2align 6
.amdhsa_kernel %s
  .amdhsa_next_free_vgpr 512
  .amdhsa_next_free_sgpr 102
  .amdhsa_accum_offset 256
  .amdhsa_group_segment_fixed_size 0
  .amdhsa_kernarg_size 56
  .amdhsa_user_sgpr_count 2
  .amdhsa_user_sgpr_kernarg_segment_ptr 1
  .amdhsa_system_sgpr_workgroup_id_x 1
.end_amdhsa_kernel
""" % NAME
sys.stdout.write(out)
```

```python
import sys, struct, math
from asmlib import Asm, check_hazards
import schedA

def opt(x): return ("--" + x) in sys.argv
def optv(x, d):
    for a_ in reversed(sys.argv):
        if a_.startswith("--" + x + "="): return a_.split("=")[1]
    return d
DEF = {("sm", 1): "11", ("dw", 1): "0,9", ("vend", 1): "-1", ("kend", 1): "4",
       ("kendx", 3): "8", ("radx", 3): "1", ("dwx", 4): "20,48", ("vendx", 4): "-1", ("kbegx", 4): "7", ("radx", 4): "2", ("saluxx", 4): "0", ("abx", 4): "20", ("aex", 4): "10",
       ("dwx", 2): "8,20", ("vendx", 2): "-1", ("kendx", 2): "5",
       ("dw", 4): "26,48", ("vend", 4): "-1", ("kbeg", 4): "7", ("rad", 4): "2", ("salux", 4): "0", ("kend", 3): "8", ("kend", 2): "5", ("sm", 3): "28", ("dw", 3): "6,20", ("rad", 3): "1", ("tp", 3): "7,5,5,3,3", ("vend", 3): "2",
       ("sm", 2): "19", ("dw", 2): "11,24", ("vend", 2): "0", ("salux", 2): "1"}
def optn(x, N, d): return optv("%s%d" % (x, N), optv(x, DEF.get((x, N), d)))
STAMPS = opt("stamps"); TL = opt("tl")
NAME = "standalone__varlen_attn_packed__ragged_kernel"
HALF = 8704; PS = 1056; SZ = 2 * HALF
PRIV = 4 * SZ
LDS = 8 * SZ
BLK = 32 * 4096
GRID = 256
plan0 = getattr(schedA, optv("plan", "PD1"))
late = [len(b[0]) > 2 and b[0][2] for b in plan0]
plan = [[x[:2] for x in b] for b in plan0]
table = schedA.build(plan, not opt("nocheck"))
STMOD = " " + optv("stmod", "sc0+sc1").replace("+", " ")
needP, needE, needN, needF, needE3 = set(), set(), set(), set(), set()
for bin_ in plan:
    assert len(bin_) <= 2
    for x, y in zip(bin_, bin_[1:]): assert x[0] >= 3 + 4 * y[1], bin_
for bin_ in plan:
    ph = 0
    for ti, (n, N) in enumerate(bin_):
        if ti: needP.add((ph, N))
        else: needF.add(N)
        needN.add((N, ti + 1 < len(bin_)))
        ph = (ph + n) & 3
        needE.add((ph, N))
        needE3.add((ph, N, bin_[ti + 1][1] if ti + 1 < len(bin_) else 0))

V_KA0, V_KA1, V_VA, V_KVO, V_KVO2, V_VVO, V_VVO2, V_G4, V_QA0, V_QA1, V_EW, V_ER, V_SO, V_T4, V_T5 = range(1, 16)
V_TL = 0
S_BUF = [16, 48]
CI = 80
V_T = 112
V_U = 116
V_I = 120
V_Z = 124
V_IDX, V_SG, V_SA = V_T5, 109, 110
O = 128
A_Q, A_QR, A_KF, A_VF, A_PS, A_LS, A_ONE, A_ONM = 0, 64, 128, 160, 192, 208, 224, 232
SRD_F, SRD_K, SRD_V, SRD_O, SRD_W = 4, 8, 12, 16, 20
(S_KOFF, S_VOFF, S_WBASE, S_CNT, S_HT, S_PRIV, S_QOFF, S_NV, S_N, S_L, S_T0, S_T1, S_T2, S_T3,
 S_KBASE, S_NR, S_PH, S_HOFF, S_FB, S_TI) = range(28, 48)
S_ST = 48
P_Q, P_K, P_V, P_O = 64, 66, 68, 70
S_TASK = 80
S_BAD = 84
S_T4, S_W, S_NQ, S_NKB, S_NNR, S_NQB, S_NNQ, S_C, S_QM, S_QME, S_BLK = 86, 87, 88, 89, 90, 91, 93, 98, 99, 100, 101
S_T4E = 96

def v(i, n=1): return "v%d" % i if n == 1 else "v[%d:%d]" % (i, i + n - 1)
def a(i, n=1): return "a%d" % i if n == 1 else "a[%d:%d]" % (i, i + n - 1)
def s(i, n=1): return "s%d" % i if n == 1 else "s[%d:%d]" % (i, i + n - 1)
M16 = "v_mfma_f32_16x16x32_bf16"; M32 = "v_mfma_f32_32x32x16_bf16"

def qk_mfma(buf, i, raw=False, kf=A_KF):
    q2, kb, st = i >> 3, (i >> 2) & 1, i & 3
    d = v(buf + 8 * q2 + 4 * kb, 4)
    c = d if st else ("0" if raw else v(CI + (8 * q2 + 4 * kb if kf != A_KF else 4 * q2), 4))
    return "%s %s, %s, %s, %s" % (M16, d, a(kf + 4 * (4 * kb + st), 4), a((A_QR if raw else A_Q) + 16 * q2 + 4 * st, 4), c)
def preg(buf, q2): return buf + 8 * q2 - (4 if q2 & 1 else 0)
def GAPS(N): return 16 * N + (N + 1) // 2
def oreg(q2, db): return O + 32 * q2 + 4 * db
def pv_mfma(buf, q2, db):
    d = v(oreg(q2, db), 4)
    return "%s %s, %s, %s, %s" % (M16, d, a(A_VF + 4 * db, 4), v(preg(buf, q2), 4), d)
def sum_mfma(buf, q2, one=None, slot=None):
    d = a(A_LS + 4 * (q2 if slot is None else slot), 4)
    return "%s %s, %s, %s, %s" % (M16, d, a(A_ONE if one is None else one, 4), v(preg(buf, q2), 4), d)
def sums_after(buf, N, q2, one=A_ONE):
    if q2 & 1: return ["v_smfmac_f32_16x16x64_bf16 %s, %s, %s, %s" % (a(A_LS + 4 * (q2 >> 1), 4), a(one + 4, 4), v(buf + 8 * (q2 - 1), 8), v(V_IDX))]
    if q2 == N - 1: return [sum_mfma(buf, q2, one, q2 >> 1)]
    return []
def onm_ops(t=0):
    o = ["s_bfe_u32 %s, %s, 0xa000d" % (s(S_T2), s(S_TASK + t)), sadd(S_T2, S_T2, 31), "s_and_b32 %s, %s, 31" % (s(S_T2), s(S_T2)), sadd(S_T2, S_T2, 1),
         "v_mov_b32 %s, 0x3f80" % v(V_I + 1), "v_mov_b32 %s, 0x3f803f80" % v(V_I + 2)]
    for sp in range(2):
        o.append("v_sub_u32 %s, %s, %s" % (v(V_I), s(S_T2), v(V_SG if sp else V_G4)))
        for r in range(4):
            k = (16 * (r & 1) + 4 * (r >> 1)) if sp else (16 * (r >> 1) + 2 * (r & 1))
            o += ["v_cmp_lt_i32 vcc, %d, %s" % (k, v(V_I)), "v_cmp_lt_i32 %s, %d, %s" % (s(S_T0, 2), k + 1, v(V_I)), "s_nop 0",
                  "v_cndmask_b32 %s, 0, %s, vcc" % (v(V_I + 3), v(V_I + 1)),
                  "v_cndmask_b32 %s, %s, %s, %s" % (v(V_I + 3), v(V_I + 3), v(V_I + 2), s(S_T0, 2))]
            if sp: o.append("v_and_b32 %s, %s, %s" % (v(V_I + 3), v(V_I + 3), v(V_SA)))
            o.append("v_accvgpr_write_b32 %s, %s" % (a(A_ONM + 8 * t + 4 * sp + r), v(V_I + 3)))
    return o
def k_read(f, base, areg=V_KA0, dst=None):
    kb, st = f >> 2, f & 3
    return "ds_read_b128 %s, %s offset:%d" % (dst or a(A_KF + 4 * f, 4), v(areg + (st >> 1)), base + 4 * PS * kb + 64 * (st & 1))
def v_read(db, j, base, areg=V_VA):
    return "ds_read_b64_tr_b16 %s, %s offset:%d" % (a(A_VF + 4 * db + 2 * j, 2), v(areg), base + 512 * j + 32 * db)
def q_reads(n=4):
    return [k_read(f, 0, V_QA0, a(A_QR + 4 * f, 4)) for f in range(4 * n)]

def sm_start(N): return int(optn("sm", N, "15"))
def opq(op, buf): return (int(op.split()[-1].strip("v,")) - buf) >> 3
def softmax_ops(buf, N):
    ops = []
    st = sm_start(N)
    G = GAPS(N)
    for e in range(8 * N):
        p = st + (e * G // (8 * N) if N > 1 else e * 3 // 2)
        ops.append((p, 0, "v_exp_f32 %s, %s" % (v(buf + e), v(buf + e))))
        if e & 1:
            pc = p + int(optn("cd", N, "1"))
            if optn("cvt2", N, "0") == "1" and (e & 3) == 1: pc += 4
            ops.append((pc, 1 + (e & 2), "v_cvt_pk_bf16_f32 %s, %s, %s" % (v(preg(buf, e >> 3) + ((e & 7) >> 1)), v(buf + e - 1), v(buf + e))))
    for p, _, op in ops:
        q = opq(op, buf)
        assert 8 * q + 8 <= p < G + 8 * N + 8 * q - 1, (N, p, op)
    ops.sort()
    cv = [o for o in ops if o[1]]
    assert all(opq(x[2], buf) <= opq(y[2], buf) for x, y in zip(cv, cv[1:]))
    return [(o[0], o[2]) for o in ops]
def flat_sm(ops):
    out = []
    pend = []
    for op in ops:
        if op.startswith("v_cvt"):
            pend.append(op)
        else:
            out.append(op)
            out += pend; pend = []
    if pend: out += ["s_nop 0"] + pend
    return out

def dma(vo, srd, so): return "buffer_load_dwordx4 %s, %s, %s offen lds" % (v(vo), s(srd, 4), s(so))
def m0(off, base=None): return "s_add_u32 m0, %s, %d" % (s(S_WBASE if base is None else base), off)
def sadd(d, x, imm): return "s_add_u32 %s, %s, %d" % (s(d), s(x), imm)
def smov(d, x): return "s_mov_b32 %s, %s" % (s(d), s(x))
def smov2(d, x): return "s_mov_b64 %s, %s" % (s(d, 2), s(x, 2))
def stream_groups(slot):
    b = slot * SZ
    return [[m0(b)], [dma(V_KVO, SRD_K, S_KOFF)], [m0(b + 4 * PS)], [dma(V_KVO2, SRD_K, S_KOFF)],
            [m0(b + HALF)], [dma(V_VVO, SRD_V, S_VOFF)], [m0(b + HALF + 4 * PS)], [dma(V_VVO2, SRD_V, S_VOFF)],
            ["s_add_u32 %s, %s, %s" % (s(S_KOFF), s(S_KOFF), s(S_BLK))], ["s_add_u32 %s, %s, %s" % (s(S_VOFF), s(S_VOFF), s(S_BLK))]]
def stream_flat(slot):
    out = []
    for g in stream_groups(slot):
        out += g
        if " m0," in g[0]: out.append("s_nop 0")
    return out
def kblock_flat(ldsoff):
    return [m0(ldsoff), "s_nop 0", dma(V_KVO, SRD_K, S_KOFF), m0(ldsoff + 4 * PS), "s_nop 0", dma(V_KVO2, SRD_K, S_KOFF), sadd(S_KOFF, S_KOFF, BLK)]
def qgroup(g):
    out = []
    for n in range(4 * g, 4 * g + 4):
        out += [m0(n * PS, S_PRIV), "s_nop 0", dma(V_KVO, SRD_F, S_T4), sadd(S_T4, S_T4, 16384)]
    return out

COST = {"ds_read_b128": 12, "ds_read_b64_tr_b16": 8, "buffer_load_dwordx4": 12, "v_exp_f32": 8}
def cost(op): return COST.get(op.split()[0], 4)

def aux_ops():
    return ["s_mov_b32 m0, %s" % s(S_QM), dma(V_KVO, SRD_F, S_T4),
            sadd(S_QM, S_QM, PS), "s_min_u32 %s, %s, %s" % (s(S_QM), s(S_QM), s(S_QME)),
            sadd(S_T4, S_T4, 16384), "s_min_u32 %s, %s, %s" % (s(S_T4), s(S_T4), s(S_T4E))]
def iteration(A, u, N, aux=False):
    nxt, cur = S_BUF[u & 1], S_BUF[1 - (u & 1)]
    opta = (lambda x, n_, d: optn(x + 'x', n_, optn(x, n_, d))) if aux else optn
    G = GAPS(N)
    ms = [qk_mfma(nxt, i) for i in range(8 * N)]
    for q2 in range(N):
        ms += [pv_mfma(cur, q2, db) for db in range(8)] + sums_after(cur, N, q2)
    if opt("pvord"):
        ms = ms[:8 * N] + [pv_mfma(cur, q2, db) for db in range(8) for q2 in range(N)] + sum((sums_after(cur, N, q) for q in range(N)), [])
    if opt("pvord2"):
        ms = ms[:8 * N] + [pv_mfma(cur, 2 * h + q2, db) for h in range(N // 2) for db in range(8) for q2 in range(2)] + sum((sums_after(cur, N, q) for q in range(N)), [])
    if opt("qkord"):
        ms = [qk_mfma(nxt, 16 * h + 8 * q2 + f) for h in range(N // 2) for f in range(8) for q2 in range(2)] + ms[8 * N:]
    if opt("qkord2"):
        ms = [qk_mfma(nxt, 8 * q2 + 4 * kb + st) for q2 in range(N) for st in range(4) for kb in range(2)] + ms[8 * N:]
    va = [[] for _ in range(G)]; nv = [[] for _ in range(G)]
    for p, op in softmax_ops(cur, N):
        if p >= G: va[p - G].append(op)
    for p, op in softmax_ops(nxt, N):
        if p < G: va[p].append(op)
    RAD = int(opta('rad', N, '1'))
    load = lambda g: sum(map(cost, va[g] + nv[g]))
    def place(items, lo, hi, strict=False):
        last = lo - (1 if strict else 0)
        pos = []
        for i, it in enumerate(items):
            t = lo + (i + 0.5) * (hi - lo + 1) / len(items)
            mn = last + (1 if strict else 0)
            mx = hi - ((len(items) - 1 - i) if strict else 0)
            cand = [g for g in range(int(t) - RAD, int(t) + RAD + 1) if mn <= g <= mx] or [min(max(int(t), mn), mx)]
            if it.startswith("s_") and opta("salux", N, "0") == "1":
                g = min(cand, key=lambda g: (len(nv[g]) > 0, not any("exp" in x for x in va[g]), abs(g + 0.5 - t)))
            else:
                g = min(cand, key=lambda g: (load(g), abs(g + 0.5 - t)))
            nv[g].append(it); last = g; pos.append(g)
        return pos
    H = 8 * N
    vpos = place([v_read(i >> 1, i & 1, u * SZ) for i in range(16)], int(opta('vbeg', N, '0')), H + int(opta('vend', N, '-1' if N == 2 else '-3')))
    kpos = place([k_read(f, u * SZ) for f in range(8)], max(H + int(opta('kbeg', N, '0')), vpos[-1]), G - int(opta('kend', N, '7')))
    sg = stream_groups((u + 3) % 4)
    dlo, dhi = [int(x) for x in opta("dw", N, {1: "0,9", 2: "1,15", 3: "24,43", 4: "33,56"}[N]).split(",")]
    ax = aux_ops() if aux else []
    dpos = place(ax[:2] + [g[0] for g in sg[:8]], dlo, dhi, True)
    if aux: place(ax[2:], max(dpos[1] + 1, int(opta('ab', N, '0'))), G - int(opta('ae', N, '8')), True)
    tailp = [int(x) for x in opta("tp", N, "6,5,4,3,2").split(",")]
    nv[G - tailp[0]] += sg[8]; nv[G - tailp[1]] += sg[9]
    nv[G - tailp[2]].append("s_sub_u32 %s, %s, 1" % (s(S_CNT), s(S_CNT)))
    nv[G - tailp[3]].append("s_cmp_le_u32 %s, %s" % (s(S_CNT), s(S_HT)))
    if TL: nv[G - tailp[4]].append("s_memrealtime s[94:95]" if opt("tlrt") else "s_memtime s[94:95]")
    nv[G - tailp[4]].append("s_waitcnt vmcnt(%d) lgkmcnt(0)" % (10 if aux else 8))
    assert dhi < G - tailp[0] and kpos[-1] < G - tailp[4]
    covered = -1
    for g in range(G):
        if H <= g < H + 8 and g - H > covered:
            db = g - H
            while db + 1 < 8 and vpos[2 * db + 3] <= g - int(opta("wd", N, "4")): db += 1
            covered = db
            assert vpos[2 * db + 1] < g
            younger = sum(1 for p in vpos[2 * db + 2:] if p < g) + sum(1 for p in kpos if p < g)
            A("s_waitcnt lgkmcnt(%d)" % younger)
        A(ms[g]); A.ext(nv[g]); A.ext(va[g])

def mask_ops(N=4):
    o = ["v_sub_u32 %s, %s, %s" % (v(V_U), s(S_NV), v(V_G4)), "v_mov_b32 %s, 0xff800000" % v(V_U + 1)]
    prs = ["vcc", s(S_T0, 2)]
    for r in range(8 + 1):
        if r < 8: o.append("v_cmp_lt_i32 %s, %d, %s" % (prs[r % 2], 16 * (r >> 2) + (r & 3), v(V_U)))
        if r == 0: o.append("s_nop 0")
        if r >= 1:
            for q2 in range(N):
                x = CI + 8 * q2 + r - 1
                o.append("v_cndmask_b32 %s, %s, %s, %s" % (v(x), v(V_U + 1), v(x), prs[(r - 1) % 2]))
    o.append("s_nop 1")
    return o
def rowmax(b, N, first):
    o = []
    if first:
        for q2 in range(N): o.append("v_max3_f32 %s, %s, %s, %s" % (v(V_T + q2), v(b + 8 * q2), v(b + 8 * q2 + 1), v(b + 8 * q2 + 2)))
        for i in (3, 5):
            for q2 in range(N): o.append("v_max3_f32 %s, %s, %s, %s" % (v(V_T + q2), v(V_T + q2), v(b + 8 * q2 + i), v(b + 8 * q2 + i + 1)))
        for q2 in range(N): o.append("v_max_f32 %s, %s, %s" % (v(V_T + q2), v(V_T + q2), v(b + 8 * q2 + 7)))
    else:
        for i in range(0, 8, 2):
            for q2 in range(N): o.append("v_max3_f32 %s, %s, %s, %s" % (v(V_T + q2), v(V_T + q2), v(b + 8 * q2 + i), v(b + 8 * q2 + i + 1)))
    return o
def crossmax(N):
    o = []
    for w in (32, 16):
        o += ["v_mov_b32 %s, %s" % (v(V_U + q), v(V_T + q)) for q in range(N)] + (["s_nop 0"] if N == 2 else [])
        o += ["v_permlane%d_swap_b32 %s, %s" % (w, v(V_T + q), v(V_U + q)) for q in range(N)]
        o += ["v_max_f32 %s, %s, %s" % (v(V_T + q), v(V_T + q), v(V_U + q)) for q in range(N)]
    return o
def ps_mfmas(g):
    d = v(O + 16 * g, 16)
    return ["%s %s, %s, %s, %s" % (M32, d, a(A_PS + m, 4), a(A_QR + 8 * g + 4 * fr, 4), "0" if k == 0 else d) for k, (m, fr) in enumerate(((0, 0), (4, 1), (8, 0), (12, 1)))]
def ps_cvts(g):
    b = O + 16 * g
    o = ["v_cvt_pk_bf16_f32 %s, %s, %s" % (v(b + i), v(b + 2 * i), v(b + 2 * i + 1)) for i in range(8)]
    o += ["v_accvgpr_write_b32 %s, %s" % (a(A_Q + 8 * g + i), v(b + i)) for i in range(8)]
    return o
def ozero(g): return "%s %s, %s, %s, 0" % (M32, v(O + 16 * g, 16), v(V_Z, 4), v(V_Z, 4))
def lzero(): return "%s %s, %s, %s, 0" % (M32, a(A_LS, 16), v(V_Z, 4), v(V_Z, 4))

nst = [0]
def stamp(A, idx, first_only=False):
    if STAMPS:
        if first_only:
            nst[0] += 1
            A("s_cmp_eq_u32 %s, 0" % s(S_TI)); A("s_cbranch_scc0 L_st%d" % nst[0])
        A("s_memtime %s" % s(S_ST + 2 * idx, 2))
        if first_only: A.label("L_st%d" % nst[0])
def tl_pre(A):
    if TL: A("s_memrealtime s[94:95]" if opt("tlrt") else "s_memtime s[94:95]")
def tl_post(A):
    if TL:
        A("s_mov_b32 m0, s92"); A("s_add_u32 s92, s92, 1"); A("v_writelane_b32 %s, s94, m0" % v(V_TL))
def tl(A):
    if TL:
        tl_pre(A); A("s_waitcnt lgkmcnt(0)"); tl_post(A)

def decode(word):
    return ["s_and_b32 %s, %s, 0x1fff" % (s(S_T0), s(word)),
            "s_bfe_u32 %s, %s, 0xa000d" % (s(S_T1), s(word)),
            "s_add_u32 %s, %s, %s" % (s(S_T1), s(S_T0), s(S_T1)),
            "s_lshl_b32 %s, %s, 12" % (s(S_NNR), s(S_T1)),
            "s_bfe_u32 %s, %s, 0x1001e" % (s(S_T1), s(word)),
            "s_lshl_b32 %s, %s, 8" % (s(S_T1), s(S_T1)),
            "s_add_u32 %s, %s, %s" % (s(S_T1), s(S_T1), s(S_HOFF)),
            "s_lshl_b32 %s, %s, 12" % (s(S_NKB), s(S_T0)),
            "s_add_u32 %s, %s, %s" % (s(S_NKB), s(S_NKB), s(S_T1)),
            "s_bfe_u32 %s, %s, 0x3001b" % (s(S_NNQ), s(word)),
            "s_bfe_u32 %s, %s, 0x40017" % (s(S_T1), s(word)),
            "s_lshl_b32 %s, %s, 2" % (s(S_T1), s(S_T1)),
            "s_mul_i32 %s, %s, %s" % (s(S_T0), s(S_W), s(S_NNQ)),
            "s_add_u32 %s, %s, %s" % (s(S_T1), s(S_T1), s(S_T0)),
            "s_lshl_b32 %s, %s, 16" % (s(S_NQB), s(S_T1)),
            "s_add_u32 %s, %s, %s" % (s(S_NQB), s(S_NQB), s(S_NKB)),
            "s_lshl_b32 %s, %s, 14" % (s(S_T0), s(S_W)),
            "s_sub_u32 %s, %s, %s" % (s(S_T4), s(S_NQB), s(S_T0)),
            smov2(SRD_F, P_Q), smov(SRD_F + 2, S_NNR)]
def task_setup(more=True):
    base = [smov(S_KBASE, S_NKB), smov(S_NR, S_NNR), smov(SRD_O + 2, S_NNR), smov(S_QOFF, S_NQB), smov(S_NQ, S_NNQ),
            "s_bfe_u32 %s, %s, 0xa000d" % (s(S_L), s(S_TASK)),
            sadd(S_N, S_L, 31), "s_lshr_b32 %s, %s, 5" % (s(S_N), s(S_N)),
            "s_sub_u32 %s, %s, 1" % (s(S_CNT), s(S_N)),
            "s_lshl_b32 %s, %s, 5" % (s(S_T1), s(S_CNT)),
            "s_sub_u32 %s, %s, %s" % (s(S_NV), s(S_L), s(S_T1)),
            "s_mov_b32 %s, 0" % s(S_FB),
            smov(S_QM, S_PRIV)]
    if not more: return base + ["s_mov_b32 %s, %d" % (s(S_HT), 0 if opt("norwl") else 4), "s_mov_b32 %s, 0" % s(S_NNQ), "s_mov_b32 %s, 0" % s(S_NNR)]
    return base + decode(S_TASK + 1) + ["s_cmp_eq_u32 %s, 0" % s(S_NNR), "s_cselect_b32 %s, %d, 4" % (s(S_HT), 0 if opt("norwl") else 4),
            "s_lshl_b32 %s, %s, 2" % (s(S_T0), s(S_NNQ)), "s_max_u32 %s, %s, 1" % (s(S_T0), s(S_T0)), "s_sub_u32 %s, %s, 1" % (s(S_T0), s(S_T0)),
            "s_mul_i32 %s, %s, %d" % (s(S_QME), s(S_T0), PS), "s_add_u32 %s, %s, %s" % (s(S_QME), s(S_QME), s(S_QM)),
            "s_lshl_b32 %s, %s, 14" % (s(S_T4E), s(S_T0)), "s_add_u32 %s, %s, %s" % (s(S_T4E), s(S_T4E), s(S_T4))]

A = Asm()
A.label(NAME)
A("s_cmp_ge_u32 s2, %d" % GRID)
A("s_cbranch_scc1 L_end")
if STAMPS: A("s_memrealtime s[26:27]")
stamp(A, 0)
DG = optv("diag", "")
if DG: A("s_memrealtime s[48:49]")
A("s_getpc_b64 s[74:75]")
A.label("L_pc")
A("s_load_dwordx4 s[64:67], s[0:1], 0")
A("s_and_b32 s76, s2, 0xf8")
A("v_lshrrev_b32 %s, 3, v0" % v(V_T4))
A("v_lshl_add_u32 %s, s76, 2, %s" % (v(V_T4), v(V_T4)))
A("v_lshlrev_b32 %s, 7, %s" % (v(V_T4), v(V_T4)))
A("v_min_u32 %s, L_cold-L_pc, %s" % (v(V_T4), v(V_T4)))
A("global_load_dword %s, %s, s[74:75]" % (v(V_T4), v(V_T4)))
A("s_lshl_b32 s76, s76, 2")
A("s_add_u32 s76, s76, L_table-L_pc")
A("s_load_dwordx8 s[56:63], s[74:75], s76")
A("v_lshrrev_b32 %s, 6, v0" % v(V_U))
A("v_bfe_u32 v16, v0, 4, 2")
A("v_readfirstlane_b32 %s, %s" % (s(S_W), v(V_U)))
G, P16, R4, X0, X1, X2 = 16, 17, 18, 19, 20, 21
def fswz(dst, src, tmp):
    A("v_and_b32 %s, 2, %s" % (v(tmp), v(src)))
    A("v_and_b32 %s, 1, %s" % (v(dst), v(src)))
    A("v_lshl_add_u32 %s, %s, 2, %s" % (v(dst), v(tmp), v(dst)))
A("v_and_b32 %s, 15, v0" % v(P16))
A("v_mul_u32_u24 %s, 5, %s" % (v(X0), v(G)))
A("v_and_b32 %s, 9, %s" % (v(X0), v(X0)))
A("v_xor_b32 %s, %s, %s" % (v(X0), v(X0), v(P16)))
A("v_lshrrev_b32 %s, 4, v0" % v(X1))
A("v_lshlrev_b32 %s, 12, %s" % (v(X1), v(X1)))
A("v_lshl_add_u32 %s, %s, 4, %s" % (v(V_KVO), v(X0), v(X1)))
A("v_add_u32 %s, %d, %s" % (v(V_KVO2), 16 * 4096, v(V_KVO)))
A("s_mul_i32 %s, %s, %d" % (s(S_WBASE), s(S_W), PS))
A("s_mul_i32 %s, %s, %d" % (s(S_PRIV), s(S_W), SZ))
A(sadd(S_PRIV, S_PRIV, PRIV))
A("s_and_b32 %s, s2, 7" % s(S_HOFF))
A("s_lshl_b32 %s, %s, 9" % (s(S_HOFF), s(S_HOFF)))
A("s_mov_b32 %s, 0x20000" % s(SRD_K + 3))
A("s_mov_b32 %s, %s" % (s(SRD_F + 3), s(SRD_K + 3)))
A(m0(HALF))
if TL:
    A("s_mov_b32 s92, 0")
A("s_waitcnt lgkmcnt(0)")
A(smov2(SRD_K, P_K)); A(smov(SRD_K + 2, 61))
A("s_add_u32 %s, s60, %s" % (s(S_KOFF), s(S_HOFF)))
kb = kblock_flat(HALF) + kblock_flat(0)
A(kb[2])
A("s_load_dwordx2 s[68:69], s[0:1], 16")
A("s_load_dwordx2 s[70:71], s[0:1], 32")
if STAMPS: A("s_load_dwordx2 s[72:73], s[0:1], 48")
A(kb[3]); A(smov(S_NKB, S_KOFF)); A(kb[5]); A(kb[6])
A(kb[7]); A(smov2(SRD_F, P_Q)); A(kb[9])
A(kb[10]); A(smov(SRD_F + 2, 61)); A(kb[12]); A(kb[13])
A("s_mul_i32 %s, %s, s63" % (s(S_T4), s(S_W)))
A("s_add_u32 %s, %s, s62" % (s(S_T4), s(S_T4)))
A("s_add_u32 %s, %s, %s" % (s(S_T4), s(S_T4), s(S_HOFF)))
A("s_lshl_b32 %s, %s, 14" % (s(S_NQB), s(S_W)))
A("s_add_u32 %s, %s, %s" % (s(S_NQB), s(S_NQB), s(S_T4)))
A.ext(qgroup(0)); A.ext(qgroup(1))
A("s_mov_b64 %s, s[56:57]" % s(S_TASK, 2)); A("s_mov_b64 %s, s[58:59]" % s(S_TASK + 2, 2))
A(smov(S_NNR, 61)); A("s_bfe_u32 %s, s56, 0x3001b" % s(S_NNQ))
A(smov(S_VOFF, S_NKB)); A(smov(SRD_V + 2, 61))
A("s_mov_b32 %s, %d" % (s(S_BLK), BLK))
A("s_mov_b32 %s, 0" % s(S_TI))
for srd in (SRD_V, SRD_O): A("s_mov_b32 %s, 0x20000" % s(srd + 3))
A("v_and_b32 v22, 63, v0")
A("v_and_b32 %s, 3, v22" % v(R4))
A("v_lshl_add_u32 %s, %s, 3, %s" % (v(X1), v(G), s(S_W)))
A("v_lshlrev_b32 %s, 12, %s" % (v(X1), v(X1)))
A("v_lshl_add_u32 %s, %s, 4, %s" % (v(V_VVO), v(P16), v(X1)))
A("v_add_u32 %s, %d, %s" % (v(V_VVO2), 4 * 4096, v(V_VVO)))
if TL: A("v_mov_b32 %s, 0" % v(V_TL))
A("s_waitcnt lgkmcnt(0)")
A(smov2(SRD_V, P_V)); A(smov2(SRD_O, P_O))
if STAMPS:
    A("s_mov_b32 %s, s72" % s(SRD_W)); A("s_mov_b32 %s, s73" % s(SRD_W + 1))
    A("s_mov_b32 %s, 0x1000000" % s(SRD_W + 2)); A("s_mov_b32 %s, 0x20000" % s(SRD_W + 3))
if opt("tls"): tl(A)
fswz(X0, R4, X1)
A("v_xor_b32 %s, %s, %s" % (v(X0), v(X0), v(G)))
A("v_lshrrev_b32 %s, 2, %s" % (v(X2), v(P16)))
A("v_mul_u32_u24 %s, %d, %s" % (v(X1), PS, v(X2)))
A("v_lshl_add_u32 %s, %s, 8, %s" % (v(X1), v(R4), v(X1)))
A("v_lshl_add_u32 %s, %s, 4, %s" % (v(V_KA0), v(X0), v(X1)))
A("v_xor_b32 %s, 8, %s" % (v(X0), v(X0)))
A("v_lshl_add_u32 %s, %s, 4, %s" % (v(V_KA1), v(X0), v(X1)))
A("v_add_u32 %s, %s, %s" % (v(V_QA0), s(S_PRIV), v(V_KA0)))
A("v_add_u32 %s, %s, %s" % (v(V_QA1), s(S_PRIV), v(V_KA1)))
A("v_and_b32 %s, 1, %s" % (v(X0), v(G)))
A("v_lshl_add_u32 %s, %s, 2, %s" % (v(X0), v(X0), v(X2)))
A("v_mul_u32_u24 %s, %d, %s" % (v(X0), PS, v(X0)))
A("v_lshrrev_b32 %s, 1, %s" % (v(X1), v(G)))
A("v_lshl_add_u32 %s, %s, 8, %s" % (v(X0), v(X1), v(X0)))
A("v_lshl_add_u32 %s, %s, 3, %s" % (v(X0), v(R4), v(X0)))
A("v_add_u32 %s, %d, %s" % (v(V_VA), HALF, v(X0)))
A("v_mul_u32_u24 %s, 272, %s" % (v(X0), v(P16)))
A("v_lshl_add_u32 %s, %s, 3, %s" % (v(X0), v(G), v(X0)))
A("v_add_u32 %s, %s, %s" % (v(V_EW), s(S_PRIV), v(X0)))
A("v_mul_u32_u24 %s, 272, %s" % (v(X0), v(G)))
A("v_lshl_add_u32 %s, %s, 4, %s" % (v(X0), v(P16), v(X0)))
A("v_add_u32 %s, %s, %s" % (v(V_ER), s(S_PRIV), v(X0)))
A("v_lshlrev_b32 %s, 12, %s" % (v(X0), v(G)))
A("v_lshl_add_u32 %s, %s, 4, %s" % (v(V_SO), v(P16), v(X0)))
A("v_lshlrev_b32 %s, 2, %s" % (v(V_G4), v(G)))
A("v_bfe_u32 %s, v22, 1, 1" % v(X0))
A("v_lshrrev_b32 %s, 5, v22" % v(X1))
A("v_cmp_eq_u32 vcc, %s, %s" % (v(X0), v(X1)))
A("v_and_b32 %s, 1, v22" % v(X2))
A("v_bfe_u32 %s, v22, 4, 1" % v(X1))
A("v_cndmask_b32 %s, 0, -1, vcc" % v(V_SA))
A("v_lshlrev_b32 %s, 3, %s" % (v(X1), v(X1)))
A("v_lshl_add_u32 %s, %s, 1, %s" % (v(V_SG), v(X2), v(X1)))
A("v_mul_u32_u24 %s, 0xaaaa, %s" % (v(X2), v(X2)))
A("v_add_u32 %s, 0x4444, %s" % (v(V_IDX), v(X2)))
A("v_mov_b32 %s, 0x3f803f80" % v(X0))
A("v_and_b32 %s, %s, %s" % (v(X1), v(X0), v(V_SA)))
for i in range(4):
    A("v_accvgpr_write_b32 %s, %s" % (a(A_ONE + i), v(X0)))
    A("v_accvgpr_write_b32 %s, %s" % (a(A_ONE + 4 + i), v(X1)))
    A("v_mov_b32 %s, 0" % v(V_Z + i))
LN = 24
A("v_bfe_u32 %s, v22, 2, 1" % v(X0))
A("v_lshrrev_b32 %s, 5, v22" % v(X1))
A("v_xor_b32 %s, %s, %s" % (v(X0), v(X0), v(X1)))
A("v_bfe_u32 %s, v22, 3, 2" % v(X1))
A("v_bfe_u32 %s, v22, 1, 1" % v(X2))
A("v_lshl_add_u32 %s, %s, 1, %s" % (v(X1), v(X1), v(X2)))
A("v_lshl_add_u32 %s, %s, 4, %s" % (v(X1), v(X0), v(X1)))
A("v_and_b32 %s, 1, v22" % v(X2))
A("v_lshlrev_b32 %s, 4, %s" % (v(X2), v(X2)))
A("v_mov_b32 %s, 0x3e03" % v(LN + 1))
A("v_mov_b32 %s, 0xb9d8" % v(LN + 2))
A("v_lshlrev_b32 %s, %s, %s" % (v(LN + 1), v(X2), v(LN + 1)))
A("v_lshlrev_b32 %s, %s, %s" % (v(LN + 2), v(X2), v(LN + 2)))
for r in range(8):
    A("v_cmp_eq_u32 vcc, %d, %s" % (r, v(X1)))
    A("s_nop 1")
    A("v_cndmask_b32 %s, 0, %s, vcc" % (v(LN + 3), v(LN + 1)))
    A("v_cndmask_b32 %s, 0, %s, vcc" % (v(LN + 4), v(LN + 2)))
    A("v_accvgpr_write_b32 %s, %s" % (a(A_PS + r), v(LN + 3)))
    A("v_accvgpr_write_b32 %s, %s" % (a(A_PS + 8 + r), v(LN + 4)))
if opt("tls"): tl(A)
for g in (2, 3):
    A("s_cmp_le_u32 %s, %d" % (s(S_NNQ), g)); A("s_cbranch_scc1 L_qdone")
    A.ext(qgroup(g))
A.label("L_qdone")
if opt("tls"): tl(A)
A.ext(task_setup())
MAXT = max(len(x) for x in plan)
for t in range(MAXT): A.ext(onm_ops(t))
A(lzero())
Fs = sorted(needF)
for N in Fs[:-1]:
    A("s_cmp_eq_u32 %s, %d" % (s(S_NQ), N)); A("s_cbranch_scc1 L_f%d" % N)
def qnext_items():
    it = []
    for g in range(4):
        q = qgroup(g)
        for k in range(4):
            pre = []
            if g >= 2 and k == 0:
                pre = ["s_cmp_le_u32 %s, %d" % (s(S_NNQ), g), "s_cselect_b32 %s, 0, %s" % (s(SRD_F + 2), s(SRD_F + 2))]
            it.append(pre + [q[4 * k]]); it.append([q[4 * k + 2], q[4 * k + 3]])
    return it
def weave(va, items, first=0):
    out = []
    step = max(1, (len(va) - first) // (len(items) + 1))
    items = list(items)
    for i, l in enumerate(va):
        out.append(l)
        if i >= first and (i - first) % step == 0 and items: out += items.pop(0)
    assert not items
    return out
def pvalu(b, N, raw):
    va = rowmax(b, N, True) + crossmax(N)
    if raw: va += ["v_mul_f32 %s, %s, %s" % (v(V_T + q), s(S_C), v(V_T + q)) for q in range(N)]
    va += ["v_sub_f32 %s, 0, %s" % (v(CI + 8 * q), v(V_T + q)) for q in range(N)]
    for i in range(8 * N):
        if raw: va.append("v_fma_f32 %s, %s, %s, -%s" % (v(b + i), v(b + i), s(S_C), v(V_T + (i >> 3))))
        else: va.append("v_sub_f32 %s, %s, %s" % (v(b + i), v(b + i), v(V_T + (i >> 3))))
        if 1 <= (i & 7) < 4: va.append("v_mov_b32 %s, %s" % (v(CI + i), v(CI + (i & ~7))))
    va += flat_sm([op for p, op in softmax_ops(b, N) if p < GAPS(N)])
    return va
def pvalu_q(b, N, q):
    r = b + 8 * q; t = V_T + q; u_ = V_U + q
    va = ["v_max3_f32 %s, %s, %s, %s" % (v(t), v(r), v(r + 1), v(r + 2)), "v_max3_f32 %s, %s, %s, %s" % (v(u_), v(r + 3), v(r + 4), v(r + 5)),
          "v_max3_f32 %s, %s, %s, %s" % (v(t), v(t), v(r + 6), v(r + 7)), "v_max_f32 %s, %s, %s" % (v(t), v(t), v(u_))]
    for w in (32, 16):
        va += ["v_mov_b32 %s, %s" % (v(u_), v(t)), "s_nop 1", "v_permlane%d_swap_b32 %s, %s" % (w, v(t), v(u_)), "v_max_f32 %s, %s, %s" % (v(t), v(t), v(u_))]
    va += ["v_sub_f32 %s, %s, %s" % (v(r + i), v(r + i), v(t)) for i in range(8)]
    va += ["v_sub_f32 %s, 0, %s" % (v(CI + 4 * q + i), v(t)) for i in range(4)]
    va += flat_sm([op for p, op in softmax_ops(b, N) if p < GAPS(N) and opq(op, b) == q])
    return va
def qk0(b, i):
    m_ = qk_mfma(b, i)
    return m_[:m_.rindex(",")] + ", 0" if (i & 3) == 0 else m_
def under(A, mm, va):
    per = -(-len(va) // len(mm)) if va else 0
    for m_ in mm:
        A.ext(m_ if isinstance(m_, list) else [m_]); A.ext(va[:per]); va = va[per:]
def first(A, N):
    qr = q_reads()
    b = S_BUF[0]
    S1 = int(optv("s1at", "1"))
    st_ = {"issued": 0}
    def fetch(q):
        if q == max(0, N - S1):
            A.ext(stream_flat(1)); st_["issued"] = 4
        if opt("tls"): tl(A)
        A("s_waitcnt vmcnt(%d)" % (st_["issued"] + 4 * (N - 1 - q)))
        if opt("tls"): tl(A)
        A.ext(qr[4 * q:4 * q + 4])
        if q == N - 1:
            tl(A)
            stamp(A, 1, True)
    fetch(0)
    A("s_barrier")
    for f in range(8): A(k_read(f, HALF))
    for q in range(N):
        last = q == N - 1
        A("s_waitcnt lgkmcnt(%d)" % (8 if q == 0 else 0))
        sg = stream_groups(2) if last else [[]] * 10
        mm = ps_mfmas(2 * q) + ps_mfmas(2 * q + 1)
        va = pvalu_q(b, N, q - 1) if q else []
        A.ext(mm[:2]); A("s_nop 3")
        under(A, [[m_] + sg[i] for i, m_ in enumerate(mm[2:])], va)
        A.ext(sg[6] + ["s_nop 0"] + sg[7] + sg[8] + sg[9] + (["s_nop 6"] if q == 0 else []))
        A.ext(ps_cvts(2 * q)); A(ozero(2 * q))
        A.ext(ps_cvts(2 * q + 1)); A(ozero(2 * q + 1))
        A("s_waitcnt lgkmcnt(0)" if q == 0 else "s_nop 0")
        for i in range(8):
            A(qk0(b, 8 * q + i))
            if last: A(k_read(i, 0))
        if not last: fetch(q + 1)
    A("s_nop 6")
    A.ext(weave(pvalu_q(b, N, N - 1), [[x] for x in aux_ops()] + stream_groups(3)))
    tl_pre(A)
    A("s_waitcnt vmcnt(9) lgkmcnt(0)")
    if DG: A("s_memrealtime s[50:51]")
    if (N, True) in needN:
        A("s_cmp_lg_u32 %s, 0" % s(S_NNR))
        A("s_cbranch_scc1 L_itb%dx_1" % N)
    A("s_branch L_itb%d%s_1" % (N, "" if (N, False) in needN else "x"))
first(A, Fs[-1])
for N in Fs[:-1]:
    A.label("L_f%d" % N)
    first(A, N)
def dispatchP(A, u):
    Ns = sorted(N for (p, N) in needP if p == u)
    for N in Ns[:-1]:
        A("s_cmp_eq_u32 %s, %d" % (s(S_NQ), N)); A("s_cbranch_scc1 L_p%d_%d" % (N, u))
    A("s_branch L_p%d_%d" % (Ns[-1], u))

def pphase(A, u, N):
    b = S_BUF[u & 1]
    mv = ["v_accvgpr_mov_b32 %s, %s" % (a(A_ONM + i), a(A_ONM + 8 + i)) for i in range(8 * (MAXT - 1))]
    A.ext(mv)
    for i in range(8 * N): A(qk0(b, i))
    for f in range(8): A(k_read(f, u * SZ))
    A(lzero())
    for q in range(N): A.ext(pvalu_q(b, N, q))
    tl_pre(A)
    A("s_waitcnt lgkmcnt(0)")

for (N, aux) in sorted(needN, reverse=True):
    X = "%d%s" % (N, "x" if aux else "")
    A(".p2align 6")
    phase = int(optv("al", "1"))
    for _ in range(phase): A("s_nop 0")
    for u in (1, 2, 3, 0):
        A.label("L_itb%s_%d" % (X, u))
        tl_post(A)
        A("s_nop 0" if (opt("nobar") or (opt("bar2") and u & 1)) else "s_barrier")
        i0 = len(A.lines)
        iteration(A, u, N, aux)
        def isz(l):
            op = l.split()[0]
            if op.startswith(("v_mfma", "v_smfmac", "ds_", "buffer_", "v_cvt")): return 8
            if op == "s_add_u32" and l.split(",")[-1].strip().isdigit() and int(l.split(",")[-1]) > 64: return 8
            return 4
        phase = (phase + (8 + (20 if TL else 0) + sum(isz(l) for l in A.lines[i0:])) // 4) % 8
        k = {0: 1, 7: 2}.get(phase, 0)
        ex = [i for i in range(i0, len(A.lines)) if A.lines[i].startswith("v_exp_f32 ")]
        for j in range(k):
            i = ex[(2 * j + 1) * len(ex) // (2 * k)]
            A.lines[i] = A.lines[i].replace("v_exp_f32 ", "v_exp_f32_e64 ")
        phase = (phase + k) % 8
        if u != 0: A("s_cbranch_scc1 L_sp%s_%d" % (X, (u + 1) % 4))
        else: A("s_cbranch_scc0 L_itb%s_1" % X)
    for u in (1, 2, 3, 0):
        A.label("L_sp%s_%d" % (X, u))
        mine = [x for x in needE3 if x[:2] == (u, N) and (x[2] > 0) == aux]
        if mine:
            A("s_cmp_eq_u32 %s, 0" % s(S_CNT))
            A("s_cbranch_scc1 L_e%s_%d" % (X, u))
        if aux:
            A("s_cmp_eq_u32 %s, 2" % s(S_CNT))
            A("s_cbranch_scc1 L_sv%s_%d" % (X, u))
            A(smov(SRD_K + 2, S_NNR)); A(smov(S_KOFF, S_NKB))
        A("s_mov_b32 %s, %d" % (s(S_HT), 2 if aux else 0))
        if mine and not opt("norw"):
            A("s_mov_b32 %s, L_e%s_%d-L_pc" % (s(S_T0), X, u))
            if aux:
                for w_, lab in ((1, "L_e%s_%d-L_pc+8192" % (X, u)), (2, "L_e%s_%d-L_pc+16384" % (X, u))):
                    A("s_cmp_eq_u32 %s, %d" % (s(S_W), w_))
                    A("s_cselect_b32 %s, %s, %s" % (s(S_T0), lab, s(S_T0)))
            if aux:
                nxs = sorted({x[2] for x in mine})
                A("s_mov_b32 %s, L_itb%d_1-L_pc" % (s(S_T1), nxs[0]))
                for nx in nxs[1:]:
                    A("s_cmp_eq_u32 %s, %d" % (s(S_NNQ), nx))
                    A("s_cselect_b32 %s, L_itb%d_1-L_pc, %s" % (s(S_T1), nx, s(S_T1)))
                A("s_cmp_eq_u32 %s, 3" % s(S_W))
                A("s_cselect_b32 %s, %s, %s" % (s(S_T0), s(S_T1), s(S_T0)))
            A("v_mbcnt_lo_u32_b32 %s, -1, 0" % v(V_U))
            A("v_mbcnt_hi_u32_b32 %s, -1, %s" % (v(V_U), v(V_U)))
            A("v_lshl_add_u32 %s, %s, 7, %s" % (v(V_U), v(V_U), s(S_T0)))
            A("v_min_u32 %s, L_table-L_pc, %s" % (v(V_U), v(V_U)))
            A("global_load_dword %s, %s, s[74:75]" % (v(V_T4), v(V_U)))
        A("s_branch L_itb%s_%d" % (X, u))
        if aux:
            A.label("L_sv%s_%d" % (X, u))
            A(smov(SRD_V + 2, S_NNR)); A(smov(S_VOFF, S_NKB)); A("s_mov_b32 %s, 0" % s(S_HT))
            A("s_branch L_itb%s_%d" % (X, u))
A.label("L_late")

def norm_q2(q2):
    out = []
    for j in range(8 + 2):
        if j < 8:
            r = oreg(q2, j)
            out += ["v_mul_f32 %s, %s, %s" % (v(r + i), v(V_I + q2), v(r + i)) for i in range(4)]
        if 1 <= j < 9:
            r = oreg(q2, j - 1)
            out.append("v_cvt_pk_bf16_f32 %s, %s, %s" % (v(r), v(r), v(r + 1)))
            out.append("v_cvt_pk_bf16_f32 %s, %s, %s" % (v(r + 1), v(r + 2), v(r + 3)))
        if j >= 2:
            r = oreg(q2, j - 2)
            out.append("ds_write_b64 %s, %s offset:%d" % (v(V_EW), v(r, 2), 16 * 272 * q2 + 32 * (j - 2)))
    return out
def lfinal(N, dense=False):
    if dense: o = ["v_accvgpr_read_b32 %s, %s" % (v(V_T + q), a(A_LS + 4 * q)) for q in range(N)]
    else:
        o = ["v_accvgpr_read_b32 %s, %s" % (v(V_T + q), a(A_LS + 2 * q)) for q in range(N)]
        o += ["v_accvgpr_read_b32 %s, %s" % (v(V_U + q), a(A_LS + 2 * q + 1)) for q in range(N & ~1)]
        o += ["v_add_f32 %s, %s, %s" % (v(V_T + q), v(V_T + q), v(V_U + q)) for q in range(N & ~1)]
    for q in range(N):
        o += ["v_cmp_nge_f32 vcc, 0x44800000, %s" % v(V_T + q), "v_rcp_f32 %s, %s" % (v(V_I + q), v(V_T + q)), "s_nop 0",
              "s_mov_b64 %s, vcc" % s(S_BAD, 2) if q == 0 else "s_or_b64 %s, %s, vcc" % (s(S_BAD, 2), s(S_BAD, 2))]
    if N == 1: o.append("s_cmp_lg_u64 %s, 0" % s(S_BAD, 2))
    o += [smov(S_T2, S_QOFF)]
    return o
def readback(k, reg): return "ds_read_b128 %s, %s offset:%d" % (v(reg, 4), v(V_ER), 4 * 272 * k)
def store(reg, w):
    return ["s_waitcnt lgkmcnt(%s)" % w,
            "buffer_store_dwordx4 %s, %s, %s, %s offen%s" % (v(reg, 4), v(V_SO), s(SRD_O, 4), s(S_T2), STMOD),
            sadd(S_T2, S_T2, 16384)]
def psg(g, dst):
    d = v(dst, 16)
    mm = ["%s %s, %s, %s, %s" % (M32, d, a(A_PS + m, 4), a(A_QR + 8 * g + 4 * fr, 4), "0" if k == 0 else d) for k, (m, fr) in enumerate(((0, 0), (4, 1), (8, 0), (12, 1)))]
    cv = ["v_cvt_pk_bf16_f32 %s, %s, %s" % (v(dst + i), v(dst + 2 * i), v(dst + 2 * i + 1)) for i in range(8)]
    cv += ["v_accvgpr_write_b32 %s, %s" % (a(A_Q + 8 * g + i), v(dst + i)) for i in range(8)]
    return mm, cv
def ephase(A, u, N, NX):
    cur, nxt = S_BUF[1 - (u & 1)], S_BUF[u & 1]
    RB = [CI, CI + 16, CI, CI + 16]
    rd = []
    for db in range(8): rd += [v_read(db, 0, u * SZ), v_read(db, 1, u * SZ)]
    sm = flat_sm([op for p, op in softmax_ops(cur, N) if p >= GAPS(N)])
    lq = min([opq(op, cur) for op in sm if op.startswith("v_")] + [N])
    sums = sum((sums_after(cur, N, q, A_ONM) for q in range(lq)), [])
    while rd or sm:
        if sums: A(sums.pop(0))
        if rd: A(rd.pop(0))
        if sm: A(sm.pop(0))
    A("s_nop 1")
    for q in range(lq, N): A.ext(sums_after(cur, N, q, A_ONM))
    qn = q_reads(NX)
    sg = stream_groups((u + 3) % 4) if NX else [[]] * 10
    if opt("tlx"): tl(A)
    A("s_waitcnt lgkmcnt(8)")
    for db in range(4):
        A(pv_mfma(cur, 0, db)); A.ext(sg[db])
    A("s_waitcnt lgkmcnt(0)")
    for db in range(4, 8):
        A(pv_mfma(cur, 0, db)); A.ext(sg[db]); A.ext(qn[NX * (db - 4):NX * (db - 3)])
    A.ext(sg[8] + sg[9])
    if not NX: A("s_nop 1")
    A.ext(lfinal(N))
    A("s_cbranch_scc1 L_es%d_%d" % (N, u & 1))
    if NX: A("s_waitcnt vmcnt(8) lgkmcnt(0)")
    X = []
    ystart = 0
    for q2 in range(N):
        if opt("tlx"): X.append("#TL")
        nb = norm_q2(q2)
        pv = [pv_mfma(cur, q2 + 1, db) for db in range(8)] if q2 + 1 < N else []
        nw = 0; kst = 0
        for i, l in enumerate(nb):
            if i % int(optv('pvs', '4')) == 0 and pv: X.append(pv.pop(0))
            X.append(l)
            if l.startswith("ds_write"):
                nw += 1
                if q2 > 0 and kst < 4 and str(nw) in optv('stp', '1357'):
                    X += store(oreg(q2 - 1, 0) + 4 * kst, None); kst += 1
        for k in range(4): X.append(readback(4 * q2 + k, oreg(q2, 0) + 4 * k))
        if q2 == 0 and N == 4: ystart = len(X)
        if 1 <= q2 <= NX:
            X.append(ozero(2 * q2 - 2))
            if not (N == 4 and q2 == 1): X.append(ozero(2 * q2 - 1))
    Y = []
    zlast = []
    if NX:
        DS = [CI + 16, O + 32 * N if N < 4 else O + 16]
        P_ = [psg(g, DS[g & 1]) for g in range(2 * NX)]
        one = lambda l: [[x] for x in l]
        quad = lambda l: [l[i:i + 3] for i in range(0, len(l), 3)]
        def zipm(mm, va):
            o = []
            per = -(-len(va) // len(mm))
            for m_ in mm:
                o.append(m_ if isinstance(m_, list) else [m_]); o += quad(va[:per]); va = va[per:]
            return o
        setup = [smov(S_TASK, S_TASK + 1), "s_mov_b32 %s, 0" % s(S_TASK + 1), sadd(S_TI, S_TI, 1)] + \
                [x for x in task_setup(False) if not x.startswith("s_mov_b32 %s," % s(SRD_O + 2))]
        mv = ["v_accvgpr_mov_b32 %s, %s" % (a(A_ONM + i), a(A_ONM + 8 + i)) for i in range(8)]
        Y += zipm(P_[0][0], setup) + zipm(P_[1][0], mv) + [[lzero()]] + quad(P_[0][1])
        for q in range(1, NX + 1):
            pvq = pvalu_q(nxt, NX, q - 2) if q >= 2 else []
            if q < NX: Y += zipm(P_[2 * q][0], pvq[:12] + P_[2 * q - 1][1])
            else: Y += quad(pvq[:12] + P_[2 * q - 1][1])
            mm = [[qk0(nxt, 8 * (q - 1) + i)] + ([k_read(i, u * SZ)] if q == NX else []) for i in range(8)]
            mm[0] = ["s_nop 1"] + mm[0]
            if q < NX: mm += P_[2 * q + 1][0]
            Y += zipm(mm, pvq[12:]) if pvq[12:] else [m_ if isinstance(m_, list) else [m_] for m_ in mm]
            if q < NX: Y += quad(P_[2 * q][1])
        Y += [["s_nop 6"]] + quad(pvalu_q(nxt, NX, NX - 1))
        zlast = [ozero(g) for g in range(2 * (N - 1), 2 * NX)] + ([ozero(1)] if N == 4 else [])
    X += ["#ST%d" % k for k in range(4)]
    M = []
    acc = 0.
    rate = len(Y) / float(len(X) - ystart)
    for i, l in enumerate(X):
        if l.startswith("#ST"): M += store(oreg(N - 1, 0) + 4 * int(l[3:]), None)
        else: M.append(l)
        if i >= ystart:
            acc += rate
            while acc >= 1 and Y and not M[-1].startswith("s_waitcnt"):
                M += Y.pop(0); acc -= 1
    for y in Y: M += y
    for i, l in enumerate(M):
        if l == "s_waitcnt lgkmcnt(None)":
            reg = M[i + 1].split()[1]
            j = max(k for k in range(i) if M[k].startswith("ds_read_b128 " + reg))
            M[i] = "s_waitcnt lgkmcnt(%d)" % min(15, sum(1 for k in range(j + 1, i) if M[k].startswith("ds_")))
    eab = [k for k in optv("eab", "").split(",") if k]
    for l in M:
        if l == "#TL": tl(A)
        elif any(l.startswith(k) for k in eab): pass
        else: A(l)
    A.ext(zlast)
    if NX:
        A(smov(SRD_O + 2, S_NR))
        tl(A); tl_pre(A)
        A("s_waitcnt lgkmcnt(0)")
        A("s_branch L_itb%d_%d" % (NX, (u + 1) % 4))
    else:
        A("s_branch L_fin" if (STAMPS or DG) else "s_endpgm")
for (u, N, aux) in sorted({(x[0], x[1], x[2] > 0) for x in needE3}, key=lambda x: (-x[1], x[0])):
    A.label("L_e%d%s_%d" % (N, "x" if aux else "", u))
    stamp(A, 2, True)
    A("s_mov_b32 %s, %d" % (s(S_PH), u))
    if DG: A("s_memrealtime s[52:53]")
    tl_post(A)
    A("s_barrier")
    NXs = sorted(x[2] for x in needE3 if x[:2] == (u, N) and (x[2] > 0) == aux)
    for NX in NXs[1:]:
        A("s_cmp_eq_u32 %s, %d" % (s(S_NNQ), NX)); A("s_cbranch_scc1 L_e%d_%d_%d" % (N, u, NX))
    for NX in NXs:
        A.label("L_e%d_%d_%d" % (N, u, NX))
        ephase(A, u, N, NX)
A.label("L_cold")
for u in range(4):
    A.label("L_adv%d" % u)
    stamp(A, 3, True)
    if any(p == u for (p, N) in needP):
        A("s_cmp_eq_u32 %s, 0" % s(S_TASK + 1))
        A("s_cbranch_scc1 L_fin")
        A(smov(S_TASK, S_TASK + 1)); A(smov(S_TASK + 1, S_TASK + 2)); A("s_mov_b32 %s, 0" % s(S_TASK + 2))
        A(sadd(S_TI, S_TI, 1))
        A.ext(task_setup())
        tl(A)
        dispatchP(A, u)
    else:
        A("s_branch L_fin")
    for N in sorted(N for (p, N) in needP if p == u):
        A.label("L_p%d_%d" % (N, u))
        pphase(A, u, N)
        A("s_branch L_itb%d_%d" % (N, (u + 1) % 4))
A.label("L_fin")
if DG:
    kind, lo, hi = DG.split(",")
    A("s_waitcnt vmcnt(0)")
    A("s_memrealtime s[54:55]")
    A("s_waitcnt lgkmcnt(0)")
    A({"s": "s_sub_u32 s56, s50, s48", "e": "s_sub_u32 s56, s54, s52", "l": "s_sub_u32 s56, s54, s48"}[kind])
    A("s_lshl_b32 s56, s56, %d" % (0 if kind == "l" else 2))
    A("s_cmp_ge_u32 s2, %s" % lo); A("s_cselect_b32 s56, s56, 0")
    A("s_cmp_lt_u32 s2, %s" % hi); A("s_cselect_b32 s56, s56, 0")
    A("s_add_u32 s56, s56, 4000")
    A.label("L_spin")
    A("s_memrealtime s[58:59]"); A("s_waitcnt lgkmcnt(0)"); A("s_sub_u32 s58, s58, s48"); A("s_cmp_lt_u32 s58, s56"); A("s_cbranch_scc1 L_spin")
if STAMPS:
    A("s_waitcnt vmcnt(0)")
    stamp(A, 4)
    A("s_mov_b64 %s, s[26:27]" % s(S_ST + 12, 2))
    A("s_memrealtime %s" % s(S_ST + 14, 2))
    A("s_getreg_b32 %s, hwreg(HW_REG_XCC_ID)" % s(S_ST + 10))
    A("s_getreg_b32 %s, hwreg(HW_REG_HW_ID)" % s(S_ST + 11))
    A("s_waitcnt lgkmcnt(0)")
    A("s_cmp_eq_u32 %s, 0" % s(S_W))
    A("s_cbranch_scc0 L_end")
    for i in range(16): A("v_mov_b32 %s, %s" % (v(16 + i), s(S_ST + i)))
    for i in range(16): A("v_mov_b32 v%d, 0" % (32 + i))
    if TL:
        A("s_lshl_b32 %s, s2, 8" % s(S_T0))
        A("s_add_u32 %s, %s, 0x100000" % (s(S_T0), s(S_T0)))
        A("v_mbcnt_lo_u32_b32 v48, -1, 0"); A("v_mbcnt_hi_u32_b32 v48, -1, v48"); A("v_lshlrev_b32 v48, 2, v48")
        A("buffer_store_dword %s, v48, %s, %s offen" % (v(V_TL), s(SRD_W, 4), s(S_T0)))
    A("s_lshl_b32 %s, s2, 7" % s(S_T0))
    A("v_mov_b32 v48, 0")
    A("s_mov_b64 exec, 1")
    for i in range(8):
        A("buffer_store_dwordx4 %s, v48, %s, %s offen offset:%d" % (v(16 + 4 * i, 4), s(SRD_W, 4), s(S_T0), 16 * i))
A("s_endpgm")

for (par, N) in sorted({(u & 1, N) for (u, N) in needE}):
    A.label("L_es%d_%d" % (N, par))
    for q2 in range(1, N):
        for db in range(8): A(pv_mfma(S_BUF[1 - par], q2, db))
    A("s_branch L_slow")
A.label("L_slow")
A("s_waitcnt vmcnt(8) lgkmcnt(0)")
A("s_nop 7")
for q2 in range(4): A.ext(norm_q2(q2))
A("s_cmp_eq_u32 %s, 0" % s(S_FB))
A("s_cbranch_scc0 L_sstore")
A("s_mov_b64 %s, 0" % s(S_BAD, 2))
for q2 in range(4):
    if q2 >= 1:
        A("s_cmp_le_u32 %s, %d" % (s(S_NQ), q2)); A("s_cbranch_scc1 L_sdec")
    for k in range(4): A(readback(4 * q2 + k, 16 + 4 * k))
    A("v_cmp_ngt_f32 vcc, 0x71800000, %s" % v(V_T + q2))
    A("v_mov_b32 %s, 0" % v(V_U))
    A("s_nop 0")
    A("s_or_b64 %s, %s, vcc" % (s(S_BAD, 2), s(S_BAD, 2)))
    A("s_waitcnt lgkmcnt(0)")
    for k in range(8): A("v_pk_maximum3_f16 %s, %s, %s, %s" % (v(V_U), v(V_U), v(16 + 2 * k), v(17 + 2 * k)))
    A("v_and_b32 %s, 0x7c00, %s" % (v(V_U + 1), v(V_U)))
    A("v_and_b32 %s, 0x7c000000, %s" % (v(V_U + 2), v(V_U)))
    for c_ in ("v_cmp_eq_u32 vcc, 0x7c00, %s" % v(V_U + 1), "v_cmp_eq_u32 vcc, 0x7c000000, %s" % v(V_U + 2)):
        A(c_); A("s_nop 1"); A("s_or_b64 %s, %s, vcc" % (s(S_BAD, 2), s(S_BAD, 2)))
A.label("L_sdec")
A("s_cmp_lg_u64 %s, 0" % s(S_BAD, 2))
A("s_cbranch_scc1 L_fb")
A.label("L_sstore")
A(smov(S_T2, S_QOFF))
for q2 in range(4):
    if q2 >= 1:
        A("s_cmp_le_u32 %s, %d" % (s(S_NQ), q2)); A("s_cbranch_scc1 L_sret")
    for k in range(4): A(readback(4 * q2 + k, 16 + 16 * q2 + 4 * k))
    for k in range(4): A.ext(store(16 + 16 * q2 + 4 * k, 3 - k))
A.label("L_sret")
for g in range(8): A.ext(ps_mfmas(g))
A("s_nop 15")
for g in range(8):
    A.ext(ps_cvts(g)); A(ozero(g))
for u in range(3):
    A("s_cmp_eq_u32 %s, %d" % (s(S_PH), u)); A("s_cbranch_scc1 L_adv%d" % u)
A("s_branch L_adv3")
A.label("L_fb")
A("s_mov_b32 %s, 1" % s(S_FB))
FV, FKO, FVO = 48, 49, 50
S_FOFF, S_FCNT = S_L, S_CNT
A("s_sub_u32 %s, %s, %d" % (s(S_T0), s(S_PRIV), HALF))
A("v_add_u32 %s, %s, %s" % (v(FV), s(S_T0), v(V_VA)))
A("s_lshl_b32 %s, %s, 14" % (s(S_T0), s(S_W)))
A("v_subrev_u32 %s, %s, %s" % (v(FKO), s(S_T0), v(V_KVO)))
A("s_lshl_b32 %s, %s, 12" % (s(S_T0), s(S_W)))
A("v_subrev_u32 %s, %s, %s" % (v(FVO), s(S_T0), v(V_VVO)))
A(smov(SRD_F + 2, S_NR))
def fb_load(A, vo, ptr, step):
    A(smov2(SRD_F, ptr)); A(smov(S_T4, S_FOFF))
    for n in range(8):
        A(m0(n * PS, S_PRIV))
        A(sadd(S_T4, S_T4, step) if n else "s_nop 0")
        A(dma(vo, SRD_F, S_T4))
    A("s_waitcnt vmcnt(0)")
def fb_qk(A, tag):
    A("s_cmp_eq_u32 %s, 1" % s(S_FCNT)); A("s_cbranch_scc0 L_fbnm%s" % tag)
    A.ext(mask_ops())
    A.label("L_fbnm%s" % tag)
    fb_load(A, FKO, P_K, 16384)
    for f in range(8): A(k_read(f, 0, V_QA0, a(A_VF + 4 * f, 4)))
    A("s_waitcnt lgkmcnt(0)")
    for i in range(32): A(qk_mfma(S_BUF[0], i, False, A_VF))
    A("s_nop 15")
for i in range(32): A("v_mov_b32 %s, 0" % v(CI + i))
for q in range(4): A("v_mov_b32 %s, 0xff800000" % v(V_T + q))
for g in range(8): A(ozero(g))
A(lzero())
A(smov(S_FOFF, S_KBASE)); A(smov(S_FCNT, S_N))
A.label("L_fb1")
fb_qk(A, "1")
A.ext(rowmax(S_BUF[0], 4, False))
A(sadd(S_FOFF, S_FOFF, BLK))
A("s_sub_u32 %s, %s, 1" % (s(S_FCNT), s(S_FCNT))); A("s_cmp_eq_u32 %s, 0" % s(S_FCNT)); A("s_cbranch_scc0 L_fb1")
A.ext(crossmax(4))
for i in range(32): A("v_sub_f32 %s, 0, %s" % (v(CI + i), v(V_T + (i >> 3))))
A(smov(S_FOFF, S_KBASE)); A(smov(S_FCNT, S_N))
A.label("L_fb2")
fb_qk(A, "2")
A.ext(flat_sm([op for p, op in softmax_ops(S_BUF[0], 4)]))
fb_load(A, FVO, P_V, 4096)
for db in range(8):
    A(v_read(db, 0, 0, FV)); A(v_read(db, 1, 0, FV))
A("s_waitcnt lgkmcnt(0)")
for q2 in range(4):
    for db in range(8): A(pv_mfma(S_BUF[0], q2, db))
    A(sum_mfma(S_BUF[0], q2))
A("s_nop 15")
A(sadd(S_FOFF, S_FOFF, BLK))
A("s_sub_u32 %s, %s, 1" % (s(S_FCNT), s(S_FCNT))); A("s_cmp_eq_u32 %s, 0" % s(S_FCNT)); A("s_cbranch_scc0 L_fb2")
A.ext(lfinal(4, True))
A("s_branch L_slow")
A.label("L_end")
A("s_endpgm")

errs = check_hazards(A.lines)
for e in errs: print(e, file=sys.stderr)
if errs and not opt("force"): sys.exit(1)

hdr = open("standalone__varlen_attn_packed__ragged.s.ref").read().split("\n")
hdr = [l for l in hdr[:10] if l.startswith(";") and "@launch" not in l]
out = "\n".join(hdr) + "\n; @launch grid=(%d,1,1) block=(256,1,1) lds=%d\n" % (GRID, LDS)
out += '.amdgcn_target "amdgcn-amd-amdhsa--gfx950"\n.text\n.globl %s\n.p2align 8\n.type %s,@function\n' % (NAME, NAME)
out += A.text()
out += ".p2align 6\n.type L_table,@object\nL_table:\n"
for j, ent in enumerate(table):
    w = [t[0] | (t[1] << 13) | (t[2] << 23) | (t[3] << 27) | (t[4] << 30) for t in ent] + [0] * (4 - len(ent))
    t = ent[0]
    kb_ = (t[0] << 12) + (t[4] << 8)
    w += [kb_, (t[0] + t[1]) << 12, kb_ + (t[2] << 18), (16 * t[3] - 4) << 12]
    out += ".long " + ", ".join("0x%08x" % x for x in w) + "\n"
out += """.section .rodata,"a"
.p2align 6
.amdhsa_kernel %s
  .amdhsa_next_free_vgpr 512
  .amdhsa_next_free_sgpr 102
  .amdhsa_accum_offset 256
  .amdhsa_group_segment_fixed_size 0
  .amdhsa_kernarg_size 56
  .amdhsa_user_sgpr_count 2
  .amdhsa_user_sgpr_kernarg_segment_ptr 1
  .amdhsa_system_sgpr_workgroup_id_x 1
.end_amdhsa_kernel
""" % NAME
sys.stdout.write(out)
```

```python
import sys, struct, math
from asmlib import Asm, check_hazards
import schedA

def opt(x): return ("--" + x) in sys.argv
def optv(x, d):
    for a_ in reversed(sys.argv):
        if a_.startswith("--" + x + "="): return a_.split("=")[1]
    return d
DEF = {("sm", 1): "11", ("dw", 1): "0,9", ("vend", 1): "-1", ("kend", 1): "4",
       ("kendx", 3): "8", ("radx", 3): "1", ("dwx", 4): "20,48", ("vendx", 4): "-1", ("kbegx", 4): "7", ("radx", 4): "2", ("saluxx", 4): "0", ("abx", 4): "20", ("aex", 4): "10",
       ("dwx", 2): "8,20", ("vendx", 2): "-1", ("kendx", 2): "5",
       ("dw", 4): "26,48", ("vend", 4): "-1", ("kbeg", 4): "7", ("rad", 4): "2", ("salux", 4): "0", ("kend", 3): "8", ("kend", 2): "5", ("sm", 3): "28", ("dw", 3): "6,20", ("rad", 3): "1", ("tp", 3): "7,5,5,3,3", ("vend", 3): "2",
       ("sm", 2): "19", ("dw", 2): "11,24", ("vend", 2): "0", ("salux", 2): "1"}
def optn(x, N, d): return optv("%s%d" % (x, N), optv(x, DEF.get((x, N), d)))
STAMPS = opt("stamps"); TL = opt("tl")
NAME = "standalone__varlen_attn_packed__ragged_kernel"
HALF = 8704; PS = 1056; SZ = 2 * HALF
PRIV = 4 * SZ
LDS = 8 * SZ
BLK = 32 * 4096
GRID = 256
plan0 = getattr(schedA, optv("plan", "PD1"))
late = [len(b[0]) > 2 and b[0][2] for b in plan0]
plan = [[x[:2] for x in b] for b in plan0]
table = schedA.build(plan, not opt("nocheck"))
STMOD = " " + optv("stmod", "sc0+sc1").replace("+", " ")
EL = not opt('noel')
needP, needE, needN, needF, needE3 = set(), set(), set(), set(), set()
for bin_ in plan:
    assert len(bin_) <= 2
    for x, y in zip(bin_, bin_[1:]): assert x[0] >= 3 + 4 * y[1], bin_
for bin_ in plan:
    ph = 0
    for ti, (n, N) in enumerate(bin_):
        if ti: needP.add((ph, N))
        else: needF.add(N)
        needN.add((N, ti + 1 < len(bin_)))
        ph = (ph + n - (1 if (ti + 1 == len(bin_) and EL) else 0)) & 3
        needE.add((ph, N))
        needE3.add((ph, N, bin_[ti + 1][1] if ti + 1 < len(bin_) else 0))

V_KA0, V_KA1, V_VA, V_KVO, V_KVO2, V_VVO, V_VVO2, V_G4, V_QA0, V_QA1, V_EW, V_ER, V_SO, V_T4, V_T5 = range(1, 16)
V_TL = 0
S_BUF = [16, 48]
CI = 80
V_T = 112
V_U = 116
V_I = 120
V_Z = 124
V_IDX, V_SG, V_SA = V_T5, 109, 110
O = 128
A_Q, A_QR, A_KF, A_VF, A_PS, A_LS, A_ONE, A_ONM = 0, 64, 128, 160, 192, 208, 224, 232
SRD_F, SRD_K, SRD_V, SRD_O, SRD_W = 4, 8, 12, 16, 20
(S_KOFF, S_VOFF, S_WBASE, S_CNT, S_HT, S_PRIV, S_QOFF, S_NV, S_N, S_L, S_T0, S_T1, S_T2, S_T3,
 S_KBASE, S_NR, S_PH, S_HOFF, S_FB, S_TI) = range(28, 48)
S_ST = 48
P_Q, P_K, P_V, P_O = 64, 66, 68, 70
S_TASK = 80
S_BAD = 84
S_T4, S_W, S_NQ, S_NKB, S_NNR, S_NQB, S_NNQ, S_C, S_QM, S_QME, S_BLK = 86, 87, 88, 89, 90, 91, 93, 98, 99, 100, 101
S_T4E = 96

def v(i, n=1): return "v%d" % i if n == 1 else "v[%d:%d]" % (i, i + n - 1)
def a(i, n=1): return "a%d" % i if n == 1 else "a[%d:%d]" % (i, i + n - 1)
def s(i, n=1): return "s%d" % i if n == 1 else "s[%d:%d]" % (i, i + n - 1)
M16 = "v_mfma_f32_16x16x32_bf16"; M32 = "v_mfma_f32_32x32x16_bf16"

def qk_mfma(buf, i, raw=False, kf=A_KF):
    q2, kb, st = i >> 3, (i >> 2) & 1, i & 3
    d = v(buf + 8 * q2 + 4 * kb, 4)
    c = d if st else ("0" if raw else v(CI + (8 * q2 + 4 * kb if kf != A_KF else 4 * q2), 4))
    return "%s %s, %s, %s, %s" % (M16, d, a(kf + 4 * (4 * kb + st), 4), a((A_QR if raw else A_Q) + 16 * q2 + 4 * st, 4), c)
def preg(buf, q2): return buf + 8 * q2 - (4 if q2 & 1 else 0)
def GAPS(N): return 16 * N + (N + 1) // 2
def oreg(q2, db): return O + 32 * q2 + 4 * db
def pv_mfma(buf, q2, db, vf=A_VF):
    d = v(oreg(q2, db), 4)
    return "%s %s, %s, %s, %s" % (M16, d, a(vf + 4 * db, 4), v(preg(buf, q2), 4), d)
def sum_mfma(buf, q2, one=None, slot=None):
    d = a(A_LS + 4 * (q2 if slot is None else slot), 4)
    return "%s %s, %s, %s, %s" % (M16, d, a(A_ONE if one is None else one, 4), v(preg(buf, q2), 4), d)
def sums_after(buf, N, q2, one=A_ONE):
    if q2 & 1: return ["v_smfmac_f32_16x16x64_bf16 %s, %s, %s, %s" % (a(A_LS + 4 * (q2 >> 1), 4), a(one + 4, 4), v(buf + 8 * (q2 - 1), 8), v(V_IDX))]
    if q2 == N - 1: return [sum_mfma(buf, q2, one, q2 >> 1)]
    return []
def onm_ops(t=0):
    o = ["s_bfe_u32 %s, %s, 0xa000d" % (s(S_T2), s(S_TASK + t)), sadd(S_T2, S_T2, 31), "s_and_b32 %s, %s, 31" % (s(S_T2), s(S_T2)), sadd(S_T2, S_T2, 1),
         "v_mov_b32 %s, 0x3f80" % v(V_I + 1), "v_mov_b32 %s, 0x3f803f80" % v(V_I + 2)]
    for sp in range(2):
        o.append("v_sub_u32 %s, %s, %s" % (v(V_I), s(S_T2), v(V_SG if sp else V_G4)))
        for r in range(4):
            k = (16 * (r & 1) + 4 * (r >> 1)) if sp else (16 * (r >> 1) + 2 * (r & 1))
            o += ["v_cmp_lt_i32 vcc, %d, %s" % (k, v(V_I)), "v_cmp_lt_i32 %s, %d, %s" % (s(S_T0, 2), k + 1, v(V_I)), "s_nop 0",
                  "v_cndmask_b32 %s, 0, %s, vcc" % (v(V_I + 3), v(V_I + 1)),
                  "v_cndmask_b32 %s, %s, %s, %s" % (v(V_I + 3), v(V_I + 3), v(V_I + 2), s(S_T0, 2))]
            if sp: o.append("v_and_b32 %s, %s, %s" % (v(V_I + 3), v(V_I + 3), v(V_SA)))
            o.append("v_accvgpr_write_b32 %s, %s" % (a(A_ONM + 8 * t + 4 * sp + r), v(V_I + 3)))
    return o
def k_read(f, base, areg=V_KA0, dst=None):
    kb, st = f >> 2, f & 3
    return "ds_read_b128 %s, %s offset:%d" % (dst or a(A_KF + 4 * f, 4), v(areg + (st >> 1)), base + 4 * PS * kb + 64 * (st & 1))
def v_read(db, j, base, areg=V_VA, vf=A_VF):
    return "ds_read_b64_tr_b16 %s, %s offset:%d" % (a(vf + 4 * db + 2 * j, 2), v(areg), base + 512 * j + 32 * db)
def q_reads(n=4):
    return [k_read(f, 0, V_QA0, a(A_QR + 4 * f, 4)) for f in range(4 * n)]

def sm_start(N): return int(optn("sm", N, "15"))
def opq(op, buf): return (int(op.split()[-1].strip("v,")) - buf) >> 3
def softmax_ops(buf, N):
    ops = []
    st = sm_start(N)
    G = GAPS(N)
    for e in range(8 * N):
        p = st + (e * G // (8 * N) if N > 1 else e * 3 // 2)
        ops.append((p, 0, "v_exp_f32 %s, %s" % (v(buf + e), v(buf + e))))
        if e & 1:
            pc = p + int(optn("cd", N, "1"))
            if optn("cvt2", N, "0") == "1" and (e & 3) == 1: pc += 4
            ops.append((pc, 1 + (e & 2), "v_cvt_pk_bf16_f32 %s, %s, %s" % (v(preg(buf, e >> 3) + ((e & 7) >> 1)), v(buf + e - 1), v(buf + e))))
    for p, _, op in ops:
        q = opq(op, buf)
        assert 8 * q + 8 <= p < G + 8 * N + 8 * q - 1, (N, p, op)
    ops.sort()
    cv = [o for o in ops if o[1]]
    assert all(opq(x[2], buf) <= opq(y[2], buf) for x, y in zip(cv, cv[1:]))
    return [(o[0], o[2]) for o in ops]
def flat_sm(ops):
    out = []
    pend = []
    for op in ops:
        if op.startswith("v_cvt"):
            pend.append(op)
        else:
            out.append(op)
            out += pend; pend = []
    if pend: out += ["s_nop 0"] + pend
    return out

def dma(vo, srd, so): return "buffer_load_dwordx4 %s, %s, %s offen lds" % (v(vo), s(srd, 4), s(so))
def m0(off, base=None): return "s_add_u32 m0, %s, %d" % (s(S_WBASE if base is None else base), off)
def sadd(d, x, imm): return "s_add_u32 %s, %s, %d" % (s(d), s(x), imm)
def smov(d, x): return "s_mov_b32 %s, %s" % (s(d), s(x))
def smov2(d, x): return "s_mov_b64 %s, %s" % (s(d, 2), s(x, 2))
def stream_groups(slot):
    b = slot * SZ
    return [[m0(b)], [dma(V_KVO, SRD_K, S_KOFF)], [m0(b + 4 * PS)], [dma(V_KVO2, SRD_K, S_KOFF)],
            [m0(b + HALF)], [dma(V_VVO, SRD_V, S_VOFF)], [m0(b + HALF + 4 * PS)], [dma(V_VVO2, SRD_V, S_VOFF)],
            ["s_add_u32 %s, %s, %s" % (s(S_KOFF), s(S_KOFF), s(S_BLK))], ["s_add_u32 %s, %s, %s" % (s(S_VOFF), s(S_VOFF), s(S_BLK))]]
def stream_flat(slot):
    out = []
    for g in stream_groups(slot):
        out += g
        if " m0," in g[0]: out.append("s_nop 0")
    return out
def kblock_flat(ldsoff):
    return [m0(ldsoff), "s_nop 0", dma(V_KVO, SRD_K, S_KOFF), m0(ldsoff + 4 * PS), "s_nop 0", dma(V_KVO2, SRD_K, S_KOFF), sadd(S_KOFF, S_KOFF, BLK)]
def qgroup(g):
    out = []
    for n in range(4 * g, 4 * g + 4):
        out += [m0(n * PS, S_PRIV), "s_nop 0", dma(V_KVO, SRD_F, S_T4), sadd(S_T4, S_T4, 16384)]
    return out

COST = {"ds_read_b128": 12, "ds_read_b64_tr_b16": 8, "buffer_load_dwordx4": 12, "v_exp_f32": 8}
def cost(op): return COST.get(op.split()[0], 4)

def aux_ops():
    return ["s_mov_b32 m0, %s" % s(S_QM), dma(V_KVO, SRD_F, S_T4),
            sadd(S_QM, S_QM, PS), "s_min_u32 %s, %s, %s" % (s(S_QM), s(S_QM), s(S_QME)),
            sadd(S_T4, S_T4, 16384), "s_min_u32 %s, %s, %s" % (s(S_T4), s(S_T4), s(S_T4E))]
def iteration(A, u, N, aux=False):
    nxt, cur = S_BUF[u & 1], S_BUF[1 - (u & 1)]
    opta = (lambda x, n_, d: optn(x + 'x', n_, optn(x, n_, d))) if aux else optn
    G = GAPS(N)
    ms = [qk_mfma(nxt, i) for i in range(8 * N)]
    for q2 in range(N):
        ms += [pv_mfma(cur, q2, db) for db in range(8)] + sums_after(cur, N, q2)
    if opt("pvord"):
        ms = ms[:8 * N] + [pv_mfma(cur, q2, db) for db in range(8) for q2 in range(N)] + sum((sums_after(cur, N, q) for q in range(N)), [])
    if opt("pvord2"):
        ms = ms[:8 * N] + [pv_mfma(cur, 2 * h + q2, db) for h in range(N // 2) for db in range(8) for q2 in range(2)] + sum((sums_after(cur, N, q) for q in range(N)), [])
    if opt("qkord"):
        ms = [qk_mfma(nxt, 16 * h + 8 * q2 + f) for h in range(N // 2) for f in range(8) for q2 in range(2)] + ms[8 * N:]
    if opt("qkord2"):
        ms = [qk_mfma(nxt, 8 * q2 + 4 * kb + st) for q2 in range(N) for st in range(4) for kb in range(2)] + ms[8 * N:]
    va = [[] for _ in range(G)]; nv = [[] for _ in range(G)]
    for p, op in softmax_ops(cur, N):
        if p >= G: va[p - G].append(op)
    for p, op in softmax_ops(nxt, N):
        if p < G: va[p].append(op)
    RAD = int(opta('rad', N, '1'))
    load = lambda g: sum(map(cost, va[g] + nv[g]))
    def place(items, lo, hi, strict=False):
        last = lo - (1 if strict else 0)
        pos = []
        for i, it in enumerate(items):
            t = lo + (i + 0.5) * (hi - lo + 1) / len(items)
            mn = last + (1 if strict else 0)
            mx = hi - ((len(items) - 1 - i) if strict else 0)
            cand = [g for g in range(int(t) - RAD, int(t) + RAD + 1) if mn <= g <= mx] or [min(max(int(t), mn), mx)]
            if it.startswith("s_") and opta("salux", N, "0") == "1":
                g = min(cand, key=lambda g: (len(nv[g]) > 0, not any("exp" in x for x in va[g]), abs(g + 0.5 - t)))
            else:
                g = min(cand, key=lambda g: (load(g), abs(g + 0.5 - t)))
            nv[g].append(it); last = g; pos.append(g)
        return pos
    H = 8 * N
    vpos = place([v_read(i >> 1, i & 1, u * SZ) for i in range(16)], int(opta('vbeg', N, '0')), H + int(opta('vend', N, '-1' if N == 2 else '-3')))
    kpos = place([k_read(f, u * SZ) for f in range(8)], max(H + int(opta('kbeg', N, '0')), vpos[-1]), G - int(opta('kend', N, '7')))
    sg = stream_groups((u + 3) % 4)
    dlo, dhi = [int(x) for x in opta("dw", N, {1: "0,9", 2: "1,15", 3: "24,43", 4: "33,56"}[N]).split(",")]
    ax = aux_ops() if aux else []
    dpos = place(ax[:2] + [g[0] for g in sg[:8]], dlo, dhi, True)
    if aux: place(ax[2:], max(dpos[1] + 1, int(opta('ab', N, '0'))), G - int(opta('ae', N, '8')), True)
    tailp = [int(x) for x in opta("tp", N, "6,5,4,3,2").split(",")]
    nv[G - tailp[0]] += sg[8]; nv[G - tailp[1]] += sg[9]
    nv[G - tailp[2]].append("s_sub_u32 %s, %s, 1" % (s(S_CNT), s(S_CNT)))
    nv[G - tailp[3]].append("s_cmp_le_u32 %s, %s" % (s(S_CNT), s(S_HT)))
    if TL: nv[G - tailp[4]].append("s_memrealtime s[94:95]" if opt("tlrt") else "s_memtime s[94:95]")
    nv[G - tailp[4]].append("s_waitcnt vmcnt(%d) lgkmcnt(0)" % (10 if aux else 8))
    assert dhi < G - tailp[0] and kpos[-1] < G - tailp[4]
    covered = -1
    for g in range(G):
        if H <= g < H + 8 and g - H > covered:
            db = g - H
            while db + 1 < 8 and vpos[2 * db + 3] <= g - int(opta("wd", N, "4")): db += 1
            covered = db
            assert vpos[2 * db + 1] < g
            younger = sum(1 for p in vpos[2 * db + 2:] if p < g) + sum(1 for p in kpos if p < g)
            A("s_waitcnt lgkmcnt(%d)" % younger)
        A(ms[g]); A.ext(nv[g]); A.ext(va[g])

def mask_ops(N=4):
    o = ["v_sub_u32 %s, %s, %s" % (v(V_U), s(S_NV), v(V_G4)), "v_mov_b32 %s, 0xff800000" % v(V_U + 1)]
    prs = ["vcc", s(S_T0, 2)]
    for r in range(8 + 1):
        if r < 8: o.append("v_cmp_lt_i32 %s, %d, %s" % (prs[r % 2], 16 * (r >> 2) + (r & 3), v(V_U)))
        if r == 0: o.append("s_nop 0")
        if r >= 1:
            for q2 in range(N):
                x = CI + 8 * q2 + r - 1
                o.append("v_cndmask_b32 %s, %s, %s, %s" % (v(x), v(V_U + 1), v(x), prs[(r - 1) % 2]))
    o.append("s_nop 1")
    return o
def rowmax(b, N, first):
    o = []
    if first:
        for q2 in range(N): o.append("v_max3_f32 %s, %s, %s, %s" % (v(V_T + q2), v(b + 8 * q2), v(b + 8 * q2 + 1), v(b + 8 * q2 + 2)))
        for i in (3, 5):
            for q2 in range(N): o.append("v_max3_f32 %s, %s, %s, %s" % (v(V_T + q2), v(V_T + q2), v(b + 8 * q2 + i), v(b + 8 * q2 + i + 1)))
        for q2 in range(N): o.append("v_max_f32 %s, %s, %s" % (v(V_T + q2), v(V_T + q2), v(b + 8 * q2 + 7)))
    else:
        for i in range(0, 8, 2):
            for q2 in range(N): o.append("v_max3_f32 %s, %s, %s, %s" % (v(V_T + q2), v(V_T + q2), v(b + 8 * q2 + i), v(b + 8 * q2 + i + 1)))
    return o
def crossmax(N):
    o = []
    for w in (32, 16):
        o += ["v_mov_b32 %s, %s" % (v(V_U + q), v(V_T + q)) for q in range(N)] + (["s_nop 0"] if N == 2 else [])
        o += ["v_permlane%d_swap_b32 %s, %s" % (w, v(V_T + q), v(V_U + q)) for q in range(N)]
        o += ["v_max_f32 %s, %s, %s" % (v(V_T + q), v(V_T + q), v(V_U + q)) for q in range(N)]
    return o
def ps_mfmas(g):
    d = v(O + 16 * g, 16)
    return ["%s %s, %s, %s, %s" % (M32, d, a(A_PS + m, 4), a(A_QR + 8 * g + 4 * fr, 4), "0" if k == 0 else d) for k, (m, fr) in enumerate(((0, 0), (4, 1), (8, 0), (12, 1)))]
def ps_cvts(g):
    b = O + 16 * g
    o = ["v_cvt_pk_bf16_f32 %s, %s, %s" % (v(b + i), v(b + 2 * i), v(b + 2 * i + 1)) for i in range(8)]
    o += ["v_accvgpr_write_b32 %s, %s" % (a(A_Q + 8 * g + i), v(b + i)) for i in range(8)]
    return o
def ozero(g): return "%s %s, %s, %s, 0" % (M32, v(O + 16 * g, 16), v(V_Z, 4), v(V_Z, 4))
def lzero(): return "%s %s, %s, %s, 0" % (M32, a(A_LS, 16), v(V_Z, 4), v(V_Z, 4))

nst = [0]
def stamp(A, idx, first_only=False):
    if STAMPS:
        if first_only:
            nst[0] += 1
            A("s_cmp_eq_u32 %s, 0" % s(S_TI)); A("s_cbranch_scc0 L_st%d" % nst[0])
        A("s_memtime %s" % s(S_ST + 2 * idx, 2))
        if first_only: A.label("L_st%d" % nst[0])
def tl_pre(A):
    if TL: A("s_memrealtime s[94:95]" if opt("tlrt") else "s_memtime s[94:95]")
def tl_post(A):
    if TL:
        A("s_mov_b32 m0, s92"); A("s_add_u32 s92, s92, 1"); A("v_writelane_b32 %s, s94, m0" % v(V_TL))
def tl(A):
    if TL:
        tl_pre(A); A("s_waitcnt lgkmcnt(0)"); tl_post(A)

def decode(word):
    return ["s_and_b32 %s, %s, 0x1fff" % (s(S_T0), s(word)),
            "s_bfe_u32 %s, %s, 0xa000d" % (s(S_T1), s(word)),
            "s_add_u32 %s, %s, %s" % (s(S_T1), s(S_T0), s(S_T1)),
            "s_lshl_b32 %s, %s, 12" % (s(S_NNR), s(S_T1)),
            "s_bfe_u32 %s, %s, 0x1001e" % (s(S_T1), s(word)),
            "s_lshl_b32 %s, %s, 8" % (s(S_T1), s(S_T1)),
            "s_add_u32 %s, %s, %s" % (s(S_T1), s(S_T1), s(S_HOFF)),
            "s_lshl_b32 %s, %s, 12" % (s(S_NKB), s(S_T0)),
            "s_add_u32 %s, %s, %s" % (s(S_NKB), s(S_NKB), s(S_T1)),
            "s_bfe_u32 %s, %s, 0x3001b" % (s(S_NNQ), s(word)),
            "s_bfe_u32 %s, %s, 0x40017" % (s(S_T1), s(word)),
            "s_lshl_b32 %s, %s, 2" % (s(S_T1), s(S_T1)),
            "s_mul_i32 %s, %s, %s" % (s(S_T0), s(S_W), s(S_NNQ)),
            "s_add_u32 %s, %s, %s" % (s(S_T1), s(S_T1), s(S_T0)),
            "s_lshl_b32 %s, %s, 16" % (s(S_NQB), s(S_T1)),
            "s_add_u32 %s, %s, %s" % (s(S_NQB), s(S_NQB), s(S_NKB)),
            "s_lshl_b32 %s, %s, 14" % (s(S_T0), s(S_W)),
            "s_sub_u32 %s, %s, %s" % (s(S_T4), s(S_NQB), s(S_T0)),
            smov2(SRD_F, P_Q), smov(SRD_F + 2, S_NNR)]
def task_setup(more=True):
    base = [smov(S_KBASE, S_NKB), smov(S_NR, S_NNR), smov(SRD_O + 2, S_NNR), smov(S_QOFF, S_NQB), smov(S_NQ, S_NNQ),
            "s_bfe_u32 %s, %s, 0xa000d" % (s(S_L), s(S_TASK)),
            sadd(S_N, S_L, 31), "s_lshr_b32 %s, %s, 5" % (s(S_N), s(S_N)),
            "s_sub_u32 %s, %s, 1" % (s(S_CNT), s(S_N)),
            "s_lshl_b32 %s, %s, 5" % (s(S_T1), s(S_CNT)),
            "s_sub_u32 %s, %s, %s" % (s(S_NV), s(S_L), s(S_T1)),
            "s_mov_b32 %s, 0" % s(S_FB),
            smov(S_QM, S_PRIV)]
    if not more: return base + (["s_sub_u32 %s, %s, 1" % (s(S_CNT), s(S_CNT))] if EL else []) + ["s_mov_b32 %s, %d" % (s(S_HT), 0 if opt("norwl") else 4), "s_mov_b32 %s, 0" % s(S_NNQ), "s_mov_b32 %s, 0" % s(S_NNR)]
    return base + decode(S_TASK + 1) + ["s_cmp_eq_u32 %s, 0" % s(S_NNR), "s_cselect_b32 %s, %d, 4" % (s(S_HT), 0 if opt("norwl") else 4),
            "s_subb_u32 %s, %s, 0" % (s(S_CNT), s(S_CNT)) if EL else "s_nop 0",
            "s_lshl_b32 %s, %s, 2" % (s(S_T0), s(S_NNQ)), "s_max_u32 %s, %s, 1" % (s(S_T0), s(S_T0)), "s_sub_u32 %s, %s, 1" % (s(S_T0), s(S_T0)),
            "s_mul_i32 %s, %s, %d" % (s(S_QME), s(S_T0), PS), "s_add_u32 %s, %s, %s" % (s(S_QME), s(S_QME), s(S_QM)),
            "s_lshl_b32 %s, %s, 14" % (s(S_T4E), s(S_T0)), "s_add_u32 %s, %s, %s" % (s(S_T4E), s(S_T4E), s(S_T4))]

A = Asm()
A.label(NAME)
A("s_cmp_ge_u32 s2, %d" % GRID)
A("s_cbranch_scc1 L_end")
if STAMPS: A("s_memrealtime s[26:27]")
stamp(A, 0)
A("s_getpc_b64 s[74:75]")
A.label("L_pc")
A("s_load_dwordx4 s[64:67], s[0:1], 0")
A("s_and_b32 s76, s2, 0xf8")
A("v_lshrrev_b32 %s, 3, v0" % v(V_T4))
A("v_lshl_add_u32 %s, s76, 2, %s" % (v(V_T4), v(V_T4)))
A("v_lshlrev_b32 %s, 7, %s" % (v(V_T4), v(V_T4)))
A("v_min_u32 %s, L_cold-L_pc, %s" % (v(V_T4), v(V_T4)))
A("global_load_dword %s, %s, s[74:75]" % (v(V_T4), v(V_T4)))
A("s_lshl_b32 s76, s76, 2")
A("s_add_u32 s76, s76, L_table-L_pc")
A("s_load_dwordx8 s[56:63], s[74:75], s76")
A("v_lshrrev_b32 %s, 6, v0" % v(V_U))
A("v_bfe_u32 v16, v0, 4, 2")
A("v_readfirstlane_b32 %s, %s" % (s(S_W), v(V_U)))
G, P16, R4, X0, X1, X2 = 16, 17, 18, 19, 20, 21
def fswz(dst, src, tmp):
    A("v_and_b32 %s, 2, %s" % (v(tmp), v(src)))
    A("v_and_b32 %s, 1, %s" % (v(dst), v(src)))
    A("v_lshl_add_u32 %s, %s, 2, %s" % (v(dst), v(tmp), v(dst)))
A("v_and_b32 %s, 15, v0" % v(P16))
A("v_mul_u32_u24 %s, 5, %s" % (v(X0), v(G)))
A("v_and_b32 %s, 9, %s" % (v(X0), v(X0)))
A("v_xor_b32 %s, %s, %s" % (v(X0), v(X0), v(P16)))
A("v_lshrrev_b32 %s, 4, v0" % v(X1))
A("v_lshlrev_b32 %s, 12, %s" % (v(X1), v(X1)))
A("v_lshl_add_u32 %s, %s, 4, %s" % (v(V_KVO), v(X0), v(X1)))
A("v_add_u32 %s, %d, %s" % (v(V_KVO2), 16 * 4096, v(V_KVO)))
A("s_mul_i32 %s, %s, %d" % (s(S_WBASE), s(S_W), PS))
A("s_mul_i32 %s, %s, %d" % (s(S_PRIV), s(S_W), SZ))
A(sadd(S_PRIV, S_PRIV, PRIV))
A("s_and_b32 %s, s2, 7" % s(S_HOFF))
A("s_lshl_b32 %s, %s, 9" % (s(S_HOFF), s(S_HOFF)))
A("s_mov_b32 %s, 0x20000" % s(SRD_K + 3))
A("s_mov_b32 %s, %s" % (s(SRD_F + 3), s(SRD_K + 3)))
A(m0(HALF))
if TL:
    A("s_mov_b32 s92, 0")
A("s_waitcnt lgkmcnt(0)")
A(smov2(SRD_K, P_K)); A(smov(SRD_K + 2, 61))
A("s_add_u32 %s, s60, %s" % (s(S_KOFF), s(S_HOFF)))
kb = kblock_flat(HALF) + kblock_flat(0)
A(kb[2])
A("s_load_dwordx2 s[68:69], s[0:1], 16")
A("s_load_dwordx2 s[70:71], s[0:1], 32")
if STAMPS: A("s_load_dwordx2 s[72:73], s[0:1], 48")
A(kb[3]); A(smov(S_NKB, S_KOFF)); A(kb[5]); A(kb[6])
A(kb[7]); A(smov2(SRD_F, P_Q)); A(kb[9])
A(kb[10]); A(smov(SRD_F + 2, 61)); A(kb[12]); A(kb[13])
A("s_mul_i32 %s, %s, s63" % (s(S_T4), s(S_W)))
A("s_add_u32 %s, %s, s62" % (s(S_T4), s(S_T4)))
A("s_add_u32 %s, %s, %s" % (s(S_T4), s(S_T4), s(S_HOFF)))
A("s_lshl_b32 %s, %s, 14" % (s(S_NQB), s(S_W)))
A("s_add_u32 %s, %s, %s" % (s(S_NQB), s(S_NQB), s(S_T4)))
A.ext(qgroup(0)); A.ext(qgroup(1))
A("s_mov_b64 %s, s[56:57]" % s(S_TASK, 2)); A("s_mov_b64 %s, s[58:59]" % s(S_TASK + 2, 2))
A(smov(S_NNR, 61)); A("s_bfe_u32 %s, s56, 0x3001b" % s(S_NNQ))
A(smov(S_VOFF, S_NKB)); A(smov(SRD_V + 2, 61))
A("s_mov_b32 %s, %d" % (s(S_BLK), BLK))
A("s_mov_b32 %s, 0" % s(S_TI))
for srd in (SRD_V, SRD_O): A("s_mov_b32 %s, 0x20000" % s(srd + 3))
A("v_and_b32 v22, 63, v0")
A("v_and_b32 %s, 3, v22" % v(R4))
A("v_lshl_add_u32 %s, %s, 3, %s" % (v(X1), v(G), s(S_W)))
A("v_lshlrev_b32 %s, 12, %s" % (v(X1), v(X1)))
A("v_lshl_add_u32 %s, %s, 4, %s" % (v(V_VVO), v(P16), v(X1)))
A("v_add_u32 %s, %d, %s" % (v(V_VVO2), 4 * 4096, v(V_VVO)))
if TL: A("v_mov_b32 %s, 0" % v(V_TL))
A("s_waitcnt lgkmcnt(0)")
A(smov2(SRD_V, P_V)); A(smov2(SRD_O, P_O))
if STAMPS:
    A("s_mov_b32 %s, s72" % s(SRD_W)); A("s_mov_b32 %s, s73" % s(SRD_W + 1))
    A("s_mov_b32 %s, 0x1000000" % s(SRD_W + 2)); A("s_mov_b32 %s, 0x20000" % s(SRD_W + 3))
if opt("tls"): tl(A)
fswz(X0, R4, X1)
A("v_xor_b32 %s, %s, %s" % (v(X0), v(X0), v(G)))
A("v_lshrrev_b32 %s, 2, %s" % (v(X2), v(P16)))
A("v_mul_u32_u24 %s, %d, %s" % (v(X1), PS, v(X2)))
A("v_lshl_add_u32 %s, %s, 8, %s" % (v(X1), v(R4), v(X1)))
A("v_lshl_add_u32 %s, %s, 4, %s" % (v(V_KA0), v(X0), v(X1)))
A("v_xor_b32 %s, 8, %s" % (v(X0), v(X0)))
A("v_lshl_add_u32 %s, %s, 4, %s" % (v(V_KA1), v(X0), v(X1)))
A("v_add_u32 %s, %s, %s" % (v(V_QA0), s(S_PRIV), v(V_KA0)))
A("v_add_u32 %s, %s, %s" % (v(V_QA1), s(S_PRIV), v(V_KA1)))
A("v_and_b32 %s, 1, %s" % (v(X0), v(G)))
A("v_lshl_add_u32 %s, %s, 2, %s" % (v(X0), v(X0), v(X2)))
A("v_mul_u32_u24 %s, %d, %s" % (v(X0), PS, v(X0)))
A("v_lshrrev_b32 %s, 1, %s" % (v(X1), v(G)))
A("v_lshl_add_u32 %s, %s, 8, %s" % (v(X0), v(X1), v(X0)))
A("v_lshl_add_u32 %s, %s, 3, %s" % (v(X0), v(R4), v(X0)))
A("v_add_u32 %s, %d, %s" % (v(V_VA), HALF, v(X0)))
A("v_mul_u32_u24 %s, 272, %s" % (v(X0), v(P16)))
A("v_lshl_add_u32 %s, %s, 3, %s" % (v(X0), v(G), v(X0)))
A("v_add_u32 %s, %s, %s" % (v(V_EW), s(S_PRIV), v(X0)))
A("v_mul_u32_u24 %s, 272, %s" % (v(X0), v(G)))
A("v_lshl_add_u32 %s, %s, 4, %s" % (v(X0), v(P16), v(X0)))
A("v_add_u32 %s, %s, %s" % (v(V_ER), s(S_PRIV), v(X0)))
A("v_lshlrev_b32 %s, 12, %s" % (v(X0), v(G)))
A("v_lshl_add_u32 %s, %s, 4, %s" % (v(V_SO), v(P16), v(X0)))
A("v_lshlrev_b32 %s, 2, %s" % (v(V_G4), v(G)))
A("v_bfe_u32 %s, v22, 1, 1" % v(X0))
A("v_lshrrev_b32 %s, 5, v22" % v(X1))
A("v_cmp_eq_u32 vcc, %s, %s" % (v(X0), v(X1)))
A("v_and_b32 %s, 1, v22" % v(X2))
A("v_bfe_u32 %s, v22, 4, 1" % v(X1))
A("v_cndmask_b32 %s, 0, -1, vcc" % v(V_SA))
A("v_lshlrev_b32 %s, 3, %s" % (v(X1), v(X1)))
A("v_lshl_add_u32 %s, %s, 1, %s" % (v(V_SG), v(X2), v(X1)))
A("v_mul_u32_u24 %s, 0xaaaa, %s" % (v(X2), v(X2)))
A("v_add_u32 %s, 0x4444, %s" % (v(V_IDX), v(X2)))
A("v_mov_b32 %s, 0x3f803f80" % v(X0))
A("v_and_b32 %s, %s, %s" % (v(X1), v(X0), v(V_SA)))
for i in range(4):
    A("v_accvgpr_write_b32 %s, %s" % (a(A_ONE + i), v(X0)))
    A("v_accvgpr_write_b32 %s, %s" % (a(A_ONE + 4 + i), v(X1)))
    A("v_mov_b32 %s, 0" % v(V_Z + i))
LN = 24
A("v_bfe_u32 %s, v22, 2, 1" % v(X0))
A("v_lshrrev_b32 %s, 5, v22" % v(X1))
A("v_xor_b32 %s, %s, %s" % (v(X0), v(X0), v(X1)))
A("v_bfe_u32 %s, v22, 3, 2" % v(X1))
A("v_bfe_u32 %s, v22, 1, 1" % v(X2))
A("v_lshl_add_u32 %s, %s, 1, %s" % (v(X1), v(X1), v(X2)))
A("v_lshl_add_u32 %s, %s, 4, %s" % (v(X1), v(X0), v(X1)))
A("v_and_b32 %s, 1, v22" % v(X2))
A("v_lshlrev_b32 %s, 4, %s" % (v(X2), v(X2)))
A("v_mov_b32 %s, 0x3e03" % v(LN + 1))
A("v_mov_b32 %s, 0xb9d8" % v(LN + 2))
A("v_lshlrev_b32 %s, %s, %s" % (v(LN + 1), v(X2), v(LN + 1)))
A("v_lshlrev_b32 %s, %s, %s" % (v(LN + 2), v(X2), v(LN + 2)))
for r in range(8):
    A("v_cmp_eq_u32 vcc, %d, %s" % (r, v(X1)))
    A("s_nop 1")
    A("v_cndmask_b32 %s, 0, %s, vcc" % (v(LN + 3), v(LN + 1)))
    A("v_cndmask_b32 %s, 0, %s, vcc" % (v(LN + 4), v(LN + 2)))
    A("v_accvgpr_write_b32 %s, %s" % (a(A_PS + r), v(LN + 3)))
    A("v_accvgpr_write_b32 %s, %s" % (a(A_PS + 8 + r), v(LN + 4)))
if opt("tls"): tl(A)
for g in (2, 3):
    A("s_cmp_le_u32 %s, %d" % (s(S_NNQ), g)); A("s_cbranch_scc1 L_qdone")
    A.ext(qgroup(g))
A.label("L_qdone")
if opt("tls"): tl(A)
A.ext(task_setup())
MAXT = max(len(x) for x in plan)
for t in range(MAXT): A.ext(onm_ops(t))
A(lzero())
Fs = sorted(needF)
for N in Fs[:-1]:
    A("s_cmp_eq_u32 %s, %d" % (s(S_NQ), N)); A("s_cbranch_scc1 L_f%d" % N)
def qnext_items():
    it = []
    for g in range(4):
        q = qgroup(g)
        for k in range(4):
            pre = []
            if g >= 2 and k == 0:
                pre = ["s_cmp_le_u32 %s, %d" % (s(S_NNQ), g), "s_cselect_b32 %s, 0, %s" % (s(SRD_F + 2), s(SRD_F + 2))]
            it.append(pre + [q[4 * k]]); it.append([q[4 * k + 2], q[4 * k + 3]])
    return it
def weave(va, items, first=0):
    out = []
    step = max(1, (len(va) - first) // (len(items) + 1))
    items = list(items)
    for i, l in enumerate(va):
        out.append(l)
        if i >= first and (i - first) % step == 0 and items: out += items.pop(0)
    assert not items
    return out
def pvalu(b, N, raw):
    va = rowmax(b, N, True) + crossmax(N)
    if raw: va += ["v_mul_f32 %s, %s, %s" % (v(V_T + q), s(S_C), v(V_T + q)) for q in range(N)]
    va += ["v_sub_f32 %s, 0, %s" % (v(CI + 8 * q), v(V_T + q)) for q in range(N)]
    for i in range(8 * N):
        if raw: va.append("v_fma_f32 %s, %s, %s, -%s" % (v(b + i), v(b + i), s(S_C), v(V_T + (i >> 3))))
        else: va.append("v_sub_f32 %s, %s, %s" % (v(b + i), v(b + i), v(V_T + (i >> 3))))
        if 1 <= (i & 7) < 4: va.append("v_mov_b32 %s, %s" % (v(CI + i), v(CI + (i & ~7))))
    va += flat_sm([op for p, op in softmax_ops(b, N) if p < GAPS(N)])
    return va
def pvalu_q(b, N, q):
    r = b + 8 * q; t = V_T + q; u_ = V_U + q
    va = ["v_max3_f32 %s, %s, %s, %s" % (v(t), v(r), v(r + 1), v(r + 2)), "v_max3_f32 %s, %s, %s, %s" % (v(u_), v(r + 3), v(r + 4), v(r + 5)),
          "v_max3_f32 %s, %s, %s, %s" % (v(t), v(t), v(r + 6), v(r + 7)), "v_max_f32 %s, %s, %s" % (v(t), v(t), v(u_))]
    for w in (32, 16):
        va += ["v_mov_b32 %s, %s" % (v(u_), v(t)), "s_nop 1", "v_permlane%d_swap_b32 %s, %s" % (w, v(t), v(u_)), "v_max_f32 %s, %s, %s" % (v(t), v(t), v(u_))]
    va += ["v_sub_f32 %s, %s, %s" % (v(r + i), v(r + i), v(t)) for i in range(8)]
    va += ["v_sub_f32 %s, 0, %s" % (v(CI + 4 * q + i), v(t)) for i in range(4)]
    va += flat_sm([op for p, op in softmax_ops(b, N) if p < GAPS(N) and opq(op, b) == q])
    return va
def qk0(b, i):
    m_ = qk_mfma(b, i)
    return m_[:m_.rindex(",")] + ", 0" if (i & 3) == 0 else m_
def under(A, mm, va):
    per = -(-len(va) // len(mm)) if va else 0
    for m_ in mm:
        A.ext(m_ if isinstance(m_, list) else [m_]); A.ext(va[:per]); va = va[per:]
def first(A, N):
    qr = q_reads()
    b = S_BUF[0]
    S1 = int(optv("s1at", "1"))
    st_ = {"issued": 0}
    def fetch(q):
        if q == max(0, N - S1):
            A.ext(stream_flat(1)); st_["issued"] = 4
        if opt("tls"): tl(A)
        A("s_waitcnt vmcnt(%d)" % (st_["issued"] + 4 * (N - 1 - q)))
        if opt("tls"): tl(A)
        A.ext(qr[4 * q:4 * q + 4])
        if q == N - 1:
            tl(A)
            stamp(A, 1, True)
    fetch(0)
    A("s_barrier")
    for f in range(8): A(k_read(f, HALF))
    for q in range(N):
        last = q == N - 1
        A("s_waitcnt lgkmcnt(%d)" % (8 if q == 0 else 0))
        sg = stream_groups(2) if last else [[]] * 10
        mm = ps_mfmas(2 * q) + ps_mfmas(2 * q + 1)
        va = pvalu_q(b, N, q - 1) if q else []
        A.ext(mm[:2]); A("s_nop 3")
        under(A, [[m_] + sg[i] for i, m_ in enumerate(mm[2:])], va)
        A.ext(sg[6] + ["s_nop 0"] + sg[7] + sg[8] + sg[9] + (["s_nop 6"] if q == 0 else []))
        A.ext(ps_cvts(2 * q)); A(ozero(2 * q))
        A.ext(ps_cvts(2 * q + 1)); A(ozero(2 * q + 1))
        A("s_waitcnt lgkmcnt(0)" if q == 0 else "s_nop 0")
        for i in range(8):
            A(qk0(b, 8 * q + i))
            if last: A(k_read(i, 0))
        if not last: fetch(q + 1)
    A("s_nop 6")
    A.ext(weave(pvalu_q(b, N, N - 1), [[x] for x in aux_ops()] + stream_groups(3)))
    tl_pre(A)
    A("s_waitcnt vmcnt(9) lgkmcnt(0)")
    if (N, True) in needN:
        A("s_cmp_lg_u32 %s, 0" % s(S_NNR))
        A("s_cbranch_scc1 L_itb%dx_1" % N)
    A("s_branch L_itb%d%s_1" % (N, "" if (N, False) in needN else "x"))
first(A, Fs[-1])
for N in Fs[:-1]:
    A.label("L_f%d" % N)
    first(A, N)
def dispatchP(A, u):
    Ns = sorted(N for (p, N) in needP if p == u)
    for N in Ns[:-1]:
        A("s_cmp_eq_u32 %s, %d" % (s(S_NQ), N)); A("s_cbranch_scc1 L_p%d_%d" % (N, u))
    A("s_branch L_p%d_%d" % (Ns[-1], u))

def pphase(A, u, N):
    b = S_BUF[u & 1]
    mv = ["v_accvgpr_mov_b32 %s, %s" % (a(A_ONM + i), a(A_ONM + 8 + i)) for i in range(8 * (MAXT - 1))]
    A.ext(mv)
    for i in range(8 * N): A(qk0(b, i))
    for f in range(8): A(k_read(f, u * SZ))
    A(lzero())
    for q in range(N): A.ext(pvalu_q(b, N, q))
    tl_pre(A)
    A("s_waitcnt lgkmcnt(0)")

for (N, aux) in sorted(needN, reverse=True):
    X = "%d%s" % (N, "x" if aux else "")
    A(".p2align 6")
    phase = int(optv("al", "1"))
    for _ in range(phase): A("s_nop 0")
    for u in (1, 2, 3, 0):
        A.label("L_itb%s_%d" % (X, u))
        tl_post(A)
        A("s_nop 0" if (opt("nobar") or (opt("bar2") and u & 1)) else "s_barrier")
        i0 = len(A.lines)
        iteration(A, u, N, aux)
        def isz(l):
            op = l.split()[0]
            if op.startswith(("v_mfma", "v_smfmac", "ds_", "buffer_", "v_cvt")): return 8
            if op == "s_add_u32" and l.split(",")[-1].strip().isdigit() and int(l.split(",")[-1]) > 64: return 8
            return 4
        phase = (phase + (8 + (20 if TL else 0) + sum(isz(l) for l in A.lines[i0:])) // 4) % 8
        k = {0: 1, 7: 2}.get(phase, 0)
        ex = [i for i in range(i0, len(A.lines)) if A.lines[i].startswith("v_exp_f32 ")]
        for j in range(k):
            i = ex[(2 * j + 1) * len(ex) // (2 * k)]
            A.lines[i] = A.lines[i].replace("v_exp_f32 ", "v_exp_f32_e64 ")
        phase = (phase + k) % 8
        if u != 0: A("s_cbranch_scc1 L_sp%s_%d" % (X, (u + 1) % 4))
        else: A("s_cbranch_scc0 L_itb%s_1" % X)
    for u in (1, 2, 3, 0):
        A.label("L_sp%s_%d" % (X, u))
        mine = [x for x in needE3 if x[:2] == (u, N) and (x[2] > 0) == aux]
        if mine:
            A("s_cmp_eq_u32 %s, 0" % s(S_CNT))
            A("s_cbranch_scc1 L_e%s_%d" % (X, u))
        if aux:
            A("s_cmp_eq_u32 %s, 2" % s(S_CNT))
            A("s_cbranch_scc1 L_sv%s_%d" % (X, u))
            A(smov(SRD_K + 2, S_NNR)); A(smov(S_KOFF, S_NKB))
        A("s_mov_b32 %s, %d" % (s(S_HT), 2 if aux else 0))
        if mine and not opt("norw"):
            A("s_mov_b32 %s, L_e%s_%d-L_pc" % (s(S_T0), X, u))
            if aux:
                for w_, lab in ((1, "L_e%s_%d-L_pc+8192" % (X, u)), (2, "L_e%s_%d-L_pc+16384" % (X, u))):
                    A("s_cmp_eq_u32 %s, %d" % (s(S_W), w_))
                    A("s_cselect_b32 %s, %s, %s" % (s(S_T0), lab, s(S_T0)))
            if aux:
                nxs = sorted({x[2] for x in mine})
                A("s_mov_b32 %s, L_itb%d_1-L_pc" % (s(S_T1), nxs[0]))
                for nx in nxs[1:]:
                    A("s_cmp_eq_u32 %s, %d" % (s(S_NNQ), nx))
                    A("s_cselect_b32 %s, L_itb%d_1-L_pc, %s" % (s(S_T1), nx, s(S_T1)))
                A("s_cmp_eq_u32 %s, 3" % s(S_W))
                A("s_cselect_b32 %s, %s, %s" % (s(S_T0), s(S_T1), s(S_T0)))
            A("v_mbcnt_lo_u32_b32 %s, -1, 0" % v(V_U))
            A("v_mbcnt_hi_u32_b32 %s, -1, %s" % (v(V_U), v(V_U)))
            A("v_lshl_add_u32 %s, %s, 7, %s" % (v(V_U), v(V_U), s(S_T0)))
            A("v_min_u32 %s, L_table-L_pc, %s" % (v(V_U), v(V_U)))
            A("global_load_dword %s, %s, s[74:75]" % (v(V_T4), v(V_U)))
        A("s_branch L_itb%s_%d" % (X, u))
        if aux:
            A.label("L_sv%s_%d" % (X, u))
            A(smov(SRD_V + 2, S_NNR)); A(smov(S_VOFF, S_NKB)); A("s_mov_b32 %s, 0" % s(S_HT))
            A("s_branch L_itb%s_%d" % (X, u))
A.label("L_late")

def norm_q2(q2):
    out = []
    for j in range(8 + 2):
        if j < 8:
            r = oreg(q2, j)
            out += ["v_mul_f32 %s, %s, %s" % (v(r + i), v(V_I + q2), v(r + i)) for i in range(4)]
        if 1 <= j < 9:
            r = oreg(q2, j - 1)
            out.append("v_cvt_pk_bf16_f32 %s, %s, %s" % (v(r), v(r), v(r + 1)))
            out.append("v_cvt_pk_bf16_f32 %s, %s, %s" % (v(r + 1), v(r + 2), v(r + 3)))
        if j >= 2:
            r = oreg(q2, j - 2)
            out.append("ds_write_b64 %s, %s offset:%d" % (v(V_EW), v(r, 2), 16 * 272 * q2 + 32 * (j - 2)))
    return out
def lfinal(N, dense=False):
    if dense: o = ["v_accvgpr_read_b32 %s, %s" % (v(V_T + q), a(A_LS + 4 * q)) for q in range(N)]
    else:
        o = ["v_accvgpr_read_b32 %s, %s" % (v(V_T + q), a(A_LS + 2 * q)) for q in range(N)]
        o += ["v_accvgpr_read_b32 %s, %s" % (v(V_U + q), a(A_LS + 2 * q + 1)) for q in range(N & ~1)]
        o += ["v_add_f32 %s, %s, %s" % (v(V_T + q), v(V_T + q), v(V_U + q)) for q in range(N & ~1)]
    for q in range(N):
        o += ["v_cmp_nge_f32 vcc, 0x44800000, %s" % v(V_T + q), "v_rcp_f32 %s, %s" % (v(V_I + q), v(V_T + q)), "s_nop 0",
              "s_mov_b64 %s, vcc" % s(S_BAD, 2) if q == 0 else "s_or_b64 %s, %s, vcc" % (s(S_BAD, 2), s(S_BAD, 2))]
    if N == 1: o.append("s_cmp_lg_u64 %s, 0" % s(S_BAD, 2))
    o += [smov(S_T2, S_QOFF)]
    return o
def readback(k, reg): return "ds_read_b128 %s, %s offset:%d" % (v(reg, 4), v(V_ER), 4 * 272 * k)
def store(reg, w):
    return ["s_waitcnt lgkmcnt(%s)" % w,
            "buffer_store_dwordx4 %s, %s, %s, %s offen%s" % (v(reg, 4), v(V_SO), s(SRD_O, 4), s(S_T2), STMOD),
            sadd(S_T2, S_T2, 16384)]
def psg(g, dst):
    d = v(dst, 16)
    mm = ["%s %s, %s, %s, %s" % (M32, d, a(A_PS + m, 4), a(A_QR + 8 * g + 4 * fr, 4), "0" if k == 0 else d) for k, (m, fr) in enumerate(((0, 0), (4, 1), (8, 0), (12, 1)))]
    cv = ["v_cvt_pk_bf16_f32 %s, %s, %s" % (v(dst + i), v(dst + 2 * i), v(dst + 2 * i + 1)) for i in range(8)]
    cv += ["v_accvgpr_write_b32 %s, %s" % (a(A_Q + 8 * g + i), v(dst + i)) for i in range(8)]
    return mm, cv
ELREST = {}
def el_head(A, u, N):
    cur, nxt = S_BUF[1 - (u & 1)], S_BUF[u & 1]
    rd = [v_read(i >> 1, i & 1, u * SZ) for i in range(16)] + [v_read(i >> 1, i & 1, ((u + 1) % 4) * SZ, V_VA, A_QR) for i in range(16)]
    va = [(0, op) for op in flat_sm([op for p, op in softmax_ops(cur, N) if p >= GAPS(N)]) if op != "s_nop 0"]
    nleft = len(va)
    va += [(8 * opq(op, nxt) + 12, op) for op in flat_sm([op for p, op in softmax_ops(nxt, N)]) if op != "s_nop 0"]
    pa = [[pv_mfma(cur, q, db) for db in range(8)] for q in range(N)]
    pb = [[pv_mfma(nxt, q, db, A_QR) for db in range(8)] for q in range(N)]
    mq = [("k", qk_mfma(nxt, i)) for i in range(8 * N)] + [("a", m_) for m_ in pa[0]]
    extra = [(q, m_) for q in range(1, N) for m_ in pa[q]]
    per = -(-32 // (8 * N + 2))
    g = 0; waited = False; done = 0
    while mq or (va and extra):
        if mq: kind, m_ = mq.pop(0)
        else:
            q, m_ = extra.pop(0); pa[q].remove(m_); kind = "a"
        if kind == "a" and not waited:
            assert done >= nleft and len(rd) <= 16
            A("s_waitcnt lgkmcnt(%d)" % min(15, 16 - len(rd))); waited = True
        A(m_)
        A.ext(rd[:per]); rd = rd[per:]
        nexp = 0
        while va and va[0][0] <= g and (nexp == 0 or not va[0][1].startswith("v_exp")):
            if A.lines[-1].startswith("v_exp") and va[0][1].endswith(", " + A.lines[-1].split()[-1]): break
            nexp += va[0][1].startswith("v_exp")
            A(va.pop(0)[1]); done += 1
        g += 1
    A.ext(rd)
    for _, op in va:
        if op.startswith("v_cvt"): A("s_nop 0")
        A(op)
    A("s_nop 1")
    for q in range(N): A.ext(sums_after(cur, N, q))
    for q in range(N): A.ext(sums_after(nxt, N, q, A_ONM))
    A("s_waitcnt lgkmcnt(0)")
    A.ext(pb[0])
    A("s_nop 3")
    A.ext(lfinal(N))
    A("s_cbranch_scc1 L_el%d_%d" % (N, u & 1))
    rest = [[]] + [pa[q] + pb[q] for q in range(1, N)]
    ELREST[(N, u & 1)] = sum(rest, [])
    return rest
def ephase(A, u, N, NX):
    cur, nxt = S_BUF[1 - (u & 1)], S_BUF[u & 1]
    if EL and not NX:
        pvq = el_head(A, u, N)
    else:
        pvq = [[pv_mfma(cur, q, db) for db in range(8)] if q else [] for q in range(N)]
        RB = [CI, CI + 16, CI, CI + 16]
        rd = []
        for db in range(8): rd += [v_read(db, 0, u * SZ), v_read(db, 1, u * SZ)]
        sm = flat_sm([op for p, op in softmax_ops(cur, N) if p >= GAPS(N)])
        lq = min([opq(op, cur) for op in sm if op.startswith("v_")] + [N])
        sums = sum((sums_after(cur, N, q, A_ONM) for q in range(lq)), [])
        while rd or sm:
            if sums: A(sums.pop(0))
            if rd: A(rd.pop(0))
            if sm: A(sm.pop(0))
        A("s_nop 1")
        for q in range(lq, N): A.ext(sums_after(cur, N, q, A_ONM))
        qn = q_reads(NX)
        sg = stream_groups((u + 3) % 4) if NX else [[]] * 10
        if opt("tlx"): tl(A)
        A("s_waitcnt lgkmcnt(8)")
        for db in range(4):
            A(pv_mfma(cur, 0, db)); A.ext(sg[db])
        A("s_waitcnt lgkmcnt(0)")
        for db in range(4, 8):
            A(pv_mfma(cur, 0, db)); A.ext(sg[db]); A.ext(qn[NX * (db - 4):NX * (db - 3)])
        A.ext(sg[8] + sg[9])
        if not NX: A("s_nop 1")
        A.ext(lfinal(N))
        A("s_cbranch_scc1 L_es%d_%d" % (N, u & 1))
        if NX: A("s_waitcnt vmcnt(8) lgkmcnt(0)")
    X = []
    ystart = 0
    for q2 in range(N):
        if opt("tlx"): X.append("#TL")
        nb = norm_q2(q2)
        pv = list(pvq[q2 + 1]) if q2 + 1 < N else []
        pvs = 4 if len(pv) <= 8 else 3
        nw = 0; kst = 0
        for i, l in enumerate(nb):
            if i % pvs == 0 and pv: X.append(pv.pop(0))
            X.append(l)
            if l.startswith("ds_write"):
                nw += 1
                if q2 > 0 and kst < 4 and str(nw) in optv('stp', '1357'):
                    X += store(oreg(q2 - 1, 0) + 4 * kst, None); kst += 1
        for k in range(4): X.append(readback(4 * q2 + k, oreg(q2, 0) + 4 * k))
        if q2 == 0 and N == 4: ystart = len(X)
        if 1 <= q2 <= NX:
            X.append(ozero(2 * q2 - 2))
            if not (N == 4 and q2 == 1): X.append(ozero(2 * q2 - 1))
    Y = []
    zlast = []
    if NX:
        DS = [CI + 16, O + 32 * N if N < 4 else O + 16]
        P_ = [psg(g, DS[g & 1]) for g in range(2 * NX)]
        one = lambda l: [[x] for x in l]
        quad = lambda l: [l[i:i + 3] for i in range(0, len(l), 3)]
        def zipm(mm, va):
            o = []
            per = -(-len(va) // len(mm))
            for m_ in mm:
                o.append(m_ if isinstance(m_, list) else [m_]); o += quad(va[:per]); va = va[per:]
            return o
        setup = [smov(S_TASK, S_TASK + 1), "s_mov_b32 %s, 0" % s(S_TASK + 1), sadd(S_TI, S_TI, 1)] + \
                [x for x in task_setup(False) if not x.startswith("s_mov_b32 %s," % s(SRD_O + 2))]
        mv = ["v_accvgpr_mov_b32 %s, %s" % (a(A_ONM + i), a(A_ONM + 8 + i)) for i in range(8)]
        Y += zipm(P_[0][0], setup) + zipm(P_[1][0], mv) + [[lzero()]] + quad(P_[0][1])
        for q in range(1, NX + 1):
            pvz = pvalu_q(nxt, NX, q - 2) if q >= 2 else []
            if q < NX: Y += zipm(P_[2 * q][0], pvz[:12] + P_[2 * q - 1][1])
            else: Y += quad(pvz[:12] + P_[2 * q - 1][1])
            mm = [[qk0(nxt, 8 * (q - 1) + i)] + ([k_read(i, u * SZ)] if q == NX else []) for i in range(8)]
            mm[0] = ["s_nop 1"] + mm[0]
            if q < NX: mm += P_[2 * q + 1][0]
            Y += zipm(mm, pvz[12:]) if pvz[12:] else [m_ if isinstance(m_, list) else [m_] for m_ in mm]
            if q < NX: Y += quad(P_[2 * q][1])
        Y += [["s_nop 6"]] + quad(pvalu_q(nxt, NX, NX - 1))
        zlast = [ozero(g) for g in range(2 * (N - 1), 2 * NX)] + ([ozero(1)] if N == 4 else [])
    X += ["#ST%d" % k for k in range(4)]
    M = []
    acc = 0.
    rate = len(Y) / float(len(X) - ystart)
    for i, l in enumerate(X):
        if l.startswith("#ST"): M += store(oreg(N - 1, 0) + 4 * int(l[3:]), None)
        else: M.append(l)
        if i >= ystart:
            acc += rate
            while acc >= 1 and Y and not M[-1].startswith("s_waitcnt"):
                M += Y.pop(0); acc -= 1
    for y in Y: M += y
    for i, l in enumerate(M):
        if l == "s_waitcnt lgkmcnt(None)":
            reg = M[i + 1].split()[1]
            j = max(k for k in range(i) if M[k].startswith("ds_read_b128 " + reg))
            M[i] = "s_waitcnt lgkmcnt(%d)" % min(15, sum(1 for k in range(j + 1, i) if M[k].startswith("ds_")))
    eab = [k for k in optv("eab", "").split(",") if k]
    for l in M:
        if l == "#TL": tl(A)
        elif any(l.startswith(k) for k in eab): pass
        else: A(l)
    A.ext(zlast)
    if NX:
        A(smov(SRD_O + 2, S_NR))
        tl(A); tl_pre(A)
        A("s_waitcnt lgkmcnt(0)")
        A("s_branch L_itb%d_%d" % (NX, (u + 1) % 4))
    else:
        A("s_branch L_fin" if STAMPS else "s_endpgm")
for (u, N, aux) in sorted({(x[0], x[1], x[2] > 0) for x in needE3}, key=lambda x: (-x[1], x[0])):
    A.label("L_e%d%s_%d" % (N, "x" if aux else "", u))
    stamp(A, 2, True)
    A("s_mov_b32 %s, %d" % (s(S_PH), u))
    tl_post(A)
    if EL and not aux: A("s_waitcnt vmcnt(4)")
    A("s_barrier")
    NXs = sorted(x[2] for x in needE3 if x[:2] == (u, N) and (x[2] > 0) == aux)
    for NX in NXs[1:]:
        A("s_cmp_eq_u32 %s, %d" % (s(S_NNQ), NX)); A("s_cbranch_scc1 L_e%d_%d_%d" % (N, u, NX))
    for NX in NXs:
        A.label("L_e%d_%d_%d" % (N, u, NX))
        ephase(A, u, N, NX)
A.label("L_cold")
for u in range(4):
    A.label("L_adv%d" % u)
    stamp(A, 3, True)
    if any(p == u for (p, N) in needP):
        A("s_cmp_eq_u32 %s, 0" % s(S_TASK + 1))
        A("s_cbranch_scc1 L_fin")
        A(smov(S_TASK, S_TASK + 1)); A(smov(S_TASK + 1, S_TASK + 2)); A("s_mov_b32 %s, 0" % s(S_TASK + 2))
        A(sadd(S_TI, S_TI, 1))
        A.ext(task_setup())
        tl(A)
        dispatchP(A, u)
    else:
        A("s_branch L_fin")
    for N in sorted(N for (p, N) in needP if p == u):
        A.label("L_p%d_%d" % (N, u))
        pphase(A, u, N)
        A("s_branch L_itb%d_%d" % (N, (u + 1) % 4))
A.label("L_fin")
if STAMPS:
    A("s_waitcnt vmcnt(0)")
    stamp(A, 4)
    A("s_mov_b64 %s, s[26:27]" % s(S_ST + 12, 2))
    A("s_memrealtime %s" % s(S_ST + 14, 2))
    A("s_getreg_b32 %s, hwreg(HW_REG_XCC_ID)" % s(S_ST + 10))
    A("s_getreg_b32 %s, hwreg(HW_REG_HW_ID)" % s(S_ST + 11))
    A("s_waitcnt lgkmcnt(0)")
    A("s_cmp_eq_u32 %s, 0" % s(S_W))
    A("s_cbranch_scc0 L_end")
    for i in range(16): A("v_mov_b32 %s, %s" % (v(16 + i), s(S_ST + i)))
    for i in range(16): A("v_mov_b32 v%d, 0" % (32 + i))
    if TL:
        A("s_lshl_b32 %s, s2, 8" % s(S_T0))
        A("s_add_u32 %s, %s, 0x100000" % (s(S_T0), s(S_T0)))
        A("v_mbcnt_lo_u32_b32 v48, -1, 0"); A("v_mbcnt_hi_u32_b32 v48, -1, v48"); A("v_lshlrev_b32 v48, 2, v48")
        A("buffer_store_dword %s, v48, %s, %s offen" % (v(V_TL), s(SRD_W, 4), s(S_T0)))
    A("s_lshl_b32 %s, s2, 7" % s(S_T0))
    A("v_mov_b32 v48, 0")
    A("s_mov_b64 exec, 1")
    for i in range(8):
        A("buffer_store_dwordx4 %s, v48, %s, %s offen offset:%d" % (v(16 + 4 * i, 4), s(SRD_W, 4), s(S_T0), 16 * i))
A("s_endpgm")

for (N, par), rest in sorted(ELREST.items()):
    A.label("L_el%d_%d" % (N, par))
    A.ext(rest)
    A("s_branch L_slow")
for (par, N) in sorted({(u & 1, N) for (u, N) in needE}):
    A.label("L_es%d_%d" % (N, par))
    for q2 in range(1, N):
        for db in range(8): A(pv_mfma(S_BUF[1 - par], q2, db))
    A("s_branch L_slow")
A.label("L_slow")
A("s_waitcnt vmcnt(8) lgkmcnt(0)")
A("s_nop 7")
for q2 in range(4): A.ext(norm_q2(q2))
A("s_cmp_eq_u32 %s, 0" % s(S_FB))
A("s_cbranch_scc0 L_sstore")
A("s_mov_b64 %s, 0" % s(S_BAD, 2))
for q2 in range(4):
    if q2 >= 1:
        A("s_cmp_le_u32 %s, %d" % (s(S_NQ), q2)); A("s_cbranch_scc1 L_sdec")
    for k in range(4): A(readback(4 * q2 + k, 16 + 4 * k))
    A("v_cmp_ngt_f32 vcc, 0x71800000, %s" % v(V_T + q2))
    A("v_mov_b32 %s, 0" % v(V_U))
    A("s_nop 0")
    A("s_or_b64 %s, %s, vcc" % (s(S_BAD, 2), s(S_BAD, 2)))
    A("s_waitcnt lgkmcnt(0)")
    for k in range(8): A("v_pk_maximum3_f16 %s, %s, %s, %s" % (v(V_U), v(V_U), v(16 + 2 * k), v(17 + 2 * k)))
    A("v_and_b32 %s, 0x7c00, %s" % (v(V_U + 1), v(V_U)))
    A("v_and_b32 %s, 0x7c000000, %s" % (v(V_U + 2), v(V_U)))
    for c_ in ("v_cmp_eq_u32 vcc, 0x7c00, %s" % v(V_U + 1), "v_cmp_eq_u32 vcc, 0x7c000000, %s" % v(V_U + 2)):
        A(c_); A("s_nop 1"); A("s_or_b64 %s, %s, vcc" % (s(S_BAD, 2), s(S_BAD, 2)))
A.label("L_sdec")
A("s_cmp_lg_u64 %s, 0" % s(S_BAD, 2))
A("s_cbranch_scc1 L_fb")
A.label("L_sstore")
A(smov(S_T2, S_QOFF))
for q2 in range(4):
    if q2 >= 1:
        A("s_cmp_le_u32 %s, %d" % (s(S_NQ), q2)); A("s_cbranch_scc1 L_sret")
    for k in range(4): A(readback(4 * q2 + k, 16 + 16 * q2 + 4 * k))
    for k in range(4): A.ext(store(16 + 16 * q2 + 4 * k, 3 - k))
A.label("L_sret")
for g in range(8): A.ext(ps_mfmas(g))
A("s_nop 15")
for g in range(8):
    A.ext(ps_cvts(g)); A(ozero(g))
for u in range(3):
    A("s_cmp_eq_u32 %s, %d" % (s(S_PH), u)); A("s_cbranch_scc1 L_adv%d" % u)
A("s_branch L_adv3")
A.label("L_fb")
A("s_mov_b32 %s, 1" % s(S_FB))
FV, FKO, FVO = 48, 49, 50
S_FOFF, S_FCNT = S_L, S_CNT
A("s_sub_u32 %s, %s, %d" % (s(S_T0), s(S_PRIV), HALF))
A("v_add_u32 %s, %s, %s" % (v(FV), s(S_T0), v(V_VA)))
A("s_lshl_b32 %s, %s, 14" % (s(S_T0), s(S_W)))
A("v_subrev_u32 %s, %s, %s" % (v(FKO), s(S_T0), v(V_KVO)))
A("s_lshl_b32 %s, %s, 12" % (s(S_T0), s(S_W)))
A("v_subrev_u32 %s, %s, %s" % (v(FVO), s(S_T0), v(V_VVO)))
A(smov(SRD_F + 2, S_NR))
def fb_load(A, vo, ptr, step):
    A(smov2(SRD_F, ptr)); A(smov(S_T4, S_FOFF))
    for n in range(8):
        A(m0(n * PS, S_PRIV))
        A(sadd(S_T4, S_T4, step) if n else "s_nop 0")
        A(dma(vo, SRD_F, S_T4))
    A("s_waitcnt vmcnt(0)")
def fb_qk(A, tag):
    A("s_cmp_eq_u32 %s, 1" % s(S_FCNT)); A("s_cbranch_scc0 L_fbnm%s" % tag)
    A.ext(mask_ops())
    A.label("L_fbnm%s" % tag)
    fb_load(A, FKO, P_K, 16384)
    for f in range(8): A(k_read(f, 0, V_QA0, a(A_VF + 4 * f, 4)))
    A("s_waitcnt lgkmcnt(0)")
    for i in range(32): A(qk_mfma(S_BUF[0], i, False, A_VF))
    A("s_nop 15")
for i in range(32): A("v_mov_b32 %s, 0" % v(CI + i))
for q in range(4): A("v_mov_b32 %s, 0xff800000" % v(V_T + q))
for g in range(8): A(ozero(g))
A(lzero())
A(smov(S_FOFF, S_KBASE)); A(smov(S_FCNT, S_N))
A.label("L_fb1")
fb_qk(A, "1")
A.ext(rowmax(S_BUF[0], 4, False))
A(sadd(S_FOFF, S_FOFF, BLK))
A("s_sub_u32 %s, %s, 1" % (s(S_FCNT), s(S_FCNT))); A("s_cmp_eq_u32 %s, 0" % s(S_FCNT)); A("s_cbranch_scc0 L_fb1")
A.ext(crossmax(4))
for i in range(32): A("v_sub_f32 %s, 0, %s" % (v(CI + i), v(V_T + (i >> 3))))
A(smov(S_FOFF, S_KBASE)); A(smov(S_FCNT, S_N))
A.label("L_fb2")
fb_qk(A, "2")
A.ext(flat_sm([op for p, op in softmax_ops(S_BUF[0], 4)]))
fb_load(A, FVO, P_V, 4096)
for db in range(8):
    A(v_read(db, 0, 0, FV)); A(v_read(db, 1, 0, FV))
A("s_waitcnt lgkmcnt(0)")
for q2 in range(4):
    for db in range(8): A(pv_mfma(S_BUF[0], q2, db))
    A(sum_mfma(S_BUF[0], q2))
A("s_nop 15")
A(sadd(S_FOFF, S_FOFF, BLK))
A("s_sub_u32 %s, %s, 1" % (s(S_FCNT), s(S_FCNT))); A("s_cmp_eq_u32 %s, 0" % s(S_FCNT)); A("s_cbranch_scc0 L_fb2")
A.ext(lfinal(4, True))
A("s_branch L_slow")
A.label("L_end")
A("s_endpgm")

errs = check_hazards(A.lines)
for e in errs: print(e, file=sys.stderr)
if errs and not opt("force"): sys.exit(1)

hdr = open("standalone__varlen_attn_packed__ragged.s.ref").read().split("\n")
hdr = [l for l in hdr[:10] if l.startswith(";") and "@launch" not in l]
out = "\n".join(hdr) + "\n; @launch grid=(%d,1,1) block=(256,1,1) lds=%d\n" % (GRID, LDS)
out += """;
"""
out += '.amdgcn_target "amdgcn-amd-amdhsa--gfx950"\n.text\n.globl %s\n.p2align 8\n.type %s,@function\n' % (NAME, NAME)
out += A.text()
out += ".p2align 6\n.type L_table,@object\nL_table:\n"
for j, ent in enumerate(table):
    w = [t[0] | (t[1] << 13) | (t[2] << 23) | (t[3] << 27) | (t[4] << 30) for t in ent] + [0] * (4 - len(ent))
    t = ent[0]
    kb_ = (t[0] << 12) + (t[4] << 8)
    w += [kb_, (t[0] + t[1]) << 12, kb_ + (t[2] << 18), (16 * t[3] - 4) << 12]
    out += ".long " + ", ".join("0x%08x" % x for x in w) + "\n"
out += """.section .rodata,"a"
.p2align 6
.amdhsa_kernel %s
  .amdhsa_next_free_vgpr 512
  .amdhsa_next_free_sgpr 102
  .amdhsa_accum_offset 256
  .amdhsa_group_segment_fixed_size 0
  .amdhsa_kernarg_size 56
  .amdhsa_user_sgpr_count 2
  .amdhsa_user_sgpr_kernarg_segment_ptr 1
  .amdhsa_system_sgpr_workgroup_id_x 1
.end_amdhsa_kernel
""" % NAME
sys.stdout.write(out)
```
